```python
import torch

def _softmax(x, axis=-1):
    return torch.softmax(x, dim=axis)
def _gelu(x):
    return torch.nn.functional.gelu(x, approximate="tanh")
def _silu(x):
    return torch.nn.functional.silu(x)
def _sigmoid(x):
    return torch.sigmoid(x)
def _layernorm(x, axis=-1, eps=1e-5):
    m = x.mean(dim=axis, keepdim=True)
    v = x.var(dim=axis, keepdim=True, unbiased=False)
    return (x - m) / torch.sqrt(v + eps)
def _scatter_add(tgt, idx, src, axis=0):
    return tgt.clone().index_add_(axis, idx, src)
def _segment_sum(src, seg, n):
    out = torch.zeros((n,) + src.shape[1:], dtype=src.dtype)
    return out.index_add_(0, seg, src)
def _pad(x, pw):
    flat = tuple(v for pair in reversed(pw) for v in pair)
    return torch.nn.functional.pad(x, flat)

kernel_name = 'interleave_layers__grouped_kv_mqa__glu_gated_bilinear__prompt'

def setup_inputs():

    _w = (lambda a: (lambda t: t.to(torch.bfloat16) if t.is_floating_point() else t)(torch.as_tensor(a)))
    def _A_setup():
        B, S, D, H = 1, 2048, 448, 16
        Dh = D // H
        return {
            "x": _w((lambda *s: torch.randn(*s, dtype=torch.bfloat16) * 0.05)(B, S, D)),
            "wq": _w((lambda *s: torch.randn(*s, dtype=torch.bfloat16) * 0.05)(D, H * Dh)),
            "wk": _w((lambda *s: torch.randn(*s, dtype=torch.bfloat16) * 0.05)(D, Dh)),
            "wv": _w((lambda *s: torch.randn(*s, dtype=torch.bfloat16) * 0.05)(D, Dh)),
            "wo": _w((lambda *s: torch.randn(*s, dtype=torch.bfloat16) * 0.05)(H * Dh, D)),
        }
    _A_in = _A_setup()

    def _B_setup():
        B, S, D, F = 1, 2048, 448, 1792
        return {
            "x": _w((lambda *s: torch.randn(*s, dtype=torch.bfloat16) * 0.05)(B, S, D)),
            "w_gate": _w((lambda *s: torch.randn(*s, dtype=torch.bfloat16) * 0.4)(D, F) * (D ** -0.5)),
            "w_up": _w((lambda *s: torch.randn(*s, dtype=torch.bfloat16) * 0.4)(D, F) * (D ** -0.5)),
            "w_down": _w((lambda *s: torch.randn(*s, dtype=torch.bfloat16) * 0.4)(F, D) * (F ** -0.5)),
        }
    _B_in = _B_setup()

    return {
        "A_x": _A_in["x"],
        "A_wq": _A_in["wq"],
        "A_wk": _A_in["wk"],
        "A_wv": _A_in["wv"],
        "A_wo": _A_in["wo"],
        "B_x": _B_in["x"],
        "B_w_gate": _B_in["w_gate"],
        "B_w_up": _B_in["w_up"],
        "B_w_down": _B_in["w_down"],
    }

def reference(A_x, A_wq, A_wk, A_wv, A_wo, B_x, B_w_gate, B_w_up, B_w_down):
    def _A_ref(x, wq, wk, wv, wo):
        B, S, D = x.shape
        H = 16
        Dh = D // H
        q = (lambda x, *d: x.permute(*d))((x @ wq).reshape(B, S, H, Dh), 0, 2, 1, 3)
        k = x @ wk
        v = x @ wv
        scores = torch.einsum("bhqd,bkd->bhqk", q, k) * (Dh ** -0.5)
        p = _softmax(scores, axis=-1)
        o = torch.einsum("bhqk,bkd->bhqd", p, v)
        return (lambda x, *d: x.permute(*d))(o, 0, 2, 1, 3).reshape(B, S, H * Dh) @ wo

    def _B_ref(x, w_gate, w_up, w_down):
        g = torch.einsum("bsd,df->bsf", x, w_gate)
        u = torch.einsum("bsd,df->bsf", x, w_up)
        h = g * u
        return torch.einsum("bsf,fd->bsd", h, w_down)

    x = A_x
    x = x + _A_ref(_layernorm(x, axis=-1), A_wq, A_wk, A_wv, A_wo)
    x = x + _B_ref(_layernorm(x, axis=-1), B_w_gate, B_w_up, B_w_down)
    x = x + _A_ref(_layernorm(x, axis=-1), A_wq, A_wk, A_wv, A_wo)
    x = x + _B_ref(_layernorm(x, axis=-1), B_w_gate, B_w_up, B_w_down)
    return x
```

```python
import re

TRANS = ("v_exp_f32", "v_log_f32", "v_rcp_f32", "v_rsq_f32", "v_sqrt_f32", "v_sin_f32", "v_cos_f32",
         "v_exp_f16", "v_log_f16", "v_rcp_f16", "v_rsq_f16", "v_sqrt_f16", "v_rcp_iflag_f32")

_reg_re = re.compile(r"\b([vas])\[(\d+):(\d+)\]|\b([vas])(\d+)\b|\b(vcc|exec|m0|scc)(_lo|_hi)?\b")

def regs_of(op):
    out = []
    for m in _reg_re.finditer(op):
        if m.group(1):
            out += [f"{m.group(1)}{i}" for i in range(int(m.group(2)), int(m.group(3)) + 1)]
        elif m.group(4):
            out.append(f"{m.group(4)}{m.group(5)}")
        else:
            out.append(m.group(6))
    return out

def split_ops(s):
    ops, depth, cur = [], 0, ""
    for ch in s:
        if ch == "[": depth += 1
        if ch == "]": depth -= 1
        if ch == "," and depth == 0:
            ops.append(cur.strip()); cur = ""
        else:
            cur += ch
    if cur.strip(): ops.append(cur.strip())
    return ops

def mfma_passes(mn):
    if "32x32x16" in mn or "32x32x8" in mn: return 8
    if "16x16x32" in mn or "16x16x16" in mn: return 4
    raise ValueError(mn)

class Ins:
    __slots__ = ("text", "mn", "cls", "rd", "wr", "srcC", "srcAB", "passes", "states", "wide_store", "dpp", "lanesel", "sdwa")
    def __init__(self, text):
        self.text = text
        t = text.split(";")[0].strip()
        parts = t.split(None, 1)
        mn = parts[0]; rest = parts[1] if len(parts) > 1 else ""
        self.mn = mn
        self.rd, self.wr, self.srcC, self.srcAB = [], [], [], []
        self.passes = 0; self.states = 1; self.wide_store = False; self.dpp = False; self.lanesel = []; self.sdwa = False
        ops = split_ops(rest)
        mods = ""
        if ops:
            last = ops[-1].split()
            if len(last) > 1:
                ops[-1] = last[0]; mods = " ".join(last[1:])
        base = mn.replace("_e32", "").replace("_e64", "")
        if mn.startswith("v_mfma"):
            self.cls = "mfma"; self.passes = mfma_passes(mn)
            self.wr = regs_of(ops[0]); self.srcAB = regs_of(ops[1]) + regs_of(ops[2]); self.srcC = regs_of(ops[3])
            self.rd = self.srcAB + self.srcC
        elif mn.startswith("v_"):
            self.cls = "trans" if base in TRANS else "valu"
            if "dpp" in mn or "row_" in mods or "quad_perm" in mods or "wave_" in mods: self.dpp = True
            if "sdwa" in mn or "dst_sel" in mods or "op_sel" in mods: self.sdwa = True
            if base.startswith("v_cmp"):
                self.wr = regs_of(ops[0]); self.rd = sum((regs_of(o) for o in ops[1:]), [])
                if base.startswith("v_cmpx"): self.wr.append("exec")
            elif base in ("v_readfirstlane_b32", "v_readlane_b32"):
                self.wr = regs_of(ops[0]); self.rd = sum((regs_of(o) for o in ops[1:]), [])
                if base == "v_readlane_b32": self.lanesel = regs_of(ops[2])
            elif base == "v_writelane_b32":
                self.wr = regs_of(ops[0]); self.rd = sum((regs_of(o) for o in ops), []); self.lanesel = regs_of(ops[2])
            elif base.startswith("v_permlane") and "swap" in base:
                self.wr = regs_of(ops[0]) + regs_of(ops[1]); self.rd = list(self.wr)
            elif base in ("v_add_co_u32", "v_sub_co_u32", "v_addc_co_u32", "v_subb_co_u32", "v_subrev_co_u32", "v_div_scale_f32", "v_mad_u64_u32"):
                self.wr = regs_of(ops[0]) + regs_of(ops[1]); self.rd = sum((regs_of(o) for o in ops[2:]), [])
            elif base == "v_nop":
                pass
            else:
                self.wr = regs_of(ops[0]); self.rd = sum((regs_of(o) for o in ops[1:]), [])
                if base in ("v_fmac_f32", "v_dot2c_f32_bf16", "v_pk_fmac_f16", "v_fmac_f16") or self.dpp or self.sdwa:
                    self.rd += self.wr
                if base == "v_cndmask_b32" and len(ops) == 3: self.rd.append("vcc")
        elif mn.startswith("buffer_") or mn.startswith("global_") or mn.startswith("flat_"):
            self.cls = "vmem"
            is_lds = " lds" in (" " + mods) or "_lds_" in mn
            allr = [regs_of(o) for o in ops]
            if "store" in mn or ("atomic" in mn):
                self.rd = sum(allr, [])
                if "atomic" in mn and "sc0" in mods:
                    self.wr = allr[0]
                if "x3" in mn or "x4" in mn:
                    self.wide_store = True
                    self.srcC = allr[0] if mn.startswith("buffer_") else allr[1]
            elif mn.startswith("buffer_wbl2") or mn.startswith("buffer_inv"):
                pass
            elif is_lds:
                self.rd = sum(allr, []) + ["m0"]
            else:
                self.wr = allr[0]; self.rd = sum(allr[1:], [])
                if "d16" in mn: self.rd += allr[0]
        elif mn.startswith("ds_"):
            self.cls = "ds"
            allr = [regs_of(o) for o in ops]
            if mn.startswith("ds_write") or mn.startswith("ds_add") or mn.startswith("ds_max"):
                self.rd = sum(allr, [])
            else:
                self.wr = allr[0]; self.rd = sum(allr[1:], [])
        elif mn.startswith("s_"):
            self.cls = "salu"
            if mn == "s_nop":
                self.states = int(ops[0], 0) + 1
            elif mn.startswith("s_cmp") or mn.startswith("s_bitcmp") or mn in ("s_waitcnt", "s_barrier", "s_endpgm", "s_branch", "s_setprio", "s_sleep") or mn.startswith("s_cbranch"):
                self.rd = sum((regs_of(o) for o in ops), [])
            else:
                if ops:
                    self.wr = regs_of(ops[0]); self.rd = sum((regs_of(o) for o in ops[1:]), [])
                if "saveexec" in mn: self.wr.append("exec")
        else:
            raise ValueError("unknown instr " + text)

class Hazard:
    def __init__(self):
        self.hist = []
        self.pos = 0
    def need(self, c):
        need = 0
        crd, cwr = set(c.rd), set(c.wr)
        for p, ppos in self.hist:
            dist = self.pos - ppos - p.states
            req = 0
            pwr = set(p.wr)
            pv = p.cls in ("valu", "trans")
            cv = c.cls in ("valu", "trans")
            if pv:
                vw = {r for r in pwr if r[0] in "va" and r != "vcc"}
                sw = {r for r in pwr if r[0] == "s" or r == "vcc"}
                if c.cls == "mfma" and vw & crd: req = max(req, 2)
                if c.cls == "mfma" and "exec" in pwr: req = max(req, 4)
                if p.cls == "trans" and c.cls == "valu" and vw & crd: req = max(req, 1)
                if p.sdwa and cv and vw & (crd | cwr): req = max(req, 1)
                if cv and sw & crd: req = max(req, 2)
                if cv and sw & set(c.lanesel): req = max(req, 4)
                if c.cls == "vmem" and sw & crd: req = max(req, 5)
                if c.mn.startswith("v_readlane") or c.mn.startswith("v_readfirstlane"):
                    if vw & crd: req = max(req, 1)
                if c.mn.startswith("v_permlane") and vw & crd: req = max(req, 2)
                if c.dpp and vw & crd: req = max(req, 2)
                if "exec" in pwr and (c.dpp): req = max(req, 5)
                if "exec" in pwr and (c.mn.startswith("v_read") or c.mn.startswith("v_writelane") or c.mn.startswith("v_permlane")): req = max(req, 4)
                if c.cls == "salu" and sw & crd: req = max(req, 1)
            if p.cls == "mfma":
                P = p.passes
                if c.cls == "mfma":
                    if pwr & set(c.srcAB): req = max(req, P + 4)
                    if pwr & set(c.srcC):
                        if not (p.wr == c.srcC and P == c.passes): req = max(req, P + 2)
                    elif pwr & cwr: req = max(req, P + 2)
                elif cv:
                    if pwr & (crd | cwr): req = max(req, P + 4)
                    if set(p.srcC) & cwr: req = max(req, P - 1)
                elif c.cls in ("vmem", "ds"):
                    if pwr & (crd | cwr): req = max(req, P + 4)
            if p.wide_store and set(p.srcC) & cwr:
                req = max(req, 2 if cv else 1)
            if p.cls == "salu" and "m0" in pwr and "m0" in crd and c.cls in ("vmem", "ds"): req = max(req, 1)
            if req > dist: need = max(need, req - dist)
        return need
    def push(self, c):
        self.hist.append((c, self.pos))
        self.pos += c.states
        while self.hist and self.pos - self.hist[0][1] > 40: self.hist.pop(0)

class Asm:
    def __init__(self):
        self.lines = []
        self.hz = Hazard()
        self.nops = 0
        self.rec = None
    def raw(self, s): self.lines.append(s)
    def comment(self, s): self.lines.append("    ; " + s)
    def label(self, name):
        self.lines.append(name + ":")
    def __call__(self, text):
        for t in text.strip().split("\n"):
            t = t.strip()
            if not t or t.startswith(";"): continue
            if t.endswith(":"): self.label(t[:-1]); continue
            ins = Ins(t)
            n = self.hz.need(ins)
            while n > 0:
                k = min(n, 16)
                nop = Ins(f"s_nop {k-1}")
                self.lines.append(f"    s_nop {k-1}"); self.hz.push(nop); self.nops += 1
                if self.rec is not None: self.rec.append(nop)
                n -= k
            self.lines.append("    " + t)
            self.hz.push(ins)
            if self.rec is not None: self.rec.append(ins)
    def fence(self, states=16):
        self(f"s_nop {states-1}")
    def loop_begin(self, name):
        self.label(name); self.rec = []
    def loop_end_check(self):
        body = self.rec; self.rec = None
        hz = Hazard()
        for ins in body: hz.push(ins)
        for i, ins in enumerate(body):
            n = hz.need(ins)
            assert n == 0, f"loop back-edge hazard: {ins.text} needs {n} more states (body idx {i})"
            hz.push(ins)
    def reset_hz(self):
        self.hz = Hazard()
    def text(self): return "\n".join(self.lines) + "\n"
```

```python
import struct, sys
from asm import Asm
from layout import *

def f2u(x): return struct.unpack("<I", struct.pack("<f", x))[0]

KERNELS = []

def kstart(A, name):
    A.raw(f".globl {name}\n.p2align 8\n.type {name},@function\n{name}:")
    A.reset_hz()

import os
STAMPS = bool(int(os.environ.get("STAMPS", "0")))
TS_BASE = 0x8000000
def stamp(A, k):
    if STAMPS:
        if k == 0: A("s_memrealtime s[98:99]")
        A(f"s_memtime s[{80+2*k}:{81+2*k}]")
def stamp_flush(A, kid, ws_srd, n=8):
    if not STAMPS: return
    A(f"s_memtime s[{80+2*(n-1)}:{81+2*(n-1)}]\n s_memrealtime s[100:101]\n s_mov_b64 exec, -1\n s_waitcnt lgkmcnt(0)")
    for k in range(n): A(f"v_writelane_b32 v1, s{80+2*k}, {k}")
    A(f"v_writelane_b32 v1, s98, 8\n v_writelane_b32 v1, s100, 9")
    A(f"""v_and_b32 v2, 63, v0
    v_lshrrev_b32 v3, 6, v0
    v_lshlrev_b32 v2, 2, v2
    v_lshl_add_u32 v2, v3, 6, v2
    s_lshl_b32 s80, s2, 10
    s_add_u32 s80, s80, {TS_BASE + kid * 0x100000}
    s_mov_b64 exec, 0xffff
    buffer_store_dword v1, v2, s[{ws_srd}:{ws_srd+3}], s80 offen""")

def srd(A, d, lo, hi, size):
    A(f"s_mov_b32 s{d}, s{lo}\n s_and_b32 s{d+1}, s{hi}, 0xffff\n s_mov_b32 s{d+2}, {size}\n s_mov_b32 s{d+3}, 0x20000")

def v_swap23(A, dst, src, t):
    A(f"""v_and_b32 v{dst}, 3, v{src}
    v_and_b32 v{t}, 4, v{src}
    v_lshl_or_b32 v{dst}, v{t}, 1, v{dst}
    v_and_b32 v{t}, 8, v{src}
    v_lshrrev_b32 v{t}, 1, v{t}
    v_or_b32 v{dst}, v{dst}, v{t}""")

def k_prep(A):
    name = "prep_kernel"
    kstart(A, name)
    A("""s_cmp_ge_u32 s2, 200
    s_cbranch_scc1 prep_end
    s_load_dwordx8 s[4:11], s[0:1], 8
    s_load_dwordx4 s[12:15], s[0:1], 48
    s_load_dwordx2 s[16:17], s[0:1], 64
    s_load_dwordx2 s[18:19], s[0:1], 88
    v_lshrrev_b32 v1, 6, v0
    v_and_b32 v2, 63, v0
    v_and_b32 v3, 15, v0
    v_bfe_u32 v4, v0, 4, 2
    v_readfirstlane_b32 s3, v1""")
    v_swap23(A, 5, 3, 6)
    A("""v_and_b32 v7, 1, v4
    v_lshrrev_b32 v8, 1, v4
    s_waitcnt lgkmcnt(0)""")
    srd(A, 28, 18, 19, WS_BYTES)
    A("""v_lshlrev_b32 v9, 5, v7
    v_add_u32 v9, v9, v3
    v_lshlrev_b32 v9, 4, v9
    s_mov_b32 s27, 0x20000
    s_mov_b32 s40, 0
    s_cmp_lt_u32 s2, 18
    s_cbranch_scc1 prep_qkv
    s_cmp_lt_u32 s2, 32
    s_cbranch_scc1 prep_wo
    s_cmp_lt_u32 s2, 144
    s_cbranch_scc1 prep_wgu""")
    A(f"""s_sub_u32 s32, s2, 144
    s_mov_b32 s24, s16
    s_and_b32 s25, s17, 0xffff
    s_mov_b32 s26, {F*D*2}
    s_mov_b32 s33, 896
    s_mov_b32 s34, 128
    s_mov_b32 s35, {112*2*1024}
    s_mul_i32 s36, s32, {32*896}
    s_lshl_b32 s37, s3, 5
    s_add_u32 s36, s36, s37
    v_mul_u32_u24 v10, {8*896}, v4
    v_lshl_add_u32 v10, v5, 1, v10
    v_add_u32 v10, s36, v10
    s_lshl_b32 s36, s32, 12
    s_lshr_b32 s37, s3, 1
    s_lshl_b32 s37, s37, 10
    s_add_u32 s36, s36, s37
    s_and_b32 s37, s3, 1
    s_lshl_b32 s37, s37, 8
    s_add_u32 s36, s36, s37
    s_add_u32 s36, s36, {WD}
    v_lshlrev_b32 v11, 11, v8
    v_add3_u32 v11, v11, v9, s36
    s_branch prep_common""")
    A.label("prep_wgu")
    A(f"""s_sub_u32 s32, s2, 32
    s_lshl_b32 s32, s32, 2
    s_add_u32 s32, s32, s3
    s_and_b32 s38, s32, 1
    s_lshr_b32 s32, s32, 1
    s_mul_i32 s39, s32, 4682
    s_lshr_b32 s39, s39, 16
    s_mul_i32 s37, s39, 14
    s_sub_u32 s32, s32, s37
    s_cmp_eq_u32 s38, 0
    s_cselect_b32 s24, s12, s14
    s_cselect_b32 s25, s13, s15
    s_and_b32 s25, s25, 0xffff
    s_mov_b32 s26, {F*D*2}
    s_mov_b32 s33, 3584
    s_mov_b32 s34, 32
    s_mov_b32 s35, 1024
    s_mul_i32 s36, s32, {32*3584}
    s_mul_i32 s37, s39, 224
    s_add_u32 s36, s36, s37
    v_mul_u32_u24 v10, {8*3584}, v4
    v_lshl_add_u32 v10, v5, 1, v10
    v_add_u32 v10, s36, v10
    s_mul_i32 s36, s39, {28*7*1024}
    s_mul_i32 s37, s32, {2*7*1024}
    s_add_u32 s36, s36, s37
    s_lshl_b32 s37, s38, 8
    s_add_u32 s36, s36, s37
    s_add_u32 s36, s36, {WGU}
    v_mul_u32_u24 v11, {7*1024}, v8
    v_add3_u32 v11, v11, v9, s36
    s_branch prep_common""")
    A.label("prep_wo")
    A(f"""s_sub_u32 s32, s2, 18
    s_lshl_b32 s32, s32, 2
    s_add_u32 s32, s32, s3
    s_mul_i32 s39, s32, 4682
    s_lshr_b32 s39, s39, 16
    s_mul_i32 s37, s39, 14
    s_sub_u32 s38, s32, s37
    s_mov_b32 s24, s10
    s_and_b32 s25, s11, 0xffff
    s_mov_b32 s26, {D*D*2}
    s_mov_b32 s33, 896
    s_mov_b32 s34, 32
    s_mov_b32 s35, 1024
    s_mul_i32 s36, s38, {32*896}
    s_mul_i32 s37, s39, 224
    s_add_u32 s36, s36, s37
    v_mul_u32_u24 v10, {8*896}, v4
    v_lshl_add_u32 v10, v3, 1, v10
    v_add_u32 v10, s36, v10
    s_mul_i32 s36, s32, {7*1024}
    s_add_u32 s36, s36, {WO}
    v_lshlrev_b32 v11, 4, v2
    v_add_u32 v11, s36, v11
    s_branch prep_common""")
    A.label("prep_qkv")
    A(f"""s_mov_b32 s40, 1
    s_and_b32 s38, s3, 1
    s_lshr_b32 s39, s3, 1
    s_lshl_b32 s37, s38, 4
    v_add_u32 v12, s37, v5
    s_mov_b32 s41, 1.0
    s_cmp_eq_u32 s2, 17
    s_cbranch_scc1 prep_v
    v_cmp_gt_u32 vcc, 28, v12
    s_cmp_eq_u32 s2, 16
    s_cbranch_scc1 prep_k
    s_mov_b32 s24, s4
    s_and_b32 s25, s5, 0xffff
    s_mov_b32 s26, {D*D*2}
    s_mov_b32 s33, 896
    s_mul_i32 s37, s2, 28
    v_add_u32 v12, s37, v12
    s_mov_b32 s41, {f2u(QSCALE):#x}
    s_branch prep_qkv2""")
    A.label("prep_k")
    A(f"""s_mov_b32 s24, s6
    s_and_b32 s25, s7, 0xffff
    s_mov_b32 s26, {D*DH*2}
    s_mov_b32 s33, 56
    s_branch prep_qkv2""")
    A.label("prep_v")
    A(f"""v_add_u32 v12, s37, v3
    v_and_b32 v13, 3, v12
    v_lshrrev_b32 v14, 3, v12
    v_lshl_add_u32 v13, v14, 2, v13
    v_bfe_u32 v14, v12, 2, 1
    v_mul_u32_u24 v14, 14, v14
    v_cmp_gt_u32 vcc, 14, v13
    v_add_u32 v12, v13, v14
    s_mov_b32 s24, s8
    s_and_b32 s25, s9, 0xffff
    s_mov_b32 s26, {D*DH*2}
    s_mov_b32 s33, 56""")
    A.label("prep_qkv2")
    A.fence(4)
    A(f"""s_lshl_b32 s34, s33, 5
    s_mul_i32 s36, s39, 224
    v_lshlrev_b32 v10, 3, v4
    v_add_u32 v10, s36, v10
    v_mul_lo_u32 v10, v10, s33
    v_lshl_add_u32 v10, v12, 1, v10
    v_mov_b32 v13, 0x7fffff00
    v_cndmask_b32 v10, v13, v10, vcc
    s_mov_b32 s35, 4096
    s_lshr_b32 s36, s2, 1
    s_mul_i32 s36, s36, {28*2*1024}
    s_mul_i32 s37, s39, {7*4096}
    s_add_u32 s36, s36, s37
    s_and_b32 s37, s2, 1
    s_lshl_b32 s37, s37, 10
    s_add_u32 s36, s36, s37
    s_lshl_b32 s37, s38, 8
    s_add_u32 s36, s36, s37
    s_add_u32 s36, s36, {WQKV}
    v_lshlrev_b32 v11, 11, v8
    v_add3_u32 v11, v11, v9, s36""")
    A.label("prep_common")
    A.fence(4)
    A("s_mov_b32 s36, 0")
    R = 16
    for u in range(7):
        A("s_mov_b32 s37, s36")
        for j in range(8):
            A(f"buffer_load_ushort v{R+8*u+j}, v10, s[24:27], s37 offen")
            if j < 7: A("s_add_u32 s37, s37, s33")
        if u < 6: A("s_add_u32 s36, s36, s34")
    A("""s_cmp_eq_u32 s40, 1
    s_cbranch_scc1 prep_center""")
    A("s_mov_b32 s36, 0")
    for u in range(7):
        A(f"s_waitcnt vmcnt({min(63, 48 - 8*u + u)})")
        b = R + 8*u
        for p in range(4):
            A(f"v_lshl_or_b32 v{b+p}, v{b+2*p+1}, 16, v{b+2*p}")
        A(f"buffer_store_dwordx4 v[{b}:{b+3}], v11, s[28:31], s36 offen")
        if u < 6: A("s_add_u32 s36, s36, s35")
    A("s_endpgm")
    A.label("prep_center")
    A.fence(2)
    A("s_waitcnt vmcnt(0)\n v_mov_b32 v12, 0\n v_mov_b32 v13, 0")
    for i in range(56):
        A(f"v_lshlrev_b32 v{R+i}, 16, v{R+i}")
        A(f"v_add_f32 v{12 + (i&1)}, v{12 + (i&1)}, v{R+i}")
    A(f"""v_add_f32 v12, v12, v13
    v_lshlrev_b32 v14, 2, v0
    ds_write_b32 v14, v12
    s_lshl_b32 s37, s38, 8
    v_lshlrev_b32 v14, 2, v3
    v_add_u32 v14, s37, v14
    s_waitcnt lgkmcnt(0)
    s_barrier""")
    for i in range(8):
        A(f"ds_read_b32 v{72+i}, v14 offset:{(i>>2)*512 + (i&3)*64}")
    A("s_waitcnt lgkmcnt(0)")
    for i in range(1, 8):
        A(f"v_add_f32 v72, v72, v{72+i}")
    A(f"v_mul_f32 v72, {f2u(1.0/448):#x}, v72\n s_mov_b32 s36, 0")
    for u in range(7):
        b = R + 8*u
        for j in range(8):
            A(f"v_sub_f32 v{b+j}, v{b+j}, v72")
        for j in range(8):
            A(f"v_mul_f32 v{b+j}, s41, v{b+j}")
        for p in range(4):
            A(f"v_cvt_pk_bf16_f32 v{b+p}, v{b+2*p}, v{b+2*p+1}")
        A(f"buffer_store_dwordx4 v[{b}:{b+3}], v11, s[28:31], s36 offen")
        if u < 6: A("s_add_u32 s36, s36, s35")
    A.label("prep_end")
    A("s_endpgm")
    KERNELS.append((name, 200, 256, 1024, 80, 80))

def finish(A, launches):
    hdr = open("interleave_layers__grouped_kv_mqa__glu_gated_bilinear__prompt.s.ref").read().split("; Override launch")[0]
    kd = {k[0]: k for k in KERNELS}
    for n in launches:
        _, g, b, lds, nv, ao = kd[n]
        hdr += f"; @launch kernel={n} grid=({g},1,1) block=({b},1,1) lds={lds}\n"
    hdr += '.amdgcn_target "amdgcn-amd-amdhsa--gfx950"\n.text\n'
    out = hdr + A.text()
    out += '.section .rodata,"a"\n'
    for (n, g, b, lds, nv, ao) in KERNELS:
        if n not in launches: continue
        out += f""".p2align 6
.amdhsa_kernel {n}
  .amdhsa_next_free_vgpr {nv}
  .amdhsa_next_free_sgpr 102
  .amdhsa_accum_offset {ao}
  .amdhsa_group_segment_fixed_size 0
  .amdhsa_kernarg_size 96
  .amdhsa_user_sgpr_count 2
  .amdhsa_user_sgpr_kernarg_segment_ptr 1
  .amdhsa_system_sgpr_workgroup_id_x 1
.end_amdhsa_kernel
"""
    return out

def k_qkv(A):
    for L in (0, 1):
        name = f"qkv{L}_kernel"
        kstart(A, name)
        A(f"""s_cmp_ge_u32 s2, 288
        s_cbranch_scc1 qkv_end
        s_load_dwordx2 s[4:5], s[0:1], 0
        s_load_dwordx2 s[6:7], s[0:1], 88
        s_mov_b32 s20, {LBASE[L]}
        s_waitcnt lgkmcnt(0)""")
        if L == 1:
            A(f"s_add_u32 s4, s6, {LBASE[0] + X2_O}\n s_addc_u32 s5, s7, 0")
        A("s_branch qkv_body")
        KERNELS.append((name, 288, 256, 64*1024 + 4096 + 512, 192, 192))
    A.label("qkv_body")
    A.reset_hz()
    stamp(A, 0)
    srd(A, 8, 4, 5, X_BYTES)
    srd(A, 12, 6, 7, WS_BYTES)
    XR, WR, AC = 16, 72, 128
    ST = 8
    A(f"""v_lshrrev_b32 v1, 6, v0
    v_and_b32 v2, 63, v0
    v_and_b32 v3, 31, v0
    v_bfe_u32 v4, v0, 5, 1
    v_readfirstlane_b32 s3, v1
    s_and_b32 s16, s2, 7
    s_lshr_b32 s17, s2, 3
    s_and_b32 s18, s17, 3
    s_lshl_b32 s16, s16, 2
    s_add_u32 s16, s16, s18
    s_lshr_b32 s17, s17, 2
    v_mul_u32_u24 v5, 896, v3
    v_lshl_add_u32 v5, v4, 4, v5
    s_mul_i32 s18, s16, {64*896}
    s_mul_i32 s19, s3, 224
    s_add_u32 s18, s18, s19
    s_add_u32 s19, s18, {32*896}
    v_lshlrev_b32 v6, 4, v2
    s_mul_i32 s21, s17, {28*2*1024}
    s_mul_i32 s22, s3, {7*2*1024}
    s_add_u32 s21, s21, s22
    s_add_u32 s21, s21, {WQKV}
    s_add_u32 s22, s21, 4096
    s_add_u32 s23, s21, 8192
    s_add_u32 s24, s21, 12288""")
    for ks in range(7):
        A(f"buffer_load_dwordx4 v[{XR+4*ks}:{XR+4*ks+3}], v5, s[8:11], s18 offen offset:{32*ks}")
        A(f"buffer_load_dwordx4 v[{XR+28+4*ks}:{XR+28+4*ks+3}], v5, s[8:11], s19 offen offset:{32*ks}")
        for a in range(2):
            blk = ks*2 + a
            A(f"buffer_load_dwordx4 v[{WR+28*a+4*ks}:{WR+28*a+4*ks+3}], v6, s[12:15], s{21 + blk//4} offen offset:{(blk%4)*1024}")
    stamp(A, 1)
    A("v_mov_b32 v7, 0x3f803f80")
    for i in range(4): A(f"v_mov_b32 v{ST+i}, 0")
    A("s_cmp_eq_u32 s17, 8\n s_cbranch_scc1 qkv_kvloop")
    def mm(kv):
        for ks in range(7):
            A(f"s_waitcnt vmcnt({24 - 4*ks})")
            if ks == 0: stamp(A, 2)
            if ks == 6: stamp(A, 3)
            for t in range(2):
                x = f"v[{XR+28*t+4*ks}:{XR+28*t+4*ks+3}]"
                for a in range(2):
                    w = f"v[{WR+28*a+4*ks}:{WR+28*a+4*ks+3}]"
                    p = a + 2*t
                    acc = f"v[{AC+16*p}:{AC+16*p+15}]"
                    c = "0" if ks == 0 else acc
                    if kv and a == 1: A(f"v_mfma_f32_32x32x16_bf16 {acc}, {x}, {w}, {c}")
                    else:             A(f"v_mfma_f32_32x32x16_bf16 {acc}, {w}, {x}, {c}")
                    for j in range(2*a, 2*a+2):
                        r = XR+28*t+4*ks+j
                        A(f"v_dot2_f32_bf16 v{ST+2*t}, v{r}, v7, v{ST+2*t}")
                        A(f"v_dot2_f32_bf16 v{ST+2*t+1}, v{r}, v{r}, v{ST+2*t+1}")
    mm(False)
    A("s_branch qkv_red")
    A.label("qkv_kvloop")
    A.reset_hz()
    mm(True)
    A.label("qkv_red")
    A.fence(12)
    stamp(A, 4)
    A(f"""s_lshl_b32 s25, s3, 14
    v_add_u32 v12, s25, v6
    v_lshlrev_b32 v13, 3, v0
    v_add_u32 v13, 65536, v13""")
    A(f"ds_write_b64 v13, v[{ST}:{ST+1}]\n ds_write_b64 v13, v[{ST+2}:{ST+3}] offset:2048")
    for p in range(4):
        for rq in range(4):
            r = AC + 16*p + 4*rq
            A(f"ds_write_b128 v12, v[{r}:{r+3}] offset:{p*4096 + rq*1024}")
    A(f"""s_lshl_b32 s25, s3, 12
    v_add_u32 v12, s25, v6
    s_lshr_b32 s26, s3, 1
    s_lshl_b32 s25, s26, 11
    s_add_u32 s25, s25, 65536
    v_lshlrev_b32 v13, 3, v3
    v_add_u32 v13, s25, v13
    s_waitcnt lgkmcnt(0)
    s_barrier""")
    stamp(A, 5)
    for w in range(4):
        for hf in range(2):
            i = w*2 + hf
            A(f"ds_read_b64 v[{16+2*i}:{17+2*i}], v13 offset:{w*512 + hf*256}")
    for w in range(4):
        for rq in range(4):
            r = 64 + 16*w + 4*rq
            A(f"ds_read_b128 v[{r}:{r+3}], v12 offset:{w*16384 + rq*1024}")
    A("s_waitcnt lgkmcnt(15)")
    for i in range(1, 8):
        A(f"v_add_f32 v16, v16, v{16+2*i}\n v_add_f32 v17, v17, v{17+2*i}")
    A(f"""v_mul_f32 v16, {f2u(1.0/448):#x}, v16
    v_mul_f32 v17, {f2u(1.0/448):#x}, v17
    v_fma_f32 v17, -v16, v16, v17
    v_max_f32 v17, 0, v17
    v_add_f32 v17, {f2u(1e-5):#x}, v17
    v_rsq_f32 v18, v17""")
    A("s_waitcnt lgkmcnt(8)")
    for r in range(16): A(f"v_add_f32 v{64+r}, v{64+r}, v{80+r}")
    A("s_waitcnt lgkmcnt(4)")
    for r in range(16): A(f"v_add_f32 v{64+r}, v{64+r}, v{96+r}")
    A("s_waitcnt lgkmcnt(0)")
    for r in range(16): A(f"v_add_f32 v{64+r}, v{64+r}, v{112+r}")
    A(f"""s_lshl_b32 s27, s16, 1
    s_add_u32 s27, s27, s26
    s_and_b32 s28, s3, 1
    s_cmp_eq_u32 s17, 8
    s_cbranch_scc1 qkv_epi_kv""")
    for r in range(16): A(f"v_mul_f32 v{64+r}, v{64+r}, v18")
    for p in range(8): A(f"v_cvt_pk_bf16_f32 v{32+p}, v{64+2*p}, v{65+2*p}")
    A(f"""s_lshl_b32 s27, s27, 15
    s_lshl_b32 s29, s17, 12
    s_add_u32 s27, s27, s29
    s_lshl_b32 s29, s28, 11
    s_add_u32 s27, s27, s29
    s_add_u32 s27, s27, s20
    buffer_store_dwordx4 v[32:35], v6, s[12:15], s27 offen offset:{Q_O}
    buffer_store_dwordx4 v[36:39], v6, s[12:15], s27 offen offset:{Q_O + 1024}""")
    stamp(A, 6)
    if STAMPS: A("s_waitcnt vmcnt(0)")
    stamp_flush(A, 1, 12)
    A("s_endpgm")
    assert Q_O == 0
    A.label("qkv_epi_kv")
    A.fence(4)
    A(f"""s_lshl_b32 s29, s27, 12
    s_add_u32 s29, s29, s20
    s_add_u32 s29, s29, {KV_O}
    s_cmp_eq_u32 s28, 1
    s_cbranch_scc1 qkv_epi_v""")
    for r in range(16): A(f"v_mul_f32 v{64+r}, v{64+r}, v18")
    for p in range(8): A(f"v_cvt_pk_bf16_f32 v{32+p}, v{64+2*p}, v{65+2*p}")
    A("v_mov_b32 v20, 0")
    for p in range(8): A(f"v_dot2_f32_bf16 v20, v{32+p}, v{32+p}, v20")
    A(f"""v_mov_b32 v21, v20
    s_mov_b32 exec_lo, 0
    v_mov_b32 v38, 0x3f803f80
    v_mov_b32 v39, 0x00003f80
    s_mov_b32 exec_lo, -1
    buffer_store_dwordx4 v[32:35], v6, s[12:15], s29 offen
    buffer_store_dwordx4 v[36:39], v6, s[12:15], s29 offen offset:1024
    v_permlane32_swap_b32 v20, v21
    v_add_f32 v20, v20, v21""")
    A("""v_max_f32_dpp v20, v20, v20 row_shr:1 row_mask:0xf bank_mask:0xf
    v_max_f32_dpp v20, v20, v20 row_shr:2 row_mask:0xf bank_mask:0xf
    v_max_f32_dpp v20, v20, v20 row_shr:4 row_mask:0xf bank_mask:0xf
    v_max_f32_dpp v20, v20, v20 row_shr:8 row_mask:0xf bank_mask:0xf
    v_readlane_b32 s30, v20, 15
    v_readlane_b32 s31, v20, 31
    v_mov_b32 v21, s30
    v_max_f32 v21, s31, v21""")
    A(f"""s_lshl_b32 s27, s27, 2
    s_add_u32 s27, s27, s20
    s_add_u32 s27, s27, {KN_O}
    v_mov_b32 v22, 0
    s_mov_b64 exec, 1
    buffer_store_dword v21, v22, s[12:15], s27 offen
    s_endpgm""")
    A.label("qkv_epi_v")
    A.fence(4)
    A(f"""s_lshl_b32 s30, s3, 7
    s_add_u32 s30, s30, {65536 + 4096}
    v_lshlrev_b32 v20, 2, v3
    v_add_u32 v20, s30, v20
    ds_write_b32 v20, v18
    v_lshlrev_b32 v21, 4, v4
    v_add_u32 v21, s30, v21
    v_and_b32 v22, 27, v3
    v_cmp_eq_u32 vcc, 26, v22
    v_mov_b32 v23, 0
    v_mov_b32 v24, 1.0
    v_cndmask_b32 v23, v23, v24, vcc
    s_waitcnt lgkmcnt(0)""")
    for q in range(4): A(f"ds_read_b128 v[{40+4*q}:{43+4*q}], v21 offset:{32*q}")
    A("s_waitcnt lgkmcnt(0)")
    for r in range(16): A(f"v_fma_f32 v{64+r}, v{64+r}, v{40+r}, v23")
    for p in range(8): A(f"v_cvt_pk_bf16_f32 v{32+p}, v{64+2*p}, v{65+2*p}")
    A(f"""buffer_store_dwordx4 v[32:35], v6, s[12:15], s29 offen offset:2048
    buffer_store_dwordx4 v[36:39], v6, s[12:15], s29 offen offset:3072""")
    A.label("qkv_end")
    A("s_endpgm")

class VM:
    def __init__(self, A): self.A = A; self.ops = []
    def issue(self, text, tag): self.A(text); self.ops.append(tag)
    def wait(self, *tags):
        last = max(i for i, t in enumerate(self.ops) if t in tags)
        n = len(self.ops) - 1 - last
        self.A(f"s_waitcnt vmcnt({min(n, 63)})")

BOUND_T = 45.0
EXP_NOKV = int(os.environ.get("EXP_NOKV", "0"))
EXP_NOWO = int(os.environ.get("EXP_NOWO", "0"))
def k_attn(A):
    OSTR = 912
    LDS_O = 49152
    LDS_ST = LDS_O + 8 * OSTR
    LDS_MX = LDS_ST + 512
    LDS_TOTAL = LDS_MX + 2048
    for L in (0, 1):
        name = f"attn{L}_kernel"
        kstart(A, name)
        A(f"""s_cmp_ge_u32 s2, 256
        s_cbranch_scc1 attn_end
        s_load_dwordx2 s[4:5], s[0:1], 0
        s_load_dwordx2 s[6:7], s[0:1], 88
        s_mov_b32 s20, {LBASE[L]}
        s_waitcnt lgkmcnt(0)""")
        if L == 1:
            A(f"s_add_u32 s4, s6, {LBASE[0] + X2_O}\n s_addc_u32 s5, s7, 0")
        A("s_branch attn_body")
        KERNELS.append((name, 256, 256, LDS_TOTAL, 512, 256))
    A.label("attn_body")
    A.reset_hz()
    stamp(A, 0)
    srd(A, 12, 4, 5, X_BYTES)
    srd(A, 8, 6, 7, WS_BYTES)
    QR, OR_, SR, PR, KVR, XR, SP = 16, 48, 112, 144, 160, 224, 240
    vm = VM(A)
    def q(j, s): return f"v[{QR+8*j+4*s}:{QR+8*j+4*s+3}]"
    def o(j): return f"v[{OR_+16*j}:{OR_+16*j+15}]"
    def sb(t): return SR + 16 * (t & 1)
    def pb(t): return PR + 8 * (t & 1)
    def kv(kt, i): b = KVR + 16 * (kt & 3) + 4 * i; return f"v[{b}:{b+3}]"
    A(f"""v_lshrrev_b32 v1, 6, v0
    v_and_b32 v2, 63, v0
    v_lshlrev_b32 v6, 4, v2
    v_readfirstlane_b32 s3, v1
    v_bfe_u32 v3, v0, 3, 2
    v_bfe_u32 v4, v0, 5, 1
    v_and_b32 v5, 7, v0
    v_lshlrev_b32 v7, 11, v3
    v_lshl_add_u32 v7, v4, 9, v7
    v_lshl_add_u32 v7, v5, 4, v7
    v_lshlrev_b32 v8, 2, v2
    s_lshr_b32 s16, s2, 2
    s_and_b32 s17, s2, 3
    s_lshl_b32 s18, s16, 15
    s_lshl_b32 s19, s17, 7
    s_add_u32 s18, s18, s19
    s_add_u32 s18, s18, s20
    s_add_u32 s19, s20, {KN_O}
    s_lshl_b32 s21, s3, 16
    s_add_u32 s21, s21, s20
    s_add_u32 s21, s21, {KV_O}
    s_mul_i32 s22, s3, {98*1024}
    s_add_u32 s22, s22, {WO}""")
    vm.issue("buffer_load_dword v9, v8, s[8:11], s19 offen", "kn")
    for jl in range(4):
        A(f"s_xor_b32 s23, s3, {jl}\n s_lshl_b32 s23, s23, 13\n s_add_u32 s{24+jl}, s18, s23")
        for s_ in range(2):
            vm.issue(f"buffer_load_dwordx4 {q(jl, s_)}, v7, s[8:11], s{24+jl} offen offset:{1024*s_}", "q")
    def kvload(kt, i):
        vm.issue(f"buffer_load_dwordx4 {kv(kt, i)}, v6, s[8:11], s21 offen offset:{1024*i}", f"kv{kt}")
        if i == 3: A("s_add_u32 s21, s21, 4096")
    A("s_mov_b32 s33, s21")
    for kt in range(3):
        for i in range(4): kvload(kt, i)
    wo_dst = {}
    wo_next = [0]
    def woload(dst):
        idx = wo_next[0]; wo_next[0] += 1
        wo_dst[idx] = dst
        if EXP_NOWO and idx < 80:
            vm.ops.append(f"wo{idx}"); return
        vm.issue(f"buffer_load_dwordx4 {dst}, v6, s[8:11], s22 offen offset:{1024*(idx & 3)}", f"wo{idx}")
        if idx & 3 == 3: A("s_add_u32 s22, s22, 4096")
    A(f"""v_bfe_u32 v10, v0, 4, 2
    v_mul_u32_u24 v11, 896, v5
    v_lshl_add_u32 v11, v10, 3, v11
    s_mul_i32 s28, s2, {8*896}
    s_mul_i32 s29, s3, 224
    s_add_u32 s28, s28, s29""")
    for nt in range(7):
        vm.issue(f"buffer_load_dwordx2 v[{XR+2*nt}:{XR+2*nt+1}], v11, s[12:15], s28 offen offset:{32*nt}", "x")
    for r in range(64): A(f"v_mov_b32 v{OR_+r}, 0")
    for r in range(8): A(f"v_mov_b32 v{pb(1)+r}, 0")
    for r in range(4): A(f"v_mov_b32 v{KVR+48+12+r}, 0")
    for r in range(4): A(f"v_mov_b32 v{sb(1)+12+r}, 0")
    stamp(A, 1)
    vm.wait("kn")
    A("""v_max_f32_dpp v9, v9, v9 row_shr:1 row_mask:0xf bank_mask:0xf
    v_max_f32_dpp v9, v9, v9 row_shr:2 row_mask:0xf bank_mask:0xf
    v_max_f32_dpp v9, v9, v9 row_shr:4 row_mask:0xf bank_mask:0xf
    v_max_f32_dpp v9, v9, v9 row_shr:8 row_mask:0xf bank_mask:0xf
    v_readlane_b32 s30, v9, 15
    v_readlane_b32 s31, v9, 31
    v_readlane_b32 s34, v9, 47
    v_readlane_b32 s35, v9, 63
    v_mov_b32 v9, s30
    v_max_f32 v9, s31, v9
    v_max_f32 v9, s34, v9
    v_max_f32 v9, s35, v9""")
    vm.wait("q")
    for j in range(4): A(f"v_mov_b32 v{12+j}, 0")
    for r in range(8):
        for j in range(4):
            A(f"v_dot2_f32_bf16 v{12+j}, v{QR+8*j+r}, v{QR+8*j+r}, v{12+j}")
    for j in range(4): A(f"v_mov_b32 v{SP+j}, v{12+j}")
    for j in range(4): A(f"v_permlane32_swap_b32 v{12+j}, v{SP+j}")
    for j in range(4): A(f"v_add_f32 v{12+j}, v{12+j}, v{SP+j}")
    for j in range(4): A(f"v_mul_f32 v{12+j}, v{12+j}, v9")
    for j in range(4): A(f"v_sqrt_f32 v{12+j}, v{12+j}")
    for j in range(4): A(f"v_mul_f32 v{12+j}, {f2u(1.01):#x}, v{12+j}")
    A(f"""v_max3_f32 v{SP}, v12, v13, v14
    v_max_f32 v{SP}, v{SP}, v15
    v_mov_b32 v{SP+1}, {f2u(BOUND_T):#x}
    v_cmp_nle_f32 vcc, v{SP}, v{SP+1}
    s_cbranch_vccnz attn_fallback""")
    A("s_mov_b32 exec_lo, 0")
    for j in range(4): A(f"v_cvt_pk_bf16_f32 v{QR+8*j+6}, -v{12+j}, 0")
    A("s_mov_b32 exec_lo, -1")
    A.label("attn_main")
    A.fence(2)
    stamp(A, 2)
    vm.wait("kv0")
    A(f"v_mfma_f32_32x32x16_bf16 v[{sb(0)}:{sb(0)+15}], {kv(0,0)}, {q(0,0)}, 0")
    A(f"v_mfma_f32_32x32x16_bf16 v[{sb(0)}:{sb(0)+15}], {kv(0,1)}, {q(0,1)}, v[{sb(0)}:{sb(0)+15}]")
    NT = 64
    spare_dst = [f"a[{4*i}:{4*i+3}]" for i in range(64)] + [f"v[{SP+4*i}:{SP+4*i+3}]" for i in range(4)]
    def cvt(dst, src): A(f"v_cvt_pk_bf16_f32 v{dst}, v{src}, v{src+1}")
    def exps(base):
        for r in range(4): A(f"v_exp_f32 v{base+r}, v{base+r}")
    for t in range(NT):
        kt, j = t >> 2, t & 3
        t1 = t + 1; kt1, j1 = t1 >> 2, t1 & 3
        tm = t - 1; ktm, jm = (tm >> 2), tm & 3
        S, Sn, Sp, P, Pp = sb(t), sb(t1), sb(tm), pb(t), pb(tm)
        if j == 3 and kt < 15: vm.wait(f"kv{kt+1}")
        cvt(Pp+6, Sp+12); cvt(Pp+7, Sp+14)
        if t1 < NT: A(f"v_mfma_f32_32x32x16_bf16 v[{Sn}:{Sn+15}], {kv(kt1,0)}, {q(j1,0)}, 0")
        exps(S)
        if kt + 3 < 16:
            if EXP_NOKV: vm.ops.append(f"kv{kt+3}")
            else: kvload(kt + 3, j)
        else: woload(kv(kt + 3, j))
        cvt(P+0, S+0); cvt(P+1, S+2)
        if t1 < NT: A(f"v_mfma_f32_32x32x16_bf16 v[{Sn}:{Sn+15}], {kv(kt1,1)}, {q(j1,1)}, v[{Sn}:{Sn+15}]")
        exps(S+4)
        if spare_dst: woload(spare_dst.pop(0))
        cvt(P+2, S+4); cvt(P+3, S+6)
        A(f"v_mfma_f32_32x32x16_bf16 {o(jm)}, {kv(ktm,3)}, v[{Pp+4}:{Pp+7}], {o(jm)}")
        exps(S+8)
        if t < 4 and spare_dst: woload(spare_dst.pop(0))
        cvt(P+4, S+8); cvt(P+5, S+10)
        A(f"v_mfma_f32_32x32x16_bf16 {o(j)}, {kv(kt,2)}, v[{P}:{P+3}], {o(j)}")
        exps(S+12)
    t = NT - 1
    for i in range(8): woload(f"v[{QR+4*i}:{QR+4*i+3}]")
    for i in range(4): woload(f"v[{sb(t+1)+4*i}:{sb(t+1)+4*i+3}]")
    woload(kv(15, 1)); woload(kv(15, 2))
    cvt(pb(t)+6, sb(t)+12); cvt(pb(t)+7, sb(t)+14)
    A(f"v_mfma_f32_32x32x16_bf16 {o(3)}, {kv(15,3)}, v[{pb(t)+4}:{pb(t)+7}], {o(3)}")
    i = 0
    while wo_next[0] < 98:
        woload(f"v[{sb(t)+4*i}:{sb(t)+4*i+3}]"); i += 1
    assert i <= 4
    stamp(A, 3)
    for jl in range(1, 4):
        A(f"s_xor_b32 s23, s3, {jl}\n s_mul_i32 s23, s23, 12288\n v_add_u32 v{11+jl}, s23, v6")
    for jl in range(1, 4):
        for rq in range(4):
            r = OR_ + 16*jl + 4*rq
            A(f"ds_write_b128 v{11+jl}, v[{r}:{r+3}] offset:{(jl-1)*4096 + rq*1024}")
    A(f"""s_mul_i32 s23, s3, 12288
    v_add_u32 v12, s23, v6
    s_waitcnt lgkmcnt(0)
    s_barrier""")
    for i in range(3):
        for rq in range(4):
            r = OR_ + 16*(i+1) + 4*rq
            A(f"ds_read_b128 v[{r}:{r+3}], v12 offset:{i*4096 + rq*1024}")
    A(f"""v_mul_u32_u24 v13, {OSTR}, v5
    v_mul_u32_u24 v14, 56, v3
    v_mul_u32_u24 v15, 28, v4
    v_add3_u32 v13, v13, v14, v15
    s_mul_i32 s23, s3, 224
    s_add_u32 s23, s23, {LDS_O}
    v_add_u32 v13, s23, v13
    v_mul_u32_u24 v14, {OSTR}, v5
    v_lshl_add_u32 v14, v10, 4, v14
    v_add_u32 v14, {LDS_O}, v14""")
    for i in range(3):
        A(f"s_waitcnt lgkmcnt({8 - 4*i})")
        for r in range(15): A(f"v_add_f32 v{OR_+r}, v{OR_+r}, v{OR_+16*(i+1)+r}")
    A(f"v_rcp_f32 v15, v{OR_+14}")
    for r in range(14): A(f"v_mul_f32 v{OR_+r}, v{OR_+r}, v15")
    for p in range(7): cvt(OR_+16+p, OR_+2*p)
    for p in range(3): A(f"ds_write2_b32 v13, v{OR_+16+2*p}, v{OR_+17+2*p} offset0:{2*p} offset1:{2*p+1}")
    A(f"ds_write_b32 v13, v{OR_+22} offset:24\n s_waitcnt lgkmcnt(0)\n s_barrier")
    stamp(A, 4)
    BR = OR_
    for ks in range(14): A(f"ds_read_b128 v[{BR+4*ks}:{BR+4*ks+3}], v14 offset:{64*ks}")
    ACC = [104, 108, PR, PR+4, PR+8, PR+12, KVR+48]
    for ks in range(14):
        A(f"s_waitcnt lgkmcnt({13-ks})")
        for nt in range(7):
            idx = ks*7 + nt
            d = wo_dst[idx]
            if idx == 0 or idx >= 64 or idx % 16 == 0: vm.wait(f"wo{min(idx + (15 if idx < 64 else 0), 97)}", f"wo{idx}")
            acc = f"v[{ACC[nt]}:{ACC[nt]+3}]"
            A(f"v_mfma_f32_16x16x32_bf16 {acc}, {d}, v[{BR+4*ks}:{BR+4*ks+3}], {'0' if ks == 0 else acc}")
    stamp(A, 5)
    X1, PK = 48, 76
    for nt in range(7):
        A(f"""v_lshlrev_b32 v{X1+4*nt}, 16, v{XR+2*nt}
        v_and_b32 v{X1+4*nt+1}, 0xffff0000, v{XR+2*nt}
        v_lshlrev_b32 v{X1+4*nt+2}, 16, v{XR+2*nt+1}
        v_and_b32 v{X1+4*nt+3}, 0xffff0000, v{XR+2*nt+1}""")
    for nt in range(7):
        for r in range(4): A(f"v_add_f32 v{X1+4*nt+r}, v{X1+4*nt+r}, v{ACC[nt]+r}")
    for p in range(14): cvt(PK+p, X1+2*p)
    A("v_mov_b32 v12, 0\n v_mov_b32 v13, 0\n v_mov_b32 v15, 0x3f803f80")
    for p in range(14):
        A(f"v_dot2_f32_bf16 v12, v{PK+p}, v15, v12\n v_dot2_f32_bf16 v13, v{PK+p}, v{PK+p}, v13")
    A(f"""s_add_u32 s29, s28, s20
    s_add_u32 s29, s29, {X1_O}
    s_mov_b32 s36, 0x00ff00ff
    s_mov_b32 s37, 0x00ff00ff
    s_mov_b64 exec, s[36:37]""")
    for nt in range(7):
        A(f"buffer_store_dwordx2 v[{PK+2*nt}:{PK+2*nt+1}], v11, s[8:11], s29 offen offset:{32*nt}")
    A("s_mov_b64 exec, -1")
    A(f"""v_mov_b32 v90, v12
    v_mov_b32 v91, v13
    v_permlane32_swap_b32 v12, v90
    v_permlane32_swap_b32 v13, v91
    v_add_f32 v12, v12, v90
    v_add_f32 v13, v13, v91
    v_mov_b32 v90, v12
    v_mov_b32 v91, v13
    v_permlane16_swap_b32 v12, v90
    v_permlane16_swap_b32 v13, v91
    v_add_f32 v12, v12, v90
    v_add_f32 v13, v13, v91
    v_and_b32 v92, 15, v0
    v_lshlrev_b32 v92, 3, v92
    v_add_u32 v92, {LDS_ST}, v92
    s_lshl_b32 s23, s3, 7
    v_add_u32 v93, s23, v92
    ds_write_b64 v93, v[12:13]""")
    for nt in range(7):
        A(f"""v_lshlrev_b32 v{X1+4*nt}, 16, v{PK+2*nt}
        v_and_b32 v{X1+4*nt+1}, 0xffff0000, v{PK+2*nt}
        v_lshlrev_b32 v{X1+4*nt+2}, 16, v{PK+2*nt+1}
        v_and_b32 v{X1+4*nt+3}, 0xffff0000, v{PK+2*nt+1}""")
    A(f"""v_lshrrev_b32 v94, 1, v10
    v_lshlrev_b32 v94, 9, v94
    v_lshl_add_u32 v94, v5, 4, v94
    v_and_b32 v95, 1, v10
    v_lshl_add_u32 v94, v95, 3, v94
    s_mul_i32 s29, s16, {28*1024}
    s_mul_i32 s23, s3, {7*1024}
    s_add_u32 s29, s29, s23
    s_lshl_b32 s23, s17, 7
    s_add_u32 s29, s29, s23
    s_add_u32 s29, s29, s20
    s_add_u32 s29, s29, {XN1_O}
    s_add_u32 s30, s29, 4096
    s_waitcnt lgkmcnt(0)
    s_barrier""")
    for w in range(4): A(f"ds_read_b64 v[{96+2*w}:{97+2*w}], v92 offset:{128*w}")
    A(f"""s_waitcnt lgkmcnt(0)
    v_add_f32 v96, v96, v98
    v_add_f32 v97, v97, v99
    v_add_f32 v100, v100, v102
    v_add_f32 v101, v101, v103
    v_add_f32 v96, v96, v100
    v_add_f32 v97, v97, v101
    v_mul_f32 v96, {f2u(1.0/448):#x}, v96
    v_mul_f32 v97, {f2u(1.0/448):#x}, v97
    v_fma_f32 v97, -v96, v96, v97
    v_max_f32 v97, 0, v97
    v_add_f32 v97, {f2u(1e-5):#x}, v97
    v_rsq_f32 v97, v97
    v_mul_f32 v96, v96, v97""")
    for r in range(28): A(f"v_fma_f32 v{X1+r}, v{X1+r}, v97, -v96")
    for p in range(14): cvt(104+p if p < 8 else PR+p-8, X1+2*p)
    A("s_mov_b64 exec, s[36:37]")
    for nt in range(7):
        r = 104+2*nt if nt < 4 else PR+2*nt-8
        A(f"buffer_store_dwordx2 v[{r}:{r+1}], v94, s[8:11], s{29 + nt//4} offen offset:{1024*(nt%4)}")
    stamp(A, 6)
    if STAMPS: A("s_waitcnt vmcnt(0)")
    stamp_flush(A, 2, 8)
    A.label("attn_end")
    A("s_endpgm")
    A.label("attn_fallback")
    A.reset_hz()
    A.fence(8)
    FK = SP + 4
    for j in range(4): A(f"v_mov_b32 v{12+j}, 0xff800000")
    A("s_mov_b32 s34, 16")
    A.label("attn_fb_loop")
    A(f"""buffer_load_dwordx4 v[{FK}:{FK+3}], v6, s[8:11], s33 offen
    buffer_load_dwordx4 v[{FK+4}:{FK+7}], v6, s[8:11], s33 offen offset:1024
    s_add_u32 s33, s33, 4096
    s_waitcnt vmcnt(0)""")
    for j in range(4):
        S = sb(0)
        A(f"v_mfma_f32_32x32x16_bf16 v[{S}:{S+15}], v[{FK}:{FK+3}], {q(j,0)}, 0")
        A(f"v_mfma_f32_32x32x16_bf16 v[{S}:{S+15}], v[{FK+4}:{FK+7}], {q(j,1)}, v[{S}:{S+15}]")
        for r in range(0, 16, 2): A(f"v_max3_f32 v{12+j}, v{S+r}, v{S+r+1}, v{12+j}")
    A("""s_sub_u32 s34, s34, 1
    s_cmp_lg_u32 s34, 0
    s_cbranch_scc1 attn_fb_loop""")
    A.fence(8)
    for j in range(4): A(f"v_mov_b32 v{SP+j}, v{12+j}")
    for j in range(4): A(f"v_permlane32_swap_b32 v{12+j}, v{SP+j}")
    for j in range(4): A(f"v_max_f32 v{12+j}, v{12+j}, v{SP+j}")
    A(f"v_and_b32 v{SP}, 31, v0\n v_lshlrev_b32 v{SP}, 2, v{SP}\n v_add_u32 v{SP}, {LDS_MX}, v{SP}")
    for jl in range(4):
        A(f"""s_xor_b32 s23, s3, {jl}
        s_lshl_b32 s23, s23, 7
        v_add_u32 v{SP+4+jl}, s23, v{SP}
        s_lshl_b32 s23, s3, 9
        v_add_u32 v{SP+1}, s23, v{SP+4+jl}
        ds_write_b32 v{SP+1}, v{12+jl}""")
    A("s_waitcnt lgkmcnt(0)\n s_barrier")
    for jl in range(4):
        for w in range(4): A(f"ds_read_b32 v{SP+8+w}, v{SP+4+jl} offset:{512*w}")
        A(f"""s_waitcnt lgkmcnt(0)
        v_max3_f32 v{12+jl}, v{SP+8}, v{SP+9}, v{SP+10}
        v_max_f32 v{12+jl}, v{12+jl}, v{SP+11}""")
    A("s_mov_b32 exec_lo, 0")
    for j in range(4):
        m = 12 + j
        A(f"""v_sub_f32 v{m}, 0, v{m}
        v_and_b32 v{SP}, 0xffff0000, v{m}
        v_sub_f32 v{m}, v{m}, v{SP}
        v_and_b32 v{SP+1}, 0xffff0000, v{m}
        v_sub_f32 v{m}, v{m}, v{SP+1}
        v_lshrrev_b32 v{SP}, 16, v{SP}
        v_or_b32 v{QR+8*j+6}, v{SP}, v{SP+1}
        v_lshrrev_b32 v{QR+8*j+7}, 16, v{m}""")
    A("s_mov_b32 exec_lo, -1\n s_branch attn_main")

def k_gu(A):
    RING = 5
    for L in (0, 1):
        name = f"gu{L}_kernel"
        kstart(A, name)
        A(f"""s_cmp_ge_u32 s2, 256
        s_cbranch_scc1 gu_end
        s_load_dwordx2 s[6:7], s[0:1], 88
        s_mov_b32 s20, {LBASE[L]}
        s_branch gu_body""")
        KERNELS.append((name, 256, 256, RING * 28 * 1024, 512, 256))
    A.label("gu_body")
    A.reset_hz()
    stamp(A, 0)
    XR, WF = 16, 128
    vm = VM(A)
    A(f"""v_lshrrev_b32 v1, 6, v0
    v_and_b32 v2, 63, v0
    v_lshlrev_b32 v6, 4, v2
    v_readfirstlane_b32 s3, v1
    s_and_b32 s16, s2, 7
    s_lshr_b32 s17, s2, 3
    s_and_b32 s18, s16, 1
    s_lshl_b32 s18, s18, 3
    s_and_b32 s19, s17, 7
    s_add_u32 s18, s18, s19
    s_lshr_b32 s16, s16, 1
    s_lshl_b32 s16, s16, 2
    s_lshr_b32 s17, s17, 3
    s_add_u32 s19, s16, s17
    s_lshl_b32 s21, s18, 2
    s_add_u32 s21, s21, s3
    s_mul_i32 s22, s21, {28*1024}
    s_add_u32 s22, s22, s20
    s_add_u32 s22, s22, {XN1_O}
    s_mul_i32 s23, s19, {28*7*1024}
    s_mul_i32 s24, s3, {7*1024}
    s_add_u32 s23, s23, s24
    s_add_u32 s23, s23, {WGU}
    s_mov_b32 s25, s24
    s_waitcnt lgkmcnt(0)""")
    srd(A, 8, 6, 7, WS_BYTES)
    def xload(ks):
        vm.issue(f"buffer_load_dwordx4 v[{XR+4*ks}:{XR+4*ks+3}], v6, s[8:11], s22 offen offset:{1024*(ks&3)}", f"x{ks>>2}")
        if ks & 3 == 3: A("s_add_u32 s22, s22, 4096")
    def dma(p):
        A(f"s_add_u32 m0, s24, {(p % RING) * 28 * 1024}")
        for i in range(4): vm.issue(f"buffer_load_dwordx4 v6, s[8:11], s23 offen offset:{1024*i} lds", f"w{p}")
        A(f"s_add_u32 m0, s24, {(p % RING) * 28 * 1024 + 4096}\n s_add_u32 s26, s23, 4096")
        for i in range(3): vm.issue(f"buffer_load_dwordx4 v6, s[8:11], s26 offen offset:{1024*i} lds", f"w{p}")
        A(f"s_add_u32 s23, s23, {28*1024}")
    for p in range(RING):
        dma(p)
        for ks in range(4*p, 4*p+4): xload(ks)
    for ks in range(4*RING, 28): xload(ks)
    stamp(A, 1)
    def wf(ks, at): b = WF + 28 * (ks & 1) + 4 * at; return f"v[{b}:{b+3}]"
    def rd(ks, at):
        p, kk = ks >> 2, ks & 3
        off = (p % RING) * 28 * 1024 + kk * 7168 + at * 1024
        base = "v6" if off < 65536 else ("v7" if off < 131072 else "v8")
        A(f"ds_read_b128 {wf(ks, at)}, {base} offset:{off & 65535}")
    A("v_add_u32 v7, 0x10000, v6\n v_add_u32 v8, 0x20000, v6")
    vm.wait("w0", "x0")
    A("s_barrier")
    stamp(A, 2)
    for at in range(7): rd(0, at)
    for ks in range(28):
        p = ks >> 2
        nxt = ks + 1
        if nxt < 28 and (nxt & 3) == 0:
            vm.wait(f"w{p+1}", f"x{p+1}")
            A("s_barrier")
            if p + RING - 1 < 7 and p >= 1: dma(p + RING - 1)
        for at in range(7):
            A(f"s_waitcnt lgkmcnt(6)" if nxt < 28 else f"s_waitcnt lgkmcnt({6-at})")
            acc = f"a[{16*at}:{16*at+15}]"
            A(f"v_mfma_f32_32x32x16_bf16 {acc}, {wf(ks, at)}, v[{XR+4*ks}:{XR+4*ks+3}], {'0' if ks == 0 else acc}")
            if nxt < 28: rd(nxt, at)
    stamp(A, 3)
    A(f"""s_mul_i32 s22, s21, {112*1024}
    s_mul_i32 s23, s19, {7*1024}
    s_add_u32 s22, s22, s23
    s_add_u32 s22, s22, s20
    s_add_u32 s22, s22, {H_O}
    s_add_u32 s23, s22, 4096""")
    for at in range(7):
        b = 16 + 16 * at
        for r in range(16): A(f"v_accvgpr_read_b32 v{b+r}, a{16*at+r}")
        for r in range(8): A(f"v_mul_f32 v{b+r}, v{b+r}, v{b+8+r}")
        for p in range(4): A(f"v_cvt_pk_bf16_f32 v{b+8+p}, v{b+2*p}, v{b+2*p+1}")
        A(f"buffer_store_dwordx4 v[{b+8}:{b+11}], v6, s[8:11], s{22 + at//4} offen offset:{1024*(at%4)}")
    stamp(A, 4)
    if STAMPS: A("s_waitcnt vmcnt(0)")
    stamp_flush(A, 3, 8)
    A.label("gu_end")
    A("s_endpgm")

def k_down(A):
    for L in (0, 1):
        name = f"down{L}_kernel"
        kstart(A, name)
        A(f"""s_cmp_ge_u32 s2, 224
        s_cbranch_scc1 down_end
        s_load_dwordx2 s[6:7], s[0:1], 88
        s_load_dwordx2 s[4:5], s[0:1], 72
        s_mov_b32 s20, {LBASE[L]}
        s_waitcnt lgkmcnt(0)""")
        if L == 0:
            A(f"s_add_u32 s4, s6, {LBASE[0] + X2_O}\n s_addc_u32 s5, s7, 0")
        A("s_branch down_body")
        KERNELS.append((name, 224, 256, 49152, 320, 256))
    A.label("down_body")
    A.reset_hz()
    stamp(A, 0)
    srd(A, 12, 4, 5, X_BYTES)
    srd(A, 8, 6, 7, WS_BYTES)
    NB = 14
    FR = 16
    vm = VM(A)
    A(f"""v_lshrrev_b32 v1, 6, v0
    v_and_b32 v2, 63, v0
    v_lshlrev_b32 v6, 4, v2
    v_readfirstlane_b32 s3, v1
    s_and_b32 s16, s2, 7
    s_lshr_b32 s17, s2, 3
    s_lshl_b32 s16, s16, 2
    s_and_b32 s18, s17, 3
    s_add_u32 s16, s16, s18
    s_lshr_b32 s17, s17, 2
    s_and_b32 s18, s3, 1
    s_lshr_b32 s19, s3, 1
    s_lshl_b32 s21, s16, 1
    s_add_u32 s22, s21, s19
    s_xor_b32 s23, s22, 1
    s_mul_i32 s24, s22, {112*1024}
    s_mul_i32 s25, s23, {112*1024}
    s_mul_i32 s26, s3, {28*1024}
    s_add_u32 s26, s26, s20
    s_add_u32 s26, s26, {H_O}
    s_add_u32 s24, s24, s26
    s_add_u32 s25, s25, s26
    s_mul_i32 s26, s17, {112*2*1024}
    s_mul_i32 s27, s3, {28*2*1024}
    s_add_u32 s26, s26, s27
    s_add_u32 s26, s26, {WD}
    s_lshl_b32 s27, s18, 10
    v_add_u32 v7, s27, v6
    v_xor_b32 v8, 1024, v7""")
    def fr(ks, i): b = FR + 16 * (ks % NB) + 4 * i; return f"v[{b}:{b+3}]"
    def load(ks):
        vm.issue(f"buffer_load_dwordx4 {fr(ks,0)}, v7, s[8:11], s26 offen offset:{2048*(ks&1)}", f"k{ks}")
        vm.issue(f"buffer_load_dwordx4 {fr(ks,2)}, v6, s[8:11], s24 offen offset:{1024*(ks&3)}", f"k{ks}")
        vm.issue(f"buffer_load_dwordx4 {fr(ks,1)}, v8, s[8:11], s26 offen offset:{2048*(ks&1)}", f"k{ks}")
        vm.issue(f"buffer_load_dwordx4 {fr(ks,3)}, v6, s[8:11], s25 offen offset:{1024*(ks&3)}", f"k{ks}")
        if ks & 1: A("s_add_u32 s26, s26, 4096")
        if ks & 3 == 3: A("s_add_u32 s24, s24, 4096\n s_add_u32 s25, s25, 4096")
    for ks in range(NB): load(ks)
    A(f"""v_and_b32 v3, 31, v0
    v_bfe_u32 v4, v0, 5, 1
    v_mul_u32_u24 v5, 896, v3
    v_lshl_add_u32 v5, v4, 4, v5
    s_mul_i32 s28, s22, {32*896}
    s_lshl_b32 s29, s17, 7
    s_add_u32 s28, s28, s29
    s_lshl_b32 s29, s18, 6
    s_add_u32 s28, s28, s29
    s_add_u32 s29, s28, s20
    s_add_u32 s29, s29, {X1_O}""")
    vm.issue("buffer_load_dwordx4 v[240:243], v5, s[8:11], s29 offen", "x")
    vm.issue("buffer_load_dwordx4 v[244:247], v5, s[8:11], s29 offen offset:32", "x")
    stamp(A, 1)
    for ks in range(28):
        vm.wait(f"k{ks}")
        if ks == 0: stamp(A, 2)
        for t in range(2):
            for a in range(2):
                lp = a + 2*t
                acc = f"a[{16*lp}:{16*lp+15}]"
                A(f"v_mfma_f32_32x32x16_bf16 {acc}, {fr(ks,a)}, {fr(ks,2+t)}, {'0' if ks == 0 else acc}")
        if ks + NB < 28: load(ks + NB)
    stamp(A, 3)
    for lp in range(1, 4):
        A(f"s_xor_b32 s30, s3, {lp}\n s_mul_i32 s30, s30, 12288\n v_add_u32 v{8+lp}, s30, v6")
    for lp in range(1, 4):
        for rq in range(4):
            r = 16*lp + 4*rq
            A(f"ds_write_b128 v{8+lp}, a[{r}:{r+3}] offset:{(lp-1)*4096 + rq*1024}")
    A(f"""s_mul_i32 s30, s3, 12288
    v_add_u32 v12, s30, v6""")
    for r in range(16): A(f"v_accvgpr_read_b32 v{16+r}, a{r}")
    A("s_waitcnt lgkmcnt(0)\n s_barrier")
    stamp(A, 4)
    for i in range(3):
        for rq in range(4):
            r = 32 + 16*i + 4*rq
            A(f"ds_read_b128 v[{r}:{r+3}], v12 offset:{i*4096 + rq*1024}")
    vm.wait("x")
    for p in range(8):
        A(f"v_lshlrev_b32 v{80+2*p}, 16, v{240+p}\n v_and_b32 v{81+2*p}, 0xffff0000, v{240+p}")
    for r in range(16): A(f"v_add_f32 v{16+r}, v{16+r}, v{80+r}") if False else None
    for i in range(3):
        A(f"s_waitcnt lgkmcnt({8-4*i})")
        for r in range(16): A(f"v_add_f32 v{16+r}, v{16+r}, v{32+16*i+r}")
    for r in range(16): A(f"v_add_f32 v{16+r}, v{16+r}, v{80+r}")
    for p in range(8): A(f"v_cvt_pk_bf16_f32 v{96+p}, v{16+2*p}, v{17+2*p}")
    A("""buffer_store_dwordx4 v[96:99], v5, s[12:15], s28 offen
    buffer_store_dwordx4 v[100:103], v5, s[12:15], s28 offen offset:32""")
    stamp(A, 5)
    if STAMPS: A("s_waitcnt vmcnt(0)")
    stamp_flush(A, 4, 8)
    A.label("down_end")
    A("s_endpgm")

ALL = [k_prep, k_qkv, k_attn, k_gu, k_down]
LAUNCHES = ["prep_kernel", "qkv0_kernel", "attn0_kernel", "gu0_kernel", "down0_kernel",
            "qkv1_kernel", "attn1_kernel", "gu1_kernel", "down1_kernel"]
```

```python
S, D, H, DH, F = 2048, 448, 16, 28, 1792
KB = 1024
WS_BYTES = 268435456
X_BYTES = S * D * 2
WQKV = 0x000000
WO   = 0x080000
WGU  = 0x100000
WD   = 0x420000
LBASE = [0x600000, 0x1600000]
Q_O   = 0x000000
KV_O  = 0x200000
KN_O  = 0x240000
X1_O  = 0x280000
XN1_O = 0x480000
H_O   = 0x680000
X2_O  = 0xD80000
QSCALE = (28.0 ** -0.5) * 1.4426950408889634
def swap23(i): return (i & 3) | ((i & 4) << 1) | ((i & 8) >> 1) | (i & ~15)
```

```python
import sys
sys.path.insert(0, "gen")
import gen
from asm import Asm
A = Asm()
launches = sys.argv[2].split(",") if len(sys.argv) > 2 else None
for f in gen.ALL: f(A)
if launches is None: launches = gen.LAUNCHES
open(sys.argv[1], "w").write(gen.finish(A, launches))
print("nops inserted:", A.nops, "lines:", len(A.lines))
```

```python
import struct, sys
from asm import Asm
from layout import *

def f2u(x): return struct.unpack("<I", struct.pack("<f", x))[0]

KERNELS = []

def kstart(A, name):
    A.raw(f".globl {name}\n.p2align 8\n.type {name},@function\n{name}:")
    A.reset_hz()

import os
STAMPS = bool(int(os.environ.get("STAMPS", "0")))
TS_BASE = 0x8000000
def stamp(A, k):
    if STAMPS:
        if k == 0: A("s_memrealtime s[98:99]")
        A(f"s_memtime s[{80+2*k}:{81+2*k}]")
def stamp_flush(A, kid, ws_srd, n=8):
    if not STAMPS: return
    A(f"s_memtime s[{80+2*(n-1)}:{81+2*(n-1)}]\n s_memrealtime s[100:101]\n s_mov_b64 exec, -1\n s_waitcnt lgkmcnt(0)")
    for k in range(n): A(f"v_writelane_b32 v1, s{80+2*k}, {k}")
    A(f"v_writelane_b32 v1, s98, 8\n v_writelane_b32 v1, s100, 9")
    A(f"""v_and_b32 v2, 63, v0
    v_lshrrev_b32 v3, 6, v0
    v_lshlrev_b32 v2, 2, v2
    v_lshl_add_u32 v2, v3, 6, v2
    s_lshl_b32 s80, s2, 10
    s_add_u32 s80, s80, {TS_BASE + kid * 0x100000}
    s_mov_b64 exec, 0xffff
    buffer_store_dword v1, v2, s[{ws_srd}:{ws_srd+3}], s80 offen""")

def srd(A, d, lo, hi, size):
    A(f"s_mov_b32 s{d}, s{lo}\n s_and_b32 s{d+1}, s{hi}, 0xffff\n s_mov_b32 s{d+2}, {size}\n s_mov_b32 s{d+3}, 0x20000")

def v_swap23(A, dst, src, t):
    A(f"""v_and_b32 v{dst}, 3, v{src}
    v_and_b32 v{t}, 4, v{src}
    v_lshl_or_b32 v{dst}, v{t}, 1, v{dst}
    v_and_b32 v{t}, 8, v{src}
    v_lshrrev_b32 v{t}, 1, v{t}
    v_or_b32 v{dst}, v{dst}, v{t}""")

def k_prep(A):
    name = "prep_kernel"
    kstart(A, name)
    A("""s_cmp_ge_u32 s2, 200
    s_cbranch_scc1 prep_end
    s_load_dwordx8 s[4:11], s[0:1], 8
    s_load_dwordx4 s[12:15], s[0:1], 48
    s_load_dwordx2 s[16:17], s[0:1], 64
    s_load_dwordx2 s[18:19], s[0:1], 88
    v_lshrrev_b32 v1, 6, v0
    v_and_b32 v2, 63, v0
    v_and_b32 v3, 15, v0
    v_bfe_u32 v4, v0, 4, 2
    v_readfirstlane_b32 s3, v1""")
    v_swap23(A, 5, 3, 6)
    A("""v_and_b32 v7, 1, v4
    v_lshrrev_b32 v8, 1, v4
    s_waitcnt lgkmcnt(0)""")
    srd(A, 28, 18, 19, WS_BYTES)
    A("""v_lshlrev_b32 v9, 5, v7
    v_add_u32 v9, v9, v3
    v_lshlrev_b32 v9, 4, v9
    s_mov_b32 s27, 0x20000
    s_mov_b32 s40, 0
    s_cmp_lt_u32 s2, 18
    s_cbranch_scc1 prep_qkv
    s_cmp_lt_u32 s2, 32
    s_cbranch_scc1 prep_wo
    s_cmp_lt_u32 s2, 144
    s_cbranch_scc1 prep_wgu""")
    A(f"""s_sub_u32 s32, s2, 144
    s_mov_b32 s24, s16
    s_and_b32 s25, s17, 0xffff
    s_mov_b32 s26, {F*D*2}
    s_mov_b32 s33, 896
    s_mov_b32 s34, 128
    s_mov_b32 s35, {112*2*1024}
    s_mul_i32 s36, s32, {32*896}
    s_lshl_b32 s37, s3, 5
    s_add_u32 s36, s36, s37
    v_mul_u32_u24 v10, {8*896}, v4
    v_lshl_add_u32 v10, v5, 1, v10
    v_add_u32 v10, s36, v10
    s_lshl_b32 s36, s32, 12
    s_lshr_b32 s37, s3, 1
    s_lshl_b32 s37, s37, 10
    s_add_u32 s36, s36, s37
    s_and_b32 s37, s3, 1
    s_lshl_b32 s37, s37, 8
    s_add_u32 s36, s36, s37
    s_add_u32 s36, s36, {WD}
    v_lshlrev_b32 v11, 11, v8
    v_add3_u32 v11, v11, v9, s36
    s_branch prep_common""")
    A.label("prep_wgu")
    A(f"""s_sub_u32 s32, s2, 32
    s_lshl_b32 s32, s32, 2
    s_add_u32 s32, s32, s3
    s_and_b32 s38, s32, 1
    s_lshr_b32 s32, s32, 1
    s_mul_i32 s39, s32, 4682
    s_lshr_b32 s39, s39, 16
    s_mul_i32 s37, s39, 14
    s_sub_u32 s32, s32, s37
    s_cmp_eq_u32 s38, 0
    s_cselect_b32 s24, s12, s14
    s_cselect_b32 s25, s13, s15
    s_and_b32 s25, s25, 0xffff
    s_mov_b32 s26, {F*D*2}
    s_mov_b32 s33, 3584
    s_mov_b32 s34, 32
    s_mov_b32 s35, 1024
    s_mul_i32 s36, s32, {32*3584}
    s_mul_i32 s37, s39, 224
    s_add_u32 s36, s36, s37
    v_mul_u32_u24 v10, {8*3584}, v4
    v_lshl_add_u32 v10, v5, 1, v10
    v_add_u32 v10, s36, v10
    s_mul_i32 s36, s39, {28*7*1024}
    s_mul_i32 s37, s32, {2*7*1024}
    s_add_u32 s36, s36, s37
    s_lshl_b32 s37, s38, 8
    s_add_u32 s36, s36, s37
    s_add_u32 s36, s36, {WGU}
    v_mul_u32_u24 v11, {7*1024}, v8
    v_add3_u32 v11, v11, v9, s36
    s_branch prep_common""")
    A.label("prep_wo")
    A(f"""s_sub_u32 s32, s2, 18
    s_lshl_b32 s32, s32, 2
    s_add_u32 s32, s32, s3
    s_mul_i32 s39, s32, 4682
    s_lshr_b32 s39, s39, 16
    s_mul_i32 s37, s39, 14
    s_sub_u32 s38, s32, s37
    s_mov_b32 s24, s10
    s_and_b32 s25, s11, 0xffff
    s_mov_b32 s26, {D*D*2}
    s_mov_b32 s33, 896
    s_mov_b32 s34, 32
    s_mov_b32 s35, 1024
    s_mul_i32 s36, s38, {32*896}
    s_mul_i32 s37, s39, 224
    s_add_u32 s36, s36, s37
    v_mul_u32_u24 v10, {8*896}, v4
    v_lshl_add_u32 v10, v3, 1, v10
    v_add_u32 v10, s36, v10
    s_mul_i32 s36, s32, {7*1024}
    s_add_u32 s36, s36, {WO}
    v_lshlrev_b32 v11, 4, v2
    v_add_u32 v11, s36, v11
    s_branch prep_common""")
    A.label("prep_qkv")
    A(f"""s_mov_b32 s40, 1
    s_and_b32 s38, s3, 1
    s_lshr_b32 s39, s3, 1
    s_lshl_b32 s37, s38, 4
    v_add_u32 v12, s37, v5
    s_mov_b32 s41, 1.0
    s_cmp_eq_u32 s2, 17
    s_cbranch_scc1 prep_v
    v_cmp_gt_u32 vcc, 28, v12
    s_cmp_eq_u32 s2, 16
    s_cbranch_scc1 prep_k
    s_mov_b32 s24, s4
    s_and_b32 s25, s5, 0xffff
    s_mov_b32 s26, {D*D*2}
    s_mov_b32 s33, 896
    s_mul_i32 s37, s2, 28
    v_add_u32 v12, s37, v12
    s_mov_b32 s41, {f2u(QSCALE):#x}
    s_branch prep_qkv2""")
    A.label("prep_k")
    A(f"""s_mov_b32 s24, s6
    s_and_b32 s25, s7, 0xffff
    s_mov_b32 s26, {D*DH*2}
    s_mov_b32 s33, 56
    s_branch prep_qkv2""")
    A.label("prep_v")
    A(f"""v_add_u32 v12, s37, v3
    v_and_b32 v13, 3, v12
    v_lshrrev_b32 v14, 3, v12
    v_lshl_add_u32 v13, v14, 2, v13
    v_bfe_u32 v14, v12, 2, 1
    v_mul_u32_u24 v14, 14, v14
    v_cmp_gt_u32 vcc, 14, v13
    v_add_u32 v12, v13, v14
    s_mov_b32 s24, s8
    s_and_b32 s25, s9, 0xffff
    s_mov_b32 s26, {D*DH*2}
    s_mov_b32 s33, 56""")
    A.label("prep_qkv2")
    A.fence(4)
    A(f"""s_lshl_b32 s34, s33, 5
    s_mul_i32 s36, s39, 224
    v_lshlrev_b32 v10, 3, v4
    v_add_u32 v10, s36, v10
    v_mul_lo_u32 v10, v10, s33
    v_lshl_add_u32 v10, v12, 1, v10
    v_mov_b32 v13, 0x7fffff00
    v_cndmask_b32 v10, v13, v10, vcc
    s_mov_b32 s35, 4096
    s_lshr_b32 s36, s2, 1
    s_mul_i32 s36, s36, {28*2*1024}
    s_mul_i32 s37, s39, {7*4096}
    s_add_u32 s36, s36, s37
    s_and_b32 s37, s2, 1
    s_lshl_b32 s37, s37, 10
    s_add_u32 s36, s36, s37
    s_lshl_b32 s37, s38, 8
    s_add_u32 s36, s36, s37
    s_add_u32 s36, s36, {WQKV}
    v_lshlrev_b32 v11, 11, v8
    v_add3_u32 v11, v11, v9, s36""")
    A.label("prep_common")
    A.fence(4)
    A("s_mov_b32 s36, 0")
    R = 16
    for u in range(7):
        A("s_mov_b32 s37, s36")
        for j in range(8):
            A(f"buffer_load_ushort v{R+8*u+j}, v10, s[24:27], s37 offen")
            if j < 7: A("s_add_u32 s37, s37, s33")
        if u < 6: A("s_add_u32 s36, s36, s34")
    A("""s_cmp_eq_u32 s40, 1
    s_cbranch_scc1 prep_center""")
    A("s_mov_b32 s36, 0")
    for u in range(7):
        A(f"s_waitcnt vmcnt({min(63, 48 - 8*u + u)})")
        b = R + 8*u
        for p in range(4):
            A(f"v_lshl_or_b32 v{b+p}, v{b+2*p+1}, 16, v{b+2*p}")
        A(f"buffer_store_dwordx4 v[{b}:{b+3}], v11, s[28:31], s36 offen")
        if u < 6: A("s_add_u32 s36, s36, s35")
    A("s_endpgm")
    A.label("prep_center")
    A.fence(2)
    A("s_waitcnt vmcnt(0)\n v_mov_b32 v12, 0\n v_mov_b32 v13, 0")
    for i in range(56):
        A(f"v_lshlrev_b32 v{R+i}, 16, v{R+i}")
        A(f"v_add_f32 v{12 + (i&1)}, v{12 + (i&1)}, v{R+i}")
    A(f"""v_add_f32 v12, v12, v13
    v_lshlrev_b32 v14, 2, v0
    ds_write_b32 v14, v12
    s_lshl_b32 s37, s38, 8
    v_lshlrev_b32 v14, 2, v3
    v_add_u32 v14, s37, v14
    s_waitcnt lgkmcnt(0)
    s_barrier""")
    for i in range(8):
        A(f"ds_read_b32 v{72+i}, v14 offset:{(i>>2)*512 + (i&3)*64}")
    A("s_waitcnt lgkmcnt(0)")
    for i in range(1, 8):
        A(f"v_add_f32 v72, v72, v{72+i}")
    A(f"v_mul_f32 v72, {f2u(1.0/448):#x}, v72\n s_mov_b32 s36, 0")
    for u in range(7):
        b = R + 8*u
        for j in range(8):
            A(f"v_sub_f32 v{b+j}, v{b+j}, v72")
        for j in range(8):
            A(f"v_mul_f32 v{b+j}, s41, v{b+j}")
        for p in range(4):
            A(f"v_cvt_pk_bf16_f32 v{b+p}, v{b+2*p}, v{b+2*p+1}")
        A(f"buffer_store_dwordx4 v[{b}:{b+3}], v11, s[28:31], s36 offen")
        if u < 6: A("s_add_u32 s36, s36, s35")
    A.label("prep_end")
    A("s_endpgm")
    KERNELS.append((name, 200, 256, 1024, 80, 80))

def finish(A, launches):
    hdr = open("interleave_layers__grouped_kv_mqa__glu_gated_bilinear__prompt.s.ref").read().split("; Override launch")[0]
    kd = {k[0]: k for k in KERNELS}
    for n in launches:
        _, g, b, lds, nv, ao = kd[n]
        hdr += f"; @launch kernel={n} grid=({g},1,1) block=({b},1,1) lds={lds}\n"
    hdr += '.amdgcn_target "amdgcn-amd-amdhsa--gfx950"\n.text\n'
    out = hdr + A.text()
    out += '.section .rodata,"a"\n'
    for (n, g, b, lds, nv, ao) in KERNELS:
        if n not in launches: continue
        out += f""".p2align 6
.amdhsa_kernel {n}
  .amdhsa_next_free_vgpr {nv}
  .amdhsa_next_free_sgpr 102
  .amdhsa_accum_offset {ao}
  .amdhsa_group_segment_fixed_size 0
  .amdhsa_kernarg_size 96
  .amdhsa_user_sgpr_count 2
  .amdhsa_user_sgpr_kernarg_segment_ptr 1
  .amdhsa_system_sgpr_workgroup_id_x 1
.end_amdhsa_kernel
"""
    return out

def k_qkv(A):
    for L in (0, 1):
        name = f"qkv{L}_kernel"
        kstart(A, name)
        A(f"""s_cmp_ge_u32 s2, 288
        s_cbranch_scc1 qkv_end
        s_load_dwordx2 s[4:5], s[0:1], 0
        s_load_dwordx2 s[6:7], s[0:1], 88
        s_mov_b32 s20, {LBASE[L]}
        s_waitcnt lgkmcnt(0)""")
        if L == 1:
            A(f"s_add_u32 s4, s6, {LBASE[0] + X2_O}\n s_addc_u32 s5, s7, 0")
        A("s_branch qkv_body")
        KERNELS.append((name, 288, 256, 64*1024 + 4096 + 512, 192, 192))
    A.label("qkv_body")
    A.reset_hz()
    stamp(A, 0)
    srd(A, 8, 4, 5, X_BYTES)
    srd(A, 12, 6, 7, WS_BYTES)
    XR, WR, AC = 16, 72, 128
    ST = 8
    A(f"""v_lshrrev_b32 v1, 6, v0
    v_and_b32 v2, 63, v0
    v_and_b32 v3, 31, v0
    v_bfe_u32 v4, v0, 5, 1
    v_readfirstlane_b32 s3, v1
    s_and_b32 s16, s2, 7
    s_lshr_b32 s17, s2, 3
    s_and_b32 s18, s17, 3
    s_lshl_b32 s16, s16, 2
    s_add_u32 s16, s16, s18
    s_lshr_b32 s17, s17, 2
    v_mul_u32_u24 v5, 896, v3
    v_lshl_add_u32 v5, v4, 4, v5
    s_mul_i32 s18, s16, {64*896}
    s_mul_i32 s19, s3, 224
    s_add_u32 s18, s18, s19
    s_add_u32 s19, s18, {32*896}
    v_lshlrev_b32 v6, 4, v2
    s_mul_i32 s21, s17, {28*2*1024}
    s_mul_i32 s22, s3, {7*2*1024}
    s_add_u32 s21, s21, s22
    s_add_u32 s21, s21, {WQKV}
    s_add_u32 s22, s21, 4096
    s_add_u32 s23, s21, 8192
    s_add_u32 s24, s21, 12288""")
    for ks in range(7):
        A(f"buffer_load_dwordx4 v[{XR+4*ks}:{XR+4*ks+3}], v5, s[8:11], s18 offen offset:{32*ks}")
        A(f"buffer_load_dwordx4 v[{XR+28+4*ks}:{XR+28+4*ks+3}], v5, s[8:11], s19 offen offset:{32*ks}")
        for a in range(2):
            blk = ks*2 + a
            A(f"buffer_load_dwordx4 v[{WR+28*a+4*ks}:{WR+28*a+4*ks+3}], v6, s[12:15], s{21 + blk//4} offen offset:{(blk%4)*1024}")
    stamp(A, 1)
    A("v_mov_b32 v7, 0x3f803f80")
    for i in range(4): A(f"v_mov_b32 v{ST+i}, 0")
    A("s_cmp_eq_u32 s17, 8\n s_cbranch_scc1 qkv_kvloop")
    def mm(kv):
        for ks in range(7):
            A(f"s_waitcnt vmcnt({24 - 4*ks})")
            if ks == 0: stamp(A, 2)
            if ks == 6: stamp(A, 3)
            for t in range(2):
                x = f"v[{XR+28*t+4*ks}:{XR+28*t+4*ks+3}]"
                for a in range(2):
                    w = f"v[{WR+28*a+4*ks}:{WR+28*a+4*ks+3}]"
                    p = a + 2*t
                    acc = f"v[{AC+16*p}:{AC+16*p+15}]"
                    c = "0" if ks == 0 else acc
                    if kv and a == 1: A(f"v_mfma_f32_32x32x16_bf16 {acc}, {x}, {w}, {c}")
                    else:             A(f"v_mfma_f32_32x32x16_bf16 {acc}, {w}, {x}, {c}")
                    for j in range(2*a, 2*a+2):
                        r = XR+28*t+4*ks+j
                        A(f"v_dot2_f32_bf16 v{ST+2*t}, v{r}, v7, v{ST+2*t}")
                        A(f"v_dot2_f32_bf16 v{ST+2*t+1}, v{r}, v{r}, v{ST+2*t+1}")
    mm(False)
    A("s_branch qkv_red")
    A.label("qkv_kvloop")
    A.reset_hz()
    mm(True)
    A.label("qkv_red")
    A.fence(12)
    stamp(A, 4)
    A(f"""s_lshl_b32 s25, s3, 14
    v_add_u32 v12, s25, v6
    v_lshlrev_b32 v13, 3, v0
    v_add_u32 v13, 65536, v13""")
    A(f"ds_write_b64 v13, v[{ST}:{ST+1}]\n ds_write_b64 v13, v[{ST+2}:{ST+3}] offset:2048")
    for p in range(4):
        for rq in range(4):
            r = AC + 16*p + 4*rq
            A(f"ds_write_b128 v12, v[{r}:{r+3}] offset:{p*4096 + rq*1024}")
    A(f"""s_lshl_b32 s25, s3, 12
    v_add_u32 v12, s25, v6
    s_lshr_b32 s26, s3, 1
    s_lshl_b32 s25, s26, 11
    s_add_u32 s25, s25, 65536
    v_lshlrev_b32 v13, 3, v3
    v_add_u32 v13, s25, v13
    s_waitcnt lgkmcnt(0)
    s_barrier""")
    stamp(A, 5)
    for w in range(4):
        for hf in range(2):
            i = w*2 + hf
            A(f"ds_read_b64 v[{16+2*i}:{17+2*i}], v13 offset:{w*512 + hf*256}")
    for w in range(4):
        for rq in range(4):
            r = 64 + 16*w + 4*rq
            A(f"ds_read_b128 v[{r}:{r+3}], v12 offset:{w*16384 + rq*1024}")
    A("s_waitcnt lgkmcnt(15)")
    for i in range(1, 8):
        A(f"v_add_f32 v16, v16, v{16+2*i}\n v_add_f32 v17, v17, v{17+2*i}")
    A(f"""v_mul_f32 v16, {f2u(1.0/448):#x}, v16
    v_mul_f32 v17, {f2u(1.0/448):#x}, v17
    v_fma_f32 v17, -v16, v16, v17
    v_max_f32 v17, 0, v17
    v_add_f32 v17, {f2u(1e-5):#x}, v17
    v_rsq_f32 v18, v17""")
    A("s_waitcnt lgkmcnt(8)")
    for r in range(16): A(f"v_add_f32 v{64+r}, v{64+r}, v{80+r}")
    A("s_waitcnt lgkmcnt(4)")
    for r in range(16): A(f"v_add_f32 v{64+r}, v{64+r}, v{96+r}")
    A("s_waitcnt lgkmcnt(0)")
    for r in range(16): A(f"v_add_f32 v{64+r}, v{64+r}, v{112+r}")
    A(f"""s_lshl_b32 s27, s16, 1
    s_add_u32 s27, s27, s26
    s_and_b32 s28, s3, 1
    s_cmp_eq_u32 s17, 8
    s_cbranch_scc1 qkv_epi_kv""")
    for r in range(16): A(f"v_mul_f32 v{64+r}, v{64+r}, v18")
    for p in range(8): A(f"v_cvt_pk_bf16_f32 v{32+p}, v{64+2*p}, v{65+2*p}")
    A(f"""s_lshl_b32 s27, s27, 15
    s_lshl_b32 s29, s17, 12
    s_add_u32 s27, s27, s29
    s_lshl_b32 s29, s28, 11
    s_add_u32 s27, s27, s29
    s_add_u32 s27, s27, s20
    buffer_store_dwordx4 v[32:35], v6, s[12:15], s27 offen offset:{Q_O}
    buffer_store_dwordx4 v[36:39], v6, s[12:15], s27 offen offset:{Q_O + 1024}""")
    stamp(A, 6)
    if STAMPS: A("s_waitcnt vmcnt(0)")
    stamp_flush(A, 1, 12)
    A("s_endpgm")
    assert Q_O == 0
    A.label("qkv_epi_kv")
    A.fence(4)
    A(f"""s_lshl_b32 s29, s27, 12
    s_add_u32 s29, s29, s20
    s_add_u32 s29, s29, {KV_O}
    s_cmp_eq_u32 s28, 1
    s_cbranch_scc1 qkv_epi_v""")
    for r in range(16): A(f"v_mul_f32 v{64+r}, v{64+r}, v18")
    for p in range(8): A(f"v_cvt_pk_bf16_f32 v{32+p}, v{64+2*p}, v{65+2*p}")
    A("v_mov_b32 v20, 0")
    for p in range(8): A(f"v_dot2_f32_bf16 v20, v{32+p}, v{32+p}, v20")
    A(f"""v_mov_b32 v21, v20
    s_mov_b32 exec_lo, 0
    v_mov_b32 v38, 0x3f803f80
    v_mov_b32 v39, 0x00003f80
    s_mov_b32 exec_lo, -1
    buffer_store_dwordx4 v[32:35], v6, s[12:15], s29 offen
    buffer_store_dwordx4 v[36:39], v6, s[12:15], s29 offen offset:1024
    v_permlane32_swap_b32 v20, v21
    v_add_f32 v20, v20, v21""")
    A("""v_max_f32_dpp v20, v20, v20 row_shr:1 row_mask:0xf bank_mask:0xf
    v_max_f32_dpp v20, v20, v20 row_shr:2 row_mask:0xf bank_mask:0xf
    v_max_f32_dpp v20, v20, v20 row_shr:4 row_mask:0xf bank_mask:0xf
    v_max_f32_dpp v20, v20, v20 row_shr:8 row_mask:0xf bank_mask:0xf
    v_readlane_b32 s30, v20, 15
    v_readlane_b32 s31, v20, 31
    v_mov_b32 v21, s30
    v_max_f32 v21, s31, v21""")
    A(f"""s_lshl_b32 s27, s27, 2
    s_add_u32 s27, s27, s20
    s_add_u32 s27, s27, {KN_O}
    v_mov_b32 v22, 0
    s_mov_b64 exec, 1
    buffer_store_dword v21, v22, s[12:15], s27 offen
    s_endpgm""")
    A.label("qkv_epi_v")
    A.fence(4)
    A(f"""s_lshl_b32 s30, s3, 7
    s_add_u32 s30, s30, {65536 + 4096}
    v_lshlrev_b32 v20, 2, v3
    v_add_u32 v20, s30, v20
    ds_write_b32 v20, v18
    v_lshlrev_b32 v21, 4, v4
    v_add_u32 v21, s30, v21
    v_and_b32 v22, 27, v3
    v_cmp_eq_u32 vcc, 26, v22
    v_mov_b32 v23, 0
    v_mov_b32 v24, 1.0
    v_cndmask_b32 v23, v23, v24, vcc
    s_waitcnt lgkmcnt(0)""")
    for q in range(4): A(f"ds_read_b128 v[{40+4*q}:{43+4*q}], v21 offset:{32*q}")
    A("s_waitcnt lgkmcnt(0)")
    for r in range(16): A(f"v_fma_f32 v{64+r}, v{64+r}, v{40+r}, v23")
    for p in range(8): A(f"v_cvt_pk_bf16_f32 v{32+p}, v{64+2*p}, v{65+2*p}")
    A(f"""buffer_store_dwordx4 v[32:35], v6, s[12:15], s29 offen offset:2048
    buffer_store_dwordx4 v[36:39], v6, s[12:15], s29 offen offset:3072""")
    A.label("qkv_end")
    A("s_endpgm")

class VM:
    def __init__(self, A): self.A = A; self.ops = []
    def issue(self, text, tag): self.A(text); self.ops.append(tag)
    def wait(self, *tags):
        last = max(i for i, t in enumerate(self.ops) if t in tags)
        n = len(self.ops) - 1 - last
        self.A(f"s_waitcnt vmcnt({min(n, 63)})")

BOUND_T = 45.0
EXP_NOKV = int(os.environ.get("EXP_NOKV", "0"))
EXP_NOWO = int(os.environ.get("EXP_NOWO", "0"))
def k_attn(A):
    OSTR = 912
    LDS_O = 49152
    LDS_ST = LDS_O + 8 * OSTR
    LDS_MX = LDS_ST + 512
    LDS_TOTAL = LDS_MX + 2048
    for L in (0, 1):
        name = f"attn{L}_kernel"
        kstart(A, name)
        A(f"""s_cmp_ge_u32 s2, 256
        s_cbranch_scc1 attn_end
        s_load_dwordx2 s[4:5], s[0:1], 0
        s_load_dwordx2 s[6:7], s[0:1], 88
        s_mov_b32 s20, {LBASE[L]}
        s_waitcnt lgkmcnt(0)""")
        if L == 1:
            A(f"s_add_u32 s4, s6, {LBASE[0] + X2_O}\n s_addc_u32 s5, s7, 0")
        A("s_branch attn_body")
        KERNELS.append((name, 256, 256, LDS_TOTAL, 512, 256))
    A.label("attn_body")
    A.reset_hz()
    stamp(A, 0)
    srd(A, 12, 4, 5, X_BYTES)
    srd(A, 8, 6, 7, WS_BYTES)
    QR, OR_, SR, PR, KVR, XR, SP = 16, 48, 112, 144, 160, 224, 240
    vm = VM(A)
    def q(j, s): return f"v[{QR+8*j+4*s}:{QR+8*j+4*s+3}]"
    def o(j): return f"v[{OR_+16*j}:{OR_+16*j+15}]"
    def sb(t): return SR + 16 * (t & 1)
    def pb(t): return PR + 8 * (t & 1)
    def kv(kt, i): b = KVR + 16 * (kt & 3) + 4 * i; return f"v[{b}:{b+3}]"
    A(f"""v_lshrrev_b32 v1, 6, v0
    v_and_b32 v2, 63, v0
    v_lshlrev_b32 v6, 4, v2
    v_readfirstlane_b32 s3, v1
    v_bfe_u32 v3, v0, 3, 2
    v_bfe_u32 v4, v0, 5, 1
    v_and_b32 v5, 7, v0
    v_lshlrev_b32 v7, 11, v3
    v_lshl_add_u32 v7, v4, 9, v7
    v_lshl_add_u32 v7, v5, 4, v7
    v_lshlrev_b32 v8, 2, v2
    s_lshr_b32 s16, s2, 2
    s_and_b32 s17, s2, 3
    s_lshl_b32 s18, s16, 15
    s_lshl_b32 s19, s17, 7
    s_add_u32 s18, s18, s19
    s_add_u32 s18, s18, s20
    s_add_u32 s19, s20, {KN_O}
    s_lshl_b32 s21, s3, 16
    s_add_u32 s21, s21, s20
    s_add_u32 s21, s21, {KV_O}
    s_mul_i32 s22, s3, {98*1024}
    s_add_u32 s22, s22, {WO}""")
    vm.issue("buffer_load_dword v9, v8, s[8:11], s19 offen", "kn")
    for jl in range(4):
        A(f"s_xor_b32 s23, s3, {jl}\n s_lshl_b32 s23, s23, 13\n s_add_u32 s{24+jl}, s18, s23")
        for s_ in range(2):
            vm.issue(f"buffer_load_dwordx4 {q(jl, s_)}, v7, s[8:11], s{24+jl} offen offset:{1024*s_}", "q")
    def kvload(kt, i):
        vm.issue(f"buffer_load_dwordx4 {kv(kt, i)}, v6, s[8:11], s21 offen offset:{1024*i}", f"kv{kt}")
        if i == 3: A("s_add_u32 s21, s21, 4096")
    A("s_mov_b32 s33, s21")
    for kt in range(3):
        for i in range(4): kvload(kt, i)
    wo_dst = {}
    wo_next = [0]
    def woload(dst):
        idx = wo_next[0]; wo_next[0] += 1
        wo_dst[idx] = dst
        if EXP_NOWO and idx < 80:
            vm.ops.append(f"wo{idx}"); return
        vm.issue(f"buffer_load_dwordx4 {dst}, v6, s[8:11], s22 offen offset:{1024*(idx & 3)}", f"wo{idx}")
        if idx & 3 == 3: A("s_add_u32 s22, s22, 4096")
    A(f"""v_bfe_u32 v10, v0, 4, 2
    v_mul_u32_u24 v11, 896, v5
    v_lshl_add_u32 v11, v10, 3, v11
    s_mul_i32 s28, s2, {8*896}
    s_mul_i32 s29, s3, 224
    s_add_u32 s28, s28, s29""")
    for nt in range(7):
        vm.issue(f"buffer_load_dwordx2 v[{XR+2*nt}:{XR+2*nt+1}], v11, s[12:15], s28 offen offset:{32*nt}", "x")
    for r in range(64): A(f"v_mov_b32 v{OR_+r}, 0")
    for r in range(8): A(f"v_mov_b32 v{pb(1)+r}, 0")
    for r in range(4): A(f"v_mov_b32 v{KVR+48+12+r}, 0")
    for r in range(4): A(f"v_mov_b32 v{sb(1)+12+r}, 0")
    stamp(A, 1)
    vm.wait("kn")
    A("""v_max_f32_dpp v9, v9, v9 row_shr:1 row_mask:0xf bank_mask:0xf
    v_max_f32_dpp v9, v9, v9 row_shr:2 row_mask:0xf bank_mask:0xf
    v_max_f32_dpp v9, v9, v9 row_shr:4 row_mask:0xf bank_mask:0xf
    v_max_f32_dpp v9, v9, v9 row_shr:8 row_mask:0xf bank_mask:0xf
    v_readlane_b32 s30, v9, 15
    v_readlane_b32 s31, v9, 31
    v_readlane_b32 s34, v9, 47
    v_readlane_b32 s35, v9, 63
    v_mov_b32 v9, s30
    v_max_f32 v9, s31, v9
    v_max_f32 v9, s34, v9
    v_max_f32 v9, s35, v9""")
    vm.wait("q")
    for j in range(4): A(f"v_mov_b32 v{12+j}, 0")
    for r in range(8):
        for j in range(4):
            A(f"v_dot2_f32_bf16 v{12+j}, v{QR+8*j+r}, v{QR+8*j+r}, v{12+j}")
    for j in range(4): A(f"v_mov_b32 v{SP+j}, v{12+j}")
    for j in range(4): A(f"v_permlane32_swap_b32 v{12+j}, v{SP+j}")
    for j in range(4): A(f"v_add_f32 v{12+j}, v{12+j}, v{SP+j}")
    for j in range(4): A(f"v_mul_f32 v{12+j}, v{12+j}, v9")
    for j in range(4): A(f"v_sqrt_f32 v{12+j}, v{12+j}")
    for j in range(4): A(f"v_mul_f32 v{12+j}, {f2u(1.01):#x}, v{12+j}")
    A(f"""v_max3_f32 v{SP}, v12, v13, v14
    v_max_f32 v{SP}, v{SP}, v15
    v_mov_b32 v{SP+1}, {f2u(BOUND_T):#x}
    v_cmp_nle_f32 vcc, v{SP}, v{SP+1}
    s_cbranch_vccnz attn_fallback""")
    A("s_mov_b32 exec_lo, 0")
    for j in range(4): A(f"v_cvt_pk_bf16_f32 v{QR+8*j+6}, -v{12+j}, 0")
    A("s_mov_b32 exec_lo, -1")
    A.label("attn_main")
    A.fence(2)
    stamp(A, 2)
    vm.wait("kv0")
    A(f"v_mfma_f32_32x32x16_bf16 v[{sb(0)}:{sb(0)+15}], {kv(0,0)}, {q(0,0)}, 0")
    A(f"v_mfma_f32_32x32x16_bf16 v[{sb(0)}:{sb(0)+15}], {kv(0,1)}, {q(0,1)}, v[{sb(0)}:{sb(0)+15}]")
    NT = 64
    spare_dst = [f"a[{4*i}:{4*i+3}]" for i in range(64)] + [f"v[{SP+4*i}:{SP+4*i+3}]" for i in range(4)]
    def cvt(dst, src): A(f"v_cvt_pk_bf16_f32 v{dst}, v{src}, v{src+1}")
    def exps(base):
        for r in range(4): A(f"v_exp_f32 v{base+r}, v{base+r}")
    for t in range(NT):
        kt, j = t >> 2, t & 3
        t1 = t + 1; kt1, j1 = t1 >> 2, t1 & 3
        tm = t - 1; ktm, jm = (tm >> 2), tm & 3
        S, Sn, Sp, P, Pp = sb(t), sb(t1), sb(tm), pb(t), pb(tm)
        if j == 3 and kt < 15: vm.wait(f"kv{kt+1}")
        cvt(Pp+6, Sp+12); cvt(Pp+7, Sp+14)
        if t1 < NT: A(f"v_mfma_f32_32x32x16_bf16 v[{Sn}:{Sn+15}], {kv(kt1,0)}, {q(j1,0)}, 0")
        exps(S)
        if kt + 3 < 16:
            if EXP_NOKV: vm.ops.append(f"kv{kt+3}")
            else: kvload(kt + 3, j)
        else: woload(kv(kt + 3, j))
        cvt(P+0, S+0); cvt(P+1, S+2)
        if t1 < NT: A(f"v_mfma_f32_32x32x16_bf16 v[{Sn}:{Sn+15}], {kv(kt1,1)}, {q(j1,1)}, v[{Sn}:{Sn+15}]")
        exps(S+4)
        if spare_dst: woload(spare_dst.pop(0))
        cvt(P+2, S+4); cvt(P+3, S+6)
        A(f"v_mfma_f32_32x32x16_bf16 {o(jm)}, {kv(ktm,3)}, v[{Pp+4}:{Pp+7}], {o(jm)}")
        exps(S+8)
        if t < 4 and spare_dst: woload(spare_dst.pop(0))
        cvt(P+4, S+8); cvt(P+5, S+10)
        A(f"v_mfma_f32_32x32x16_bf16 {o(j)}, {kv(kt,2)}, v[{P}:{P+3}], {o(j)}")
        exps(S+12)
    t = NT - 1
    for i in range(8): woload(f"v[{QR+4*i}:{QR+4*i+3}]")
    for i in range(4): woload(f"v[{sb(t+1)+4*i}:{sb(t+1)+4*i+3}]")
    woload(kv(15, 1)); woload(kv(15, 2))
    cvt(pb(t)+6, sb(t)+12); cvt(pb(t)+7, sb(t)+14)
    A(f"v_mfma_f32_32x32x16_bf16 {o(3)}, {kv(15,3)}, v[{pb(t)+4}:{pb(t)+7}], {o(3)}")
    i = 0
    while wo_next[0] < 98:
        woload(f"v[{sb(t)+4*i}:{sb(t)+4*i+3}]"); i += 1
    assert i <= 4
    stamp(A, 3)
    for jl in range(1, 4):
        A(f"s_xor_b32 s23, s3, {jl}\n s_mul_i32 s23, s23, 12288\n v_add_u32 v{11+jl}, s23, v6")
    for jl in range(1, 4):
        for rq in range(4):
            r = OR_ + 16*jl + 4*rq
            A(f"ds_write_b128 v{11+jl}, v[{r}:{r+3}] offset:{(jl-1)*4096 + rq*1024}")
    A(f"""s_mul_i32 s23, s3, 12288
    v_add_u32 v12, s23, v6
    s_waitcnt lgkmcnt(0)
    s_barrier""")
    for i in range(3):
        for rq in range(4):
            r = OR_ + 16*(i+1) + 4*rq
            A(f"ds_read_b128 v[{r}:{r+3}], v12 offset:{i*4096 + rq*1024}")
    A(f"""v_mul_u32_u24 v13, {OSTR}, v5
    v_mul_u32_u24 v14, 56, v3
    v_mul_u32_u24 v15, 28, v4
    v_add3_u32 v13, v13, v14, v15
    s_mul_i32 s23, s3, 224
    s_add_u32 s23, s23, {LDS_O}
    v_add_u32 v13, s23, v13
    v_mul_u32_u24 v14, {OSTR}, v5
    v_lshl_add_u32 v14, v10, 4, v14
    v_add_u32 v14, {LDS_O}, v14""")
    for i in range(3):
        A(f"s_waitcnt lgkmcnt({8 - 4*i})")
        for r in range(15): A(f"v_add_f32 v{OR_+r}, v{OR_+r}, v{OR_+16*(i+1)+r}")
    A(f"v_rcp_f32 v15, v{OR_+14}")
    for r in range(14): A(f"v_mul_f32 v{OR_+r}, v{OR_+r}, v15")
    for p in range(7): cvt(OR_+16+p, OR_+2*p)
    for p in range(3): A(f"ds_write2_b32 v13, v{OR_+16+2*p}, v{OR_+17+2*p} offset0:{2*p} offset1:{2*p+1}")
    A(f"ds_write_b32 v13, v{OR_+22} offset:24\n s_waitcnt lgkmcnt(0)\n s_barrier")
    stamp(A, 4)
    BR = OR_
    for ks in range(14): A(f"ds_read_b128 v[{BR+4*ks}:{BR+4*ks+3}], v14 offset:{64*ks}")
    ACC = [104, 108, PR, PR+4, PR+8, PR+12, KVR+48]
    for ks in range(14):
        A(f"s_waitcnt lgkmcnt({13-ks})")
        for nt in range(7):
            idx = ks*7 + nt
            d = wo_dst[idx]
            if idx == 0 or idx >= 64 or idx % 16 == 0: vm.wait(f"wo{min(idx + (15 if idx < 64 else 0), 97)}", f"wo{idx}")
            acc = f"v[{ACC[nt]}:{ACC[nt]+3}]"
            A(f"v_mfma_f32_16x16x32_bf16 {acc}, {d}, v[{BR+4*ks}:{BR+4*ks+3}], {'0' if ks == 0 else acc}")
    stamp(A, 5)
    X1, PK = 48, 76
    for nt in range(7):
        A(f"""v_lshlrev_b32 v{X1+4*nt}, 16, v{XR+2*nt}
        v_and_b32 v{X1+4*nt+1}, 0xffff0000, v{XR+2*nt}
        v_lshlrev_b32 v{X1+4*nt+2}, 16, v{XR+2*nt+1}
        v_and_b32 v{X1+4*nt+3}, 0xffff0000, v{XR+2*nt+1}""")
    for nt in range(7):
        for r in range(4): A(f"v_add_f32 v{X1+4*nt+r}, v{X1+4*nt+r}, v{ACC[nt]+r}")
    for p in range(14): cvt(PK+p, X1+2*p)
    A("v_mov_b32 v12, 0\n v_mov_b32 v13, 0\n v_mov_b32 v15, 0x3f803f80")
    for p in range(14):
        A(f"v_dot2_f32_bf16 v12, v{PK+p}, v15, v12\n v_dot2_f32_bf16 v13, v{PK+p}, v{PK+p}, v13")
    A(f"""s_add_u32 s29, s28, s20
    s_add_u32 s29, s29, {X1_O}
    s_mov_b32 s36, 0x00ff00ff
    s_mov_b32 s37, 0x00ff00ff
    s_mov_b64 exec, s[36:37]""")
    for nt in range(7):
        A(f"buffer_store_dwordx2 v[{PK+2*nt}:{PK+2*nt+1}], v11, s[8:11], s29 offen offset:{32*nt}")
    A("s_mov_b64 exec, -1")
    A(f"""v_mov_b32 v90, v12
    v_mov_b32 v91, v13
    v_permlane32_swap_b32 v12, v90
    v_permlane32_swap_b32 v13, v91
    v_add_f32 v12, v12, v90
    v_add_f32 v13, v13, v91
    v_mov_b32 v90, v12
    v_mov_b32 v91, v13
    v_permlane16_swap_b32 v12, v90
    v_permlane16_swap_b32 v13, v91
    v_add_f32 v12, v12, v90
    v_add_f32 v13, v13, v91
    v_and_b32 v92, 15, v0
    v_lshlrev_b32 v92, 3, v92
    v_add_u32 v92, {LDS_ST}, v92
    s_lshl_b32 s23, s3, 7
    v_add_u32 v93, s23, v92
    ds_write_b64 v93, v[12:13]""")
    for nt in range(7):
        A(f"""v_lshlrev_b32 v{X1+4*nt}, 16, v{PK+2*nt}
        v_and_b32 v{X1+4*nt+1}, 0xffff0000, v{PK+2*nt}
        v_lshlrev_b32 v{X1+4*nt+2}, 16, v{PK+2*nt+1}
        v_and_b32 v{X1+4*nt+3}, 0xffff0000, v{PK+2*nt+1}""")
    A(f"""v_lshrrev_b32 v94, 1, v10
    v_lshlrev_b32 v94, 9, v94
    v_lshl_add_u32 v94, v5, 4, v94
    v_and_b32 v95, 1, v10
    v_lshl_add_u32 v94, v95, 3, v94
    s_mul_i32 s29, s16, {28*1024}
    s_mul_i32 s23, s3, {7*1024}
    s_add_u32 s29, s29, s23
    s_lshl_b32 s23, s17, 7
    s_add_u32 s29, s29, s23
    s_add_u32 s29, s29, s20
    s_add_u32 s29, s29, {XN1_O}
    s_add_u32 s30, s29, 4096
    s_waitcnt lgkmcnt(0)
    s_barrier""")
    for w in range(4): A(f"ds_read_b64 v[{96+2*w}:{97+2*w}], v92 offset:{128*w}")
    A(f"""s_waitcnt lgkmcnt(0)
    v_add_f32 v96, v96, v98
    v_add_f32 v97, v97, v99
    v_add_f32 v100, v100, v102
    v_add_f32 v101, v101, v103
    v_add_f32 v96, v96, v100
    v_add_f32 v97, v97, v101
    v_mul_f32 v96, {f2u(1.0/448):#x}, v96
    v_mul_f32 v97, {f2u(1.0/448):#x}, v97
    v_fma_f32 v97, -v96, v96, v97
    v_max_f32 v97, 0, v97
    v_add_f32 v97, {f2u(1e-5):#x}, v97
    v_rsq_f32 v97, v97
    v_mul_f32 v96, v96, v97""")
    for r in range(28): A(f"v_fma_f32 v{X1+r}, v{X1+r}, v97, -v96")
    for p in range(14): cvt(104+p if p < 8 else PR+p-8, X1+2*p)
    A("s_mov_b64 exec, s[36:37]")
    for nt in range(7):
        r = 104+2*nt if nt < 4 else PR+2*nt-8
        A(f"buffer_store_dwordx2 v[{r}:{r+1}], v94, s[8:11], s{29 + nt//4} offen offset:{1024*(nt%4)}")
    stamp(A, 6)
    if STAMPS: A("s_waitcnt vmcnt(0)")
    stamp_flush(A, 2, 8)
    A.label("attn_end")
    A("s_endpgm")
    A.label("attn_fallback")
    A.reset_hz()
    A.fence(8)
    FK = SP + 4
    for j in range(4): A(f"v_mov_b32 v{12+j}, 0xff800000")
    A("s_mov_b32 s34, 16")
    A.label("attn_fb_loop")
    A(f"""buffer_load_dwordx4 v[{FK}:{FK+3}], v6, s[8:11], s33 offen
    buffer_load_dwordx4 v[{FK+4}:{FK+7}], v6, s[8:11], s33 offen offset:1024
    s_add_u32 s33, s33, 4096
    s_waitcnt vmcnt(0)""")
    for j in range(4):
        S = sb(0)
        A(f"v_mfma_f32_32x32x16_bf16 v[{S}:{S+15}], v[{FK}:{FK+3}], {q(j,0)}, 0")
        A(f"v_mfma_f32_32x32x16_bf16 v[{S}:{S+15}], v[{FK+4}:{FK+7}], {q(j,1)}, v[{S}:{S+15}]")
        for r in range(0, 16, 2): A(f"v_max3_f32 v{12+j}, v{S+r}, v{S+r+1}, v{12+j}")
    A("""s_sub_u32 s34, s34, 1
    s_cmp_lg_u32 s34, 0
    s_cbranch_scc1 attn_fb_loop""")
    A.fence(8)
    for j in range(4): A(f"v_mov_b32 v{SP+j}, v{12+j}")
    for j in range(4): A(f"v_permlane32_swap_b32 v{12+j}, v{SP+j}")
    for j in range(4): A(f"v_max_f32 v{12+j}, v{12+j}, v{SP+j}")
    A(f"v_and_b32 v{SP}, 31, v0\n v_lshlrev_b32 v{SP}, 2, v{SP}\n v_add_u32 v{SP}, {LDS_MX}, v{SP}")
    for jl in range(4):
        A(f"""s_xor_b32 s23, s3, {jl}
        s_lshl_b32 s23, s23, 7
        v_add_u32 v{SP+4+jl}, s23, v{SP}
        s_lshl_b32 s23, s3, 9
        v_add_u32 v{SP+1}, s23, v{SP+4+jl}
        ds_write_b32 v{SP+1}, v{12+jl}""")
    A("s_waitcnt lgkmcnt(0)\n s_barrier")
    for jl in range(4):
        for w in range(4): A(f"ds_read_b32 v{SP+8+w}, v{SP+4+jl} offset:{512*w}")
        A(f"""s_waitcnt lgkmcnt(0)
        v_max3_f32 v{12+jl}, v{SP+8}, v{SP+9}, v{SP+10}
        v_max_f32 v{12+jl}, v{12+jl}, v{SP+11}""")
    A("s_mov_b32 exec_lo, 0")
    for j in range(4):
        m = 12 + j
        A(f"""v_sub_f32 v{m}, 0, v{m}
        v_and_b32 v{SP}, 0xffff0000, v{m}
        v_sub_f32 v{m}, v{m}, v{SP}
        v_and_b32 v{SP+1}, 0xffff0000, v{m}
        v_sub_f32 v{m}, v{m}, v{SP+1}
        v_lshrrev_b32 v{SP}, 16, v{SP}
        v_or_b32 v{QR+8*j+6}, v{SP}, v{SP+1}
        v_lshrrev_b32 v{QR+8*j+7}, 16, v{m}""")
    A("s_mov_b32 exec_lo, -1\n s_branch attn_main")

def k_gu(A):
    RING = 5
    for L in (0, 1):
        name = f"gu{L}_kernel"
        kstart(A, name)
        A(f"""s_cmp_ge_u32 s2, 256
        s_cbranch_scc1 gu_end
        s_load_dwordx2 s[6:7], s[0:1], 88
        s_mov_b32 s20, {LBASE[L]}
        s_branch gu_body""")
        KERNELS.append((name, 256, 256, RING * 28 * 1024, 512, 256))
    A.label("gu_body")
    A.reset_hz()
    stamp(A, 0)
    XR, WF = 16, 128
    vm = VM(A)
    A(f"""v_lshrrev_b32 v1, 6, v0
    v_and_b32 v2, 63, v0
    v_lshlrev_b32 v6, 4, v2
    v_readfirstlane_b32 s3, v1
    s_and_b32 s16, s2, 7
    s_lshr_b32 s17, s2, 3
    s_and_b32 s18, s16, 1
    s_lshl_b32 s18, s18, 3
    s_and_b32 s19, s17, 7
    s_add_u32 s18, s18, s19
    s_lshr_b32 s16, s16, 1
    s_lshl_b32 s16, s16, 2
    s_lshr_b32 s17, s17, 3
    s_add_u32 s19, s16, s17
    s_lshl_b32 s21, s18, 2
    s_add_u32 s21, s21, s3
    s_mul_i32 s22, s21, {28*1024}
    s_add_u32 s22, s22, s20
    s_add_u32 s22, s22, {XN1_O}
    s_mul_i32 s23, s19, {28*7*1024}
    s_mul_i32 s24, s3, {7*1024}
    s_add_u32 s23, s23, s24
    s_add_u32 s23, s23, {WGU}
    s_mov_b32 s25, s24
    s_waitcnt lgkmcnt(0)""")
    srd(A, 8, 6, 7, WS_BYTES)
    def xload(ks):
        vm.issue(f"buffer_load_dwordx4 v[{XR+4*ks}:{XR+4*ks+3}], v6, s[8:11], s22 offen offset:{1024*(ks&3)}", f"x{ks>>2}")
        if ks & 3 == 3: A("s_add_u32 s22, s22, 4096")
    def dma(p):
        A(f"s_add_u32 m0, s24, {(p % RING) * 28 * 1024}")
        for i in range(4): vm.issue(f"buffer_load_dwordx4 v6, s[8:11], s23 offen offset:{1024*i} lds", f"w{p}")
        A(f"s_add_u32 m0, s24, {(p % RING) * 28 * 1024 + 4096}\n s_add_u32 s26, s23, 4096")
        for i in range(3): vm.issue(f"buffer_load_dwordx4 v6, s[8:11], s26 offen offset:{1024*i} lds", f"w{p}")
        A(f"s_add_u32 s23, s23, {28*1024}")
    for p in range(RING):
        dma(p)
        for ks in range(4*p, 4*p+4): xload(ks)
    for ks in range(4*RING, 28): xload(ks)
    stamp(A, 1)
    def wf(ks, at): b = WF + 28 * (ks & 1) + 4 * at; return f"v[{b}:{b+3}]"
    def rd(ks, at):
        p, kk = ks >> 2, ks & 3
        off = (p % RING) * 28 * 1024 + kk * 7168 + at * 1024
        base = "v6" if off < 65536 else ("v7" if off < 131072 else "v8")
        A(f"ds_read_b128 {wf(ks, at)}, {base} offset:{off & 65535}")
    A("v_add_u32 v7, 0x10000, v6\n v_add_u32 v8, 0x20000, v6")
    vm.wait("w0", "x0")
    A("s_barrier")
    stamp(A, 2)
    for at in range(7): rd(0, at)
    for ks in range(28):
        p = ks >> 2
        nxt = ks + 1
        if nxt < 28 and (nxt & 3) == 0:
            vm.wait(f"w{p+1}", f"x{p+1}")
            A("s_barrier")
            if p + RING - 1 < 7 and p >= 1: dma(p + RING - 1)
        for at in range(7):
            A(f"s_waitcnt lgkmcnt(6)" if nxt < 28 else f"s_waitcnt lgkmcnt({6-at})")
            acc = f"a[{16*at}:{16*at+15}]"
            A(f"v_mfma_f32_32x32x16_bf16 {acc}, {wf(ks, at)}, v[{XR+4*ks}:{XR+4*ks+3}], {'0' if ks == 0 else acc}")
            if nxt < 28: rd(nxt, at)
    stamp(A, 3)
    A(f"""s_mul_i32 s22, s21, {112*1024}
    s_mul_i32 s23, s19, {7*1024}
    s_add_u32 s22, s22, s23
    s_add_u32 s22, s22, s20
    s_add_u32 s22, s22, {H_O}
    s_add_u32 s23, s22, 4096""")
    for at in range(7):
        b = 16 + 16 * at
        for r in range(16): A(f"v_accvgpr_read_b32 v{b+r}, a{16*at+r}")
        for r in range(8): A(f"v_mul_f32 v{b+r}, v{b+r}, v{b+8+r}")
        for p in range(4): A(f"v_cvt_pk_bf16_f32 v{b+8+p}, v{b+2*p}, v{b+2*p+1}")
        A(f"buffer_store_dwordx4 v[{b+8}:{b+11}], v6, s[8:11], s{22 + at//4} offen offset:{1024*(at%4)}")
    stamp(A, 4)
    if STAMPS: A("s_waitcnt vmcnt(0)")
    stamp_flush(A, 3, 8)
    A.label("gu_end")
    A("s_endpgm")

def k_down(A):
    for L in (0, 1):
        name = f"down{L}_kernel"
        kstart(A, name)
        A(f"""s_cmp_ge_u32 s2, 224
        s_cbranch_scc1 down_end
        s_load_dwordx2 s[6:7], s[0:1], 88
        s_load_dwordx2 s[4:5], s[0:1], 72
        s_mov_b32 s20, {LBASE[L]}
        s_waitcnt lgkmcnt(0)""")
        if L == 0:
            A(f"s_add_u32 s4, s6, {LBASE[0] + X2_O}\n s_addc_u32 s5, s7, 0")
        A("s_branch down_body")
        KERNELS.append((name, 224, 256, 49152, 320, 256))
    A.label("down_body")
    A.reset_hz()
    stamp(A, 0)
    srd(A, 12, 4, 5, X_BYTES)
    srd(A, 8, 6, 7, WS_BYTES)
    NB = 14
    FR = 16
    vm = VM(A)
    A(f"""v_lshrrev_b32 v1, 6, v0
    v_and_b32 v2, 63, v0
    v_lshlrev_b32 v6, 4, v2
    v_readfirstlane_b32 s3, v1
    s_and_b32 s16, s2, 7
    s_lshr_b32 s17, s2, 3
    s_lshl_b32 s16, s16, 2
    s_and_b32 s18, s17, 3
    s_add_u32 s16, s16, s18
    s_lshr_b32 s17, s17, 2
    s_and_b32 s18, s3, 1
    s_lshr_b32 s19, s3, 1
    s_lshl_b32 s21, s16, 1
    s_add_u32 s22, s21, s19
    s_xor_b32 s23, s22, 1
    s_mul_i32 s24, s22, {112*1024}
    s_mul_i32 s25, s23, {112*1024}
    s_mul_i32 s26, s3, {28*1024}
    s_add_u32 s26, s26, s20
    s_add_u32 s26, s26, {H_O}
    s_add_u32 s24, s24, s26
    s_add_u32 s25, s25, s26
    s_mul_i32 s26, s17, {112*2*1024}
    s_mul_i32 s27, s3, {28*2*1024}
    s_add_u32 s26, s26, s27
    s_add_u32 s26, s26, {WD}
    s_lshl_b32 s27, s18, 10
    v_add_u32 v7, s27, v6
    v_xor_b32 v8, 1024, v7""")
    def fr(ks, i): b = FR + 16 * (ks % NB) + 4 * i; return f"v[{b}:{b+3}]"
    def load(ks):
        vm.issue(f"buffer_load_dwordx4 {fr(ks,0)}, v7, s[8:11], s26 offen offset:{2048*(ks&1)}", f"k{ks}")
        vm.issue(f"buffer_load_dwordx4 {fr(ks,2)}, v6, s[8:11], s24 offen offset:{1024*(ks&3)}", f"k{ks}")
        vm.issue(f"buffer_load_dwordx4 {fr(ks,1)}, v8, s[8:11], s26 offen offset:{2048*(ks&1)}", f"k{ks}")
        vm.issue(f"buffer_load_dwordx4 {fr(ks,3)}, v6, s[8:11], s25 offen offset:{1024*(ks&3)}", f"k{ks}")
        if ks & 1: A("s_add_u32 s26, s26, 4096")
        if ks & 3 == 3: A("s_add_u32 s24, s24, 4096\n s_add_u32 s25, s25, 4096")
    for ks in range(NB): load(ks)
    A(f"""v_and_b32 v3, 31, v0
    v_bfe_u32 v4, v0, 5, 1
    v_mul_u32_u24 v5, 896, v3
    v_lshl_add_u32 v5, v4, 4, v5
    s_mul_i32 s28, s22, {32*896}
    s_lshl_b32 s29, s17, 7
    s_add_u32 s28, s28, s29
    s_lshl_b32 s29, s18, 6
    s_add_u32 s28, s28, s29
    s_add_u32 s29, s28, s20
    s_add_u32 s29, s29, {X1_O}""")
    vm.issue("buffer_load_dwordx4 v[240:243], v5, s[8:11], s29 offen", "x")
    vm.issue("buffer_load_dwordx4 v[244:247], v5, s[8:11], s29 offen offset:32", "x")
    stamp(A, 1)
    for ks in range(28):
        vm.wait(f"k{ks}")
        if ks == 0: stamp(A, 2)
        for t in range(2):
            for a in range(2):
                lp = a + 2*t
                acc = f"a[{16*lp}:{16*lp+15}]"
                A(f"v_mfma_f32_32x32x16_bf16 {acc}, {fr(ks,a)}, {fr(ks,2+t)}, {'0' if ks == 0 else acc}")
        if ks + NB < 28: load(ks + NB)
    stamp(A, 3)
    for lp in range(1, 4):
        A(f"s_xor_b32 s30, s3, {lp}\n s_mul_i32 s30, s30, 12288\n v_add_u32 v{8+lp}, s30, v6")
    for lp in range(1, 4):
        for rq in range(4):
            r = 16*lp + 4*rq
            A(f"ds_write_b128 v{8+lp}, a[{r}:{r+3}] offset:{(lp-1)*4096 + rq*1024}")
    A(f"""s_mul_i32 s30, s3, 12288
    v_add_u32 v12, s30, v6""")
    for r in range(16): A(f"v_accvgpr_read_b32 v{16+r}, a{r}")
    A("s_waitcnt lgkmcnt(0)\n s_barrier")
    stamp(A, 4)
    for i in range(3):
        for rq in range(4):
            r = 32 + 16*i + 4*rq
            A(f"ds_read_b128 v[{r}:{r+3}], v12 offset:{i*4096 + rq*1024}")
    vm.wait("x")
    for p in range(8):
        A(f"v_lshlrev_b32 v{80+2*p}, 16, v{240+p}\n v_and_b32 v{81+2*p}, 0xffff0000, v{240+p}")
    for r in range(16): A(f"v_add_f32 v{16+r}, v{16+r}, v{80+r}") if False else None
    for i in range(3):
        A(f"s_waitcnt lgkmcnt({8-4*i})")
        for r in range(16): A(f"v_add_f32 v{16+r}, v{16+r}, v{32+16*i+r}")
    for r in range(16): A(f"v_add_f32 v{16+r}, v{16+r}, v{80+r}")
    for p in range(8): A(f"v_cvt_pk_bf16_f32 v{96+p}, v{16+2*p}, v{17+2*p}")
    A("""buffer_store_dwordx4 v[96:99], v5, s[12:15], s28 offen
    buffer_store_dwordx4 v[100:103], v5, s[12:15], s28 offen offset:32""")
    stamp(A, 5)
    if STAMPS: A("s_waitcnt vmcnt(0)")
    stamp_flush(A, 4, 8)
    A.label("down_end")
    A("s_endpgm")

def k_nop(A):
    kstart(A, "nop_kernel")
    A("s_endpgm")
    KERNELS.append(("nop_kernel", 256, 256, 0, 64, 64))

ALL = [k_prep, k_qkv, k_attn, k_gu, k_down, k_nop]
LAUNCHES = ["prep_kernel", "qkv0_kernel", "attn0_kernel", "gu0_kernel", "down0_kernel",
            "qkv1_kernel", "attn1_kernel", "gu1_kernel", "down1_kernel"]
```

```python
import re

TRANS = ("v_exp_f32", "v_log_f32", "v_rcp_f32", "v_rsq_f32", "v_sqrt_f32", "v_sin_f32", "v_cos_f32",
         "v_exp_f16", "v_log_f16", "v_rcp_f16", "v_rsq_f16", "v_sqrt_f16", "v_rcp_iflag_f32")

_reg_re = re.compile(r"\b([vas])\[(\d+):(\d+)\]|\b([vas])(\d+)\b|\b(vcc|exec|m0|scc)(_lo|_hi)?\b")

def regs_of(op):
    out = []
    for m in _reg_re.finditer(op):
        if m.group(1):
            out += [f"{m.group(1)}{i}" for i in range(int(m.group(2)), int(m.group(3)) + 1)]
        elif m.group(4):
            out.append(f"{m.group(4)}{m.group(5)}")
        else:
            out.append(m.group(6))
    return out

def split_ops(s):
    ops, depth, cur = [], 0, ""
    for ch in s:
        if ch == "[": depth += 1
        if ch == "]": depth -= 1
        if ch == "," and depth == 0:
            ops.append(cur.strip()); cur = ""
        else:
            cur += ch
    if cur.strip(): ops.append(cur.strip())
    return ops

def mfma_passes(mn):
    if "32x32x16" in mn or "32x32x8" in mn: return 8
    if "16x16x32" in mn or "16x16x16" in mn: return 4
    raise ValueError(mn)

class Ins:
    __slots__ = ("text", "mn", "cls", "rd", "wr", "srcC", "srcAB", "passes", "states", "wide_store", "dpp", "lanesel", "sdwa")
    def __init__(self, text):
        self.text = text
        t = text.split(";")[0].strip()
        parts = t.split(None, 1)
        mn = parts[0]; rest = parts[1] if len(parts) > 1 else ""
        self.mn = mn
        self.rd, self.wr, self.srcC, self.srcAB = [], [], [], []
        self.passes = 0; self.states = 1; self.wide_store = False; self.dpp = False; self.lanesel = []; self.sdwa = False
        ops = split_ops(rest)
        mods = ""
        if ops:
            last = ops[-1].split()
            if len(last) > 1:
                ops[-1] = last[0]; mods = " ".join(last[1:])
        base = mn.replace("_e32", "").replace("_e64", "")
        if mn.startswith("v_mfma"):
            self.cls = "mfma"; self.passes = mfma_passes(mn)
            self.wr = regs_of(ops[0]); self.srcAB = regs_of(ops[1]) + regs_of(ops[2]); self.srcC = regs_of(ops[3])
            self.rd = self.srcAB + self.srcC
        elif mn.startswith("v_"):
            self.cls = "trans" if base in TRANS else "valu"
            if "dpp" in mn or "row_" in mods or "quad_perm" in mods or "wave_" in mods: self.dpp = True
            if "sdwa" in mn or "dst_sel" in mods or "op_sel" in mods: self.sdwa = True
            if base.startswith("v_cmp"):
                self.wr = regs_of(ops[0]); self.rd = sum((regs_of(o) for o in ops[1:]), [])
                if base.startswith("v_cmpx"): self.wr.append("exec")
            elif base in ("v_readfirstlane_b32", "v_readlane_b32"):
                self.wr = regs_of(ops[0]); self.rd = sum((regs_of(o) for o in ops[1:]), [])
                if base == "v_readlane_b32": self.lanesel = regs_of(ops[2])
            elif base == "v_writelane_b32":
                self.wr = regs_of(ops[0]); self.rd = sum((regs_of(o) for o in ops), []); self.lanesel = regs_of(ops[2])
            elif base.startswith("v_permlane") and "swap" in base:
                self.wr = regs_of(ops[0]) + regs_of(ops[1]); self.rd = list(self.wr)
            elif base in ("v_add_co_u32", "v_sub_co_u32", "v_addc_co_u32", "v_subb_co_u32", "v_subrev_co_u32", "v_div_scale_f32", "v_mad_u64_u32"):
                self.wr = regs_of(ops[0]) + regs_of(ops[1]); self.rd = sum((regs_of(o) for o in ops[2:]), [])
            elif base == "v_nop":
                pass
            else:
                self.wr = regs_of(ops[0]); self.rd = sum((regs_of(o) for o in ops[1:]), [])
                if base in ("v_fmac_f32", "v_dot2c_f32_bf16", "v_pk_fmac_f16", "v_fmac_f16") or self.dpp or self.sdwa:
                    self.rd += self.wr
                if base == "v_cndmask_b32" and len(ops) == 3: self.rd.append("vcc")
        elif mn.startswith("buffer_") or mn.startswith("global_") or mn.startswith("flat_"):
            self.cls = "vmem"
            is_lds = " lds" in (" " + mods) or "_lds_" in mn
            allr = [regs_of(o) for o in ops]
            if "store" in mn or ("atomic" in mn):
                self.rd = sum(allr, [])
                if "atomic" in mn and "sc0" in mods:
                    self.wr = allr[0]
                if "x3" in mn or "x4" in mn:
                    self.wide_store = True
                    self.srcC = allr[0] if mn.startswith("buffer_") else allr[1]
            elif mn.startswith("buffer_wbl2") or mn.startswith("buffer_inv"):
                pass
            elif is_lds:
                self.rd = sum(allr, []) + ["m0"]
            else:
                self.wr = allr[0]; self.rd = sum(allr[1:], [])
                if "d16" in mn: self.rd += allr[0]
        elif mn.startswith("ds_"):
            self.cls = "ds"
            allr = [regs_of(o) for o in ops]
            if mn.startswith("ds_write") or mn.startswith("ds_add") or mn.startswith("ds_max"):
                self.rd = sum(allr, [])
            else:
                self.wr = allr[0]; self.rd = sum(allr[1:], [])
        elif mn.startswith("s_"):
            self.cls = "salu"
            if mn == "s_nop":
                self.states = int(ops[0], 0) + 1
            elif mn.startswith("s_cmp") or mn.startswith("s_bitcmp") or mn in ("s_waitcnt", "s_barrier", "s_endpgm", "s_branch", "s_setprio", "s_sleep") or mn.startswith("s_cbranch"):
                self.rd = sum((regs_of(o) for o in ops), [])
            else:
                if ops:
                    self.wr = regs_of(ops[0]); self.rd = sum((regs_of(o) for o in ops[1:]), [])
                if "saveexec" in mn: self.wr.append("exec")
        else:
            raise ValueError("unknown instr " + text)

class Hazard:
    def __init__(self):
        self.hist = []
        self.pos = 0
    def need(self, c):
        need = 0
        crd, cwr = set(c.rd), set(c.wr)
        for p, ppos in self.hist:
            dist = self.pos - ppos - p.states
            req = 0
            pwr = set(p.wr)
            pv = p.cls in ("valu", "trans")
            cv = c.cls in ("valu", "trans")
            if pv:
                vw = {r for r in pwr if r[0] in "va" and r != "vcc"}
                sw = {r for r in pwr if r[0] == "s" or r == "vcc"}
                if c.cls == "mfma" and vw & crd: req = max(req, 2)
                if c.cls == "mfma" and "exec" in pwr: req = max(req, 4)
                if p.cls == "trans" and c.cls == "valu" and vw & crd: req = max(req, 1)
                if p.sdwa and cv and vw & (crd | cwr): req = max(req, 1)
                if cv and sw & crd: req = max(req, 2)
                if cv and sw & set(c.lanesel): req = max(req, 4)
                if c.cls == "vmem" and sw & crd: req = max(req, 5)
                if c.mn.startswith("v_readlane") or c.mn.startswith("v_readfirstlane"):
                    if vw & crd: req = max(req, 1)
                if c.mn.startswith("v_permlane") and vw & crd: req = max(req, 2)
                if c.dpp and vw & crd: req = max(req, 2)
                if "exec" in pwr and (c.dpp): req = max(req, 5)
                if "exec" in pwr and (c.mn.startswith("v_read") or c.mn.startswith("v_writelane") or c.mn.startswith("v_permlane")): req = max(req, 4)
                if c.cls == "salu" and sw & crd: req = max(req, 1)
                if p.mn.startswith("v_dot"):
                    if c.mn == p.mn:
                        if vw & set(c.rd[:-1]): req = max(req, 3) if not (vw & set(c.rd[-1:]) and not (vw & set(c.rd[:-1]))) else req
                    elif vw & (crd | cwr): req = max(req, 3)
            if p.cls == "mfma":
                P = p.passes
                if c.cls == "mfma":
                    if pwr & set(c.srcAB): req = max(req, P + 4)
                    if pwr & set(c.srcC):
                        if not (p.wr == c.srcC and P == c.passes): req = max(req, P + 2)
                    elif pwr & cwr: req = max(req, P + 2)
                elif cv:
                    if pwr & (crd | cwr): req = max(req, P + 4)
                    if set(p.srcC) & cwr: req = max(req, P - 1)
                elif c.cls in ("vmem", "ds"):
                    if pwr & (crd | cwr): req = max(req, P + 4)
            if p.wide_store and set(p.srcC) & cwr:
                req = max(req, 2 if cv else 1)
            if p.cls == "salu" and "m0" in pwr and "m0" in crd and c.cls in ("vmem", "ds"): req = max(req, 1)
            if req > dist: need = max(need, req - dist)
        return need
    def push(self, c):
        self.hist.append((c, self.pos))
        self.pos += c.states
        while self.hist and self.pos - self.hist[0][1] > 40: self.hist.pop(0)

class Asm:
    def __init__(self):
        self.lines = []
        self.hz = Hazard()
        self.nops = 0
        self.rec = None
    def raw(self, s): self.lines.append(s)
    def comment(self, s): self.lines.append("    ; " + s)
    def label(self, name):
        self.lines.append(name + ":")
    def __call__(self, text):
        for t in text.strip().split("\n"):
            t = t.strip()
            if not t or t.startswith(";"): continue
            if t.endswith(":"): self.label(t[:-1]); continue
            ins = Ins(t)
            n = self.hz.need(ins)
            while n > 0:
                k = min(n, 16)
                nop = Ins(f"s_nop {k-1}")
                self.lines.append(f"    s_nop {k-1}"); self.hz.push(nop); self.nops += 1
                if self.rec is not None: self.rec.append(nop)
                n -= k
            self.lines.append("    " + t)
            self.hz.push(ins)
            if self.rec is not None: self.rec.append(ins)
    def fence(self, states=16):
        self(f"s_nop {states-1}")
    def loop_begin(self, name):
        self.label(name); self.rec = []
    def loop_end_check(self):
        body = self.rec; self.rec = None
        hz = Hazard()
        for ins in body: hz.push(ins)
        for i, ins in enumerate(body):
            n = hz.need(ins)
            assert n == 0, f"loop back-edge hazard: {ins.text} needs {n} more states (body idx {i})"
            hz.push(ins)
    def reset_hz(self):
        self.hz = Hazard()
    def text(self): return "\n".join(self.lines) + "\n"
```

```python
import struct, sys, os
from asm import Asm
from layout import *
import gen as G
from gen import f2u, kstart, srd, v_swap23, VM, STAMPS, KERNELS, finish
SNAMES = []
def st(A, name):
    if not STAMPS: return
    if name not in SNAMES: SNAMES.append(name)
    k = SNAMES.index(name)
    assert k < 25
    if k == 0: A("s_memrealtime s[98:99]")
    A(f"s_memtime s[{46+2*k}:{47+2*k}]")

BOUND_T = 45.0
SPIN_LIMIT = 200000

def k_prep(A):
    name = "prep_kernel"
    kstart(A, name)
    A("""s_cmp_ge_u32 s2, 264
    s_cbranch_scc1 prep_end
    s_load_dwordx8 s[4:11], s[0:1], 8
    s_load_dwordx4 s[12:15], s[0:1], 48
    s_load_dwordx2 s[16:17], s[0:1], 64
    s_load_dwordx2 s[18:19], s[0:1], 88
    s_load_dwordx2 s[44:45], s[0:1], 0
    v_lshrrev_b32 v1, 6, v0
    v_and_b32 v2, 63, v0
    v_and_b32 v3, 15, v0
    v_bfe_u32 v4, v0, 4, 2
    v_readfirstlane_b32 s3, v1""")
    if int(os.environ.get("CPF", "1")):
        A.raw("""    s_getpc_b64 s[46:47]
cpf_pc:
    s_add_u32 s46, s46, main0_kernel - cpf_pc
    s_addc_u32 s47, s47, 0
    s_lshr_b32 s48, s2, 3
    s_lshl_b32 s48, s48, 2
    s_add_u32 s48, s48, s3
    s_lshl_b32 s48, s48, 8
    v_lshlrev_b32 v78, 2, v2
    v_add_u32 v78, s48, v78
    v_min_u32 v78, code_end - main0_kernel - 4, v78
    global_load_dword v79, v78, s[46:47]""")
    v_swap23(A, 5, 3, 6)
    A("""v_and_b32 v7, 1, v4
    v_lshrrev_b32 v8, 1, v4
    s_waitcnt lgkmcnt(0)""")
    srd(A, 28, 18, 19, WS_BYTES)
    A("""v_lshlrev_b32 v9, 5, v7
    v_add_u32 v9, v9, v3
    v_lshlrev_b32 v9, 4, v9
    s_mov_b32 s27, 0x20000
    s_mov_b32 s40, 0
    s_and_b32 s38, s3, 1
    s_lshr_b32 s39, s3, 1
    s_cmp_lt_u32 s2, 112
    s_cbranch_scc1 prep_wgu
    s_cmp_lt_u32 s2, 130
    s_cbranch_scc1 prep_qkv
    s_cmp_lt_u32 s2, 144
    s_cbranch_scc1 prep_wo
    s_cmp_ge_u32 s2, 200
    s_cbranch_scc1 prep_x""")
    A(f"""s_sub_u32 s32, s2, 144
    s_mov_b32 s24, s16
    s_and_b32 s25, s17, 0xffff
    s_mov_b32 s26, {F*D*2}
    s_mov_b32 s33, 896
    s_mov_b32 s34, 128
    s_mov_b32 s35, {112*2*1024}
    s_mul_i32 s36, s32, {32*896}
    s_lshl_b32 s37, s3, 5
    s_add_u32 s36, s36, s37
    v_mul_u32_u24 v10, {8*896}, v4
    v_lshl_add_u32 v10, v5, 1, v10
    v_add_u32 v10, s36, v10
    s_lshl_b32 s36, s32, 12
    s_lshl_b32 s37, s39, 10
    s_add_u32 s36, s36, s37
    s_lshl_b32 s37, s38, 8
    s_add_u32 s36, s36, s37
    s_add_u32 s36, s36, {WD}
    v_lshlrev_b32 v11, 11, v8
    v_add3_u32 v11, v11, v9, s36
    s_branch prep_common""")
    A.label("prep_wo")
    A(f"""s_sub_u32 s32, s2, 130
    s_lshl_b32 s32, s32, 2
    s_add_u32 s32, s32, s3
    s_mul_i32 s42, s32, 4682
    s_lshr_b32 s42, s42, 16
    s_mul_i32 s37, s42, 14
    s_sub_u32 s43, s32, s37
    s_mov_b32 s24, s10
    s_and_b32 s25, s11, 0xffff
    s_mov_b32 s26, {D*D*2}
    s_mov_b32 s33, 896
    s_mov_b32 s34, 32
    s_mov_b32 s35, 1024
    s_mul_i32 s36, s43, {32*896}
    s_mul_i32 s37, s42, 224
    s_add_u32 s36, s36, s37
    v_mul_u32_u24 v10, {8*896}, v4
    v_lshl_add_u32 v10, v3, 1, v10
    v_add_u32 v10, s36, v10
    s_mul_i32 s36, s32, {7*1024}
    s_add_u32 s36, s36, {WO}
    v_lshlrev_b32 v11, 4, v2
    v_add_u32 v11, s36, v11
    s_branch prep_common""")
    A.label("prep_x")
    A(f"""s_sub_u32 s32, s2, 200
    s_mov_b32 s24, s44
    s_and_b32 s25, s45, 0xffff
    s_mov_b32 s26, {X_BYTES}
    v_and_b32 v10, 31, v0
    v_mul_u32_u24 v10, 896, v10
    v_bfe_u32 v11, v0, 5, 1
    v_lshl_add_u32 v10, v11, 4, v10
    s_mul_i32 s36, s32, {32*896}
    s_mul_i32 s37, s3, 224
    s_add_u32 s36, s36, s37
    v_lshlrev_b32 v11, 4, v2
    s_mul_i32 s33, s32, {28*1024}
    s_mul_i32 s37, s3, {7*1024}
    s_add_u32 s33, s33, s37
    s_add_u32 s33, s33, {X0}
    s_add_u32 s34, s33, 4096""")
    for u in range(7): A(f"buffer_load_dwordx4 v[{16+4*u}:{19+4*u}], v10, s[24:27], s36 offen offset:{32*u}")
    A(f"""s_cmp_ge_u32 s32, 20
    s_cbranch_scc1 prep_x2
    v_mov_b32 v60, 0
    v_mov_b32 v61, 0
    v_mov_b32 v62, 0
    v_mov_b32 v63, 0
    v_lshlrev_b32 v12, 4, v0
    s_lshl_b32 s37, s32, 12
    s_add_u32 s37, s37, {FL}
    buffer_store_dwordx4 v[60:63], v12, s[28:31], s37 offen""")
    A.label("prep_x2")
    A("v_mov_b32 v12, 0\n v_mov_b32 v13, 0\n v_mov_b32 v14, 0\n v_mov_b32 v15, 0\n v_mov_b32 v9, 0x3f803f80\n s_waitcnt vmcnt(0)")
    for u in range(7): A(f"buffer_store_dwordx4 v[{16+4*u}:{19+4*u}], v11, s[28:31], s{33 + u//4} offen offset:{1024*(u%4)}")
    for i in range(28):
        A(f"v_dot2_f32_bf16 v{12+2*(i&1)}, v{16+i}, v9, v{12+2*(i&1)}\n v_dot2_f32_bf16 v{13+2*(i&1)}, v{16+i}, v{16+i}, v{13+2*(i&1)}")
    A(f"""v_add_f32 v12, v12, v14
    v_add_f32 v13, v13, v15
    v_mov_b32 v14, v12
    v_mov_b32 v15, v13
    v_permlane32_swap_b32 v12, v14
    v_permlane32_swap_b32 v13, v15
    v_add_f32 v12, v12, v14
    v_add_f32 v13, v13, v15
    v_mov_b32 v14, 0
    v_mov_b32 v15, 0
    v_and_b32 v10, 31, v0
    v_lshlrev_b32 v10, 7, v10
    s_lshl_b32 s36, s32, 12
    s_lshl_b32 s37, s3, 3
    s_add_u32 s36, s36, s37
    s_add_u32 s36, s36, {ST2}
    s_mov_b32 exec_hi, 0
    buffer_store_dwordx2 v[12:13], v10, s[28:31], s36 offen
    buffer_store_dwordx2 v[14:15], v10, s[28:31], s36 offen offset:32
    buffer_store_dwordx2 v[14:15], v10, s[28:31], s36 offen offset:64
    buffer_store_dwordx2 v[14:15], v10, s[28:31], s36 offen offset:96
    s_endpgm""")
    A.label("prep_wgu")
    A(f"""s_mov_b32 s40, 1
    s_mov_b32 s41, 1.0
    s_mul_i32 s42, s2, 9363
    s_lshr_b32 s42, s42, 16
    s_mul_i32 s37, s42, 7
    s_sub_u32 s43, s2, s37
    s_cmp_eq_u32 s38, 0
    s_cselect_b32 s24, s12, s14
    s_cselect_b32 s25, s13, s15
    s_and_b32 s25, s25, 0xffff
    s_mov_b32 s26, {F*D*2}
    s_mov_b32 s33, 3584
    s_lshl_b32 s37, s2, 4
    v_add_u32 v12, s37, v5
    s_mov_b64 vcc, -1
    s_mov_b32 s35, {14*1024}
    s_mul_i32 s36, s42, {28*7*1024}
    s_lshl_b32 s37, s43, 10
    s_add_u32 s36, s36, s37
    s_mul_i32 s37, s39, {7*14*1024}
    s_add_u32 s36, s36, s37
    s_add_u32 s36, s36, {WGU}
    v_mul_u32_u24 v11, {7*1024}, v8
    s_branch prep_c2""")
    A.label("prep_qkv")
    A(f"""s_mov_b32 s40, 1
    s_sub_u32 s32, s2, 112
    s_lshl_b32 s37, s38, 4
    v_add_u32 v12, s37, v5
    s_mov_b32 s41, 1.0
    s_cmp_eq_u32 s32, 17
    s_cbranch_scc1 prep_v
    v_cmp_gt_u32 vcc, 28, v12
    s_cmp_eq_u32 s32, 16
    s_cbranch_scc1 prep_k
    s_mov_b32 s24, s4
    s_and_b32 s25, s5, 0xffff
    s_mov_b32 s26, {D*D*2}
    s_mov_b32 s33, 896
    s_mul_i32 s37, s32, 28
    v_add_u32 v12, s37, v12
    s_mov_b32 s41, {f2u(QSCALE):#x}
    s_branch prep_qkv2""")
    A.label("prep_k")
    A(f"""s_mov_b32 s24, s6
    s_and_b32 s25, s7, 0xffff
    s_mov_b32 s26, {D*DH*2}
    s_mov_b32 s33, 56
    s_branch prep_qkv2""")
    A.label("prep_v")
    A(f"""v_add_u32 v12, s37, v3
    v_and_b32 v13, 3, v12
    v_lshrrev_b32 v14, 3, v12
    v_lshl_add_u32 v13, v14, 2, v13
    v_bfe_u32 v14, v12, 2, 1
    v_mul_u32_u24 v14, 14, v14
    v_cmp_gt_u32 vcc, 14, v13
    v_add_u32 v12, v13, v14
    s_mov_b32 s24, s8
    s_and_b32 s25, s9, 0xffff
    s_mov_b32 s26, {D*DH*2}
    s_mov_b32 s33, 56""")
    A.label("prep_qkv2")
    A(f"""s_mov_b32 s35, 2048
    s_mul_i32 s36, s32, {28*1024}
    s_mul_i32 s37, s39, {14*1024}
    s_add_u32 s36, s36, s37
    s_add_u32 s36, s36, {WQKV}
    v_lshlrev_b32 v11, 10, v8""")
    A.label("prep_c2")
    A.fence(4)
    A(f"""s_lshl_b32 s37, s38, 8
    s_add_u32 s36, s36, s37
    v_add3_u32 v11, v11, v9, s36
    s_lshl_b32 s34, s33, 5
    s_mul_i32 s36, s39, 224
    v_lshlrev_b32 v10, 3, v4
    v_add_u32 v10, s36, v10
    v_mul_lo_u32 v10, v10, s33
    v_lshl_add_u32 v10, v12, 1, v10
    v_mov_b32 v13, 0x7fffff00
    v_cndmask_b32 v10, v13, v10, vcc""")
    A.label("prep_common")
    A.fence(4)
    A("s_mov_b32 s36, 0")
    R = 16
    for u in range(7):
        A("s_mov_b32 s37, s36")
        for j in range(8):
            A(f"buffer_load_ushort v{R+8*u+j}, v10, s[24:27], s37 offen")
            if j < 7: A("s_add_u32 s37, s37, s33")
        if u < 6: A("s_add_u32 s36, s36, s34")
    A("""s_cmp_eq_u32 s40, 1
    s_cbranch_scc1 prep_center""")
    A("s_mov_b32 s36, 0")
    for u in range(7):
        A(f"s_waitcnt vmcnt({min(63, 48 - 8*u + u)})")
        b = R + 8*u
        for p in range(4):
            A(f"v_lshl_or_b32 v{b+p}, v{b+2*p+1}, 16, v{b+2*p}")
        A(f"buffer_store_dwordx4 v[{b}:{b+3}], v11, s[28:31], s36 offen")
        if u < 6: A("s_add_u32 s36, s36, s35")
    A("s_endpgm")
    A.label("prep_center")
    A.fence(2)
    A("v_mov_b32 v12, 0\n v_mov_b32 v13, 0")
    for i in range(56):
        if i % 8 == 0: A(f"s_waitcnt vmcnt({48 - i})")
        A(f"v_lshlrev_b32 v{R+i}, 16, v{R+i}")
        A(f"v_add_f32 v{12 + (i&1)}, v{12 + (i&1)}, v{R+i}")
    A(f"""v_add_f32 v12, v12, v13
    v_lshlrev_b32 v14, 2, v0
    ds_write_b32 v14, v12
    s_lshl_b32 s37, s38, 8
    v_lshlrev_b32 v14, 2, v3
    v_add_u32 v14, s37, v14
    s_waitcnt lgkmcnt(0)
    s_barrier""")
    for i in range(8):
        A(f"ds_read_b32 v{72+i}, v14 offset:{(i>>2)*512 + (i&3)*64}")
    A("s_waitcnt lgkmcnt(0)")
    for i in range(1, 8):
        A(f"v_add_f32 v72, v72, v{72+i}")
    A(f"v_mul_f32 v72, {f2u(1.0/448):#x}, v72\n v_mul_f32 v72, s41, v72\n s_mov_b32 s36, 0")
    for u in range(7):
        b = R + 8*u
        for j in range(8):
            A(f"v_fma_f32 v{b+j}, v{b+j}, s41, -v72")
        for p in range(4):
            A(f"v_cvt_pk_bf16_f32 v{b+p}, v{b+2*p}, v{b+2*p+1}")
        A(f"buffer_store_dwordx4 v[{b}:{b+3}], v11, s[28:31], s36 offen")
        if u < 6: A("s_add_u32 s36, s36, s35")
    A.label("prep_end")
    A("s_endpgm")
    KERNELS.append((name, 264, 256, 1024, 80, 80))

RING_SLOT = 28 * 1024
EXCH = 4 * RING_SLOT
LDS_TOTAL = 160 * 1024
ORS = 240

uid = [0]
def signal(A, ph, younger=0, idx="s17"):
    u = uid[0]; uid[0] += 1
    A(f"""s_waitcnt vmcnt({younger})
    s_barrier
    s_cmp_lg_u32 s3, 0
    s_cbranch_scc1 sig_done{u}
    s_add_u32 s40, s22, {ph * 8 * 128}
    s_lshl_b32 s41, {idx}, 2
    s_add_u32 s40, s40, s41
    v_mov_b32 v1, 1
    v_mov_b32 v2, 0
    s_mov_b64 exec, 1
    s_cmp_eq_u32 s38, 0
    s_cbranch_scc1 sig_slow{u}
    buffer_store_dword v1, v2, s[8:11], s40 offen
    s_branch sig_rest{u}""")
    A.label(f"sig_slow{u}")
    A("buffer_store_dword v1, v2, s[8:11], s40 offen sc1")
    A.label(f"sig_rest{u}")
    A("s_mov_b64 exec, -1")
    A.label(f"sig_done{u}")

def waitflags(A, ph, mask_sgpr):
    u = uid[0]; uid[0] += 1
    A(f"""s_add_u32 s40, s22, {ph * 8 * 128}
    v_lshrrev_b32 v2, 2, v6
    s_mov_b32 exec_lo, s{mask_sgpr}
    s_mov_b32 exec_hi, 0
    s_mov_b32 s41, {SPIN_LIMIT}""")
    A.label(f"poll{u}")
    A(f"""buffer_load_dword v1, v2, s[8:11], s40 offen sc1
    s_sub_u32 s41, s41, 1
    s_cmp_eq_u32 s41, 0
    s_cbranch_scc1 poll_out{u}
    s_waitcnt vmcnt(0)
    v_cmp_ne_u32 vcc, 1, v1
    s_cbranch_vccnz poll{u}""")
    A.label(f"poll_out{u}")
    A("s_mov_b64 exec, -1")

def store2(A, insts):
    u = uid[0]; uid[0] += 1
    A(f"s_cmp_eq_u32 s38, 0\n s_cbranch_scc1 st_slow{u}")
    for t in insts: A(t)
    A(f"s_branch st_done{u}")
    A.label(f"st_slow{u}")
    for t in insts: A(t + " sc1" if t.startswith("buffer_store") else t)
    A.label(f"st_done{u}")

def k_main(A):
    for name, mode in (("main0_kernel", 0), ("main1_kernel", 1), ("qkv0_kernel", 2)):
        kstart(A, name)
        A(f"""s_cmp_ge_u32 s2, 256
        s_cbranch_scc1 main_end
        s_load_dwordx2 s[6:7], s[0:1], 88
        s_load_dwordx2 s[4:5], s[0:1], 72
        s_mov_b32 s39, {mode}
        s_mov_b32 s20, {LBASE[mode & 1]}
        s_mov_b32 s21, {X0 if mode != 1 else LBASE[0] + X2_O}
        s_mov_b32 s22, {FL + (mode & 1) * 4 * 8 * 128}
        s_branch main_body""")
        KERNELS.append((name, 256, 256, LDS_TOTAL, 512, 256))
    A.label("main_body")
    A.reset_hz()
    st(A, "start")
    A(f"""v_lshrrev_b32 v1, 6, v0
    v_and_b32 v2, 63, v0
    v_lshlrev_b32 v6, 4, v2
    v_readfirstlane_b32 s3, v1
    s_and_b32 s16, s2, 7
    s_lshr_b32 s17, s2, 3
    s_lshl_b32 s18, s16, 3
    s_lshr_b32 s40, s17, 2
    s_add_u32 s18, s18, s40
    s_and_b32 s19, s17, 3
    s_lshl_b32 s40, s16, 7
    s_add_u32 s22, s22, s40
    s_mov_b32 s38, 0
    s_getreg_b32 s37, hwreg(HW_REG_XCC_ID)
    s_and_b32 s37, s37, 15
    s_add_u32 s37, s37, 1
    s_waitcnt lgkmcnt(0)""")
    srd(A, 8, 6, 7, WS_BYTES)
    srd(A, 12, 4, 5, X_BYTES)
    A("""s_cmp_eq_u32 s39, 2
    s_cbranch_scc1 qkv_entry""")
    phase_att(A)
    phase_gu(A)
    phase_down(A)
    phase_qkv(A)
    A.label("main_end")
    A("s_endpgm")
    att_fallback(A)

QR, OR_, SR, PR, KVR, XR, SP = 16, 48, 112, 144, 160, 224, 240
def q(j, s): return f"v[{QR+8*j+4*s}:{QR+8*j+4*s+3}]"
def sb(t): return SR + 16 * (t & 1)

def phase_att(A):
    vm = VM(A)
    def o(j): return f"v[{OR_+16*j}:{OR_+16*j+15}]"
    def pb(t): return PR + 8 * (t & 1)
    def kv(kt, i): b = KVR + 16 * (kt & 3) + 4 * i; return f"v[{b}:{b+3}]"
    def cvt(dst, src): A(f"v_cvt_pk_bf16_f32 v{dst}, v{src}, v{src+1}")
    A(f"""v_bfe_u32 v3, v0, 3, 2
    v_bfe_u32 v4, v0, 5, 1
    v_and_b32 v5, 7, v0
    v_lshlrev_b32 v7, 11, v3
    v_lshl_add_u32 v7, v4, 9, v7
    v_lshl_add_u32 v7, v5, 4, v7
    v_lshrrev_b32 v8, 2, v6
    s_lshl_b32 s40, s18, 15
    s_lshl_b32 s41, s19, 7
    s_add_u32 s40, s40, s41
    s_add_u32 s40, s40, s20
    s_add_u32 s41, s20, {KN_O}
    s_lshl_b32 s23, s3, 16
    s_add_u32 s23, s23, s20
    s_add_u32 s23, s23, {KV_O}
    s_mov_b32 s33, s23""")
    def kvload(kt, i):
        vm.issue(f"buffer_load_dwordx4 {kv(kt, i)}, v6, s[8:11], s23 offen offset:{1024*i}", f"kv{kt}")
        if i == 3: A("s_add_u32 s23, s23, 4096")
    def qload(jl):
        A(f"s_xor_b32 s42, s3, {jl}\n s_lshl_b32 s42, s42, 13\n s_add_u32 s42, s40, s42")
        for s_ in range(2):
            vm.issue(f"buffer_load_dwordx4 {q(jl, s_)}, v7, s[8:11], s42 offen offset:{1024*s_}", "q")
    vm.issue("buffer_load_dword v9, v8, s[8:11], s41 offen", "kn")
    for jl in range(4): qload(jl)
    for i in range(4): kvload(0, i)
    A(f"""s_lshl_b32 s42, s17, 2
    s_add_u32 s42, s42, s22
    s_and_b32 s43, s39, 1
    s_mul_i32 s43, s43, {4*8*128 - 8*128}
    s_sub_u32 s42, s42, s43
    s_add_u32 s36, s42, 0x2000
    v_mov_b32 v1, s37
    v_mov_b32 v2, 0
    s_mov_b64 exec, 1""")
    vm.issue("buffer_store_dword v1, v2, s[8:11], s36 offen sc1", "xcc")
    A(f"""s_mov_b64 exec, -1
    s_lshl_b32 s42, s17, 2
    s_sub_u32 s36, s36, s42
    s_mul_i32 s24, s3, {98*1024}
    s_add_u32 s24, s24, {WO}
    s_and_b32 s42, s17, 15
    s_mul_i32 s25, s42, {28*7*1024}
    s_mul_i32 s26, s3, {7*1024}
    s_add_u32 s25, s25, s26
    s_add_u32 s25, s25, {WGU}""")
    for i in range(4): kvload(1, i)
    A(f"""v_bfe_u32 v10, v0, 4, 2
    v_lshrrev_b32 v11, 1, v10
    v_lshlrev_b32 v11, 9, v11
    v_lshl_add_u32 v11, v5, 4, v11
    v_and_b32 v12, 1, v10
    v_lshl_add_u32 v11, v12, 3, v11
    s_mul_i32 s28, s18, {28*1024}
    s_add_u32 s28, s28, s26
    s_lshl_b32 s42, s19, 7
    s_add_u32 s28, s28, s42""")
    for r in range(64): A(f"v_mov_b32 v{OR_+r}, 0")
    for r in range(8): A(f"v_mov_b32 v{pb(1)+r}, 0")
    for r in range(4): A(f"v_mov_b32 v{KVR+48+12+r}, 0")
    for r in range(4): A(f"v_mov_b32 v{sb(1)+12+r}, 0")
    for i in range(4): kvload(2, i)
    st(A, "pro")
    vm.wait("kn")
    A("""v_max_f32_dpp v9, v9, v9 row_shr:1 row_mask:0xf bank_mask:0xf
    v_max_f32_dpp v9, v9, v9 row_shr:2 row_mask:0xf bank_mask:0xf
    v_max_f32_dpp v9, v9, v9 row_shr:4 row_mask:0xf bank_mask:0xf
    v_max_f32_dpp v9, v9, v9 row_shr:8 row_mask:0xf bank_mask:0xf
    v_readlane_b32 s30, v9, 15
    v_readlane_b32 s31, v9, 31
    v_readlane_b32 s34, v9, 47
    v_readlane_b32 s35, v9, 63
    v_mov_b32 v9, s30
    v_max_f32 v9, s31, v9
    v_max_f32 v9, s34, v9
    v_max_f32 v9, s35, v9""")
    vm.wait("q")
    for j in range(4): A(f"v_mov_b32 v{12+j}, 0")
    for r in range(8):
        for j in range(4):
            A(f"v_dot2_f32_bf16 v{12+j}, v{QR+8*j+r}, v{QR+8*j+r}, v{12+j}")
    for j in range(4): A(f"v_mov_b32 v{SP+j}, v{12+j}")
    for j in range(4): A(f"v_permlane32_swap_b32 v{12+j}, v{SP+j}")
    for j in range(4): A(f"v_add_f32 v{12+j}, v{12+j}, v{SP+j}")
    for j in range(4): A(f"v_mul_f32 v{12+j}, v{12+j}, v9")
    for j in range(4): A(f"v_sqrt_f32 v{12+j}, v{12+j}")
    for j in range(4): A(f"v_mul_f32 v{12+j}, {f2u(1.01):#x}, v{12+j}")
    A(f"""v_max3_f32 v{SP}, v12, v13, v14
    v_max_f32 v{SP}, v{SP}, v15
    v_mov_b32 v{SP+1}, {f2u(BOUND_T):#x}
    v_cmp_nle_f32 vcc, v{SP}, v{SP+1}
    s_cbranch_vccnz attn_fallback""")
    A("s_mov_b32 exec_lo, 0")
    for j in range(4): A(f"v_cvt_pk_bf16_f32 v{QR+8*j+6}, -v{12+j}, 0")
    A("s_mov_b32 exec_lo, -1")
    A.label("attn_main")
    A.fence(2)
    st(A, "bnd")
    vm.wait("kv0")
    A(f"v_mfma_f32_32x32x16_bf16 v[{sb(0)}:{sb(0)+15}], {kv(0,0)}, {q(0,0)}, 0")
    A(f"v_mfma_f32_32x32x16_bf16 v[{sb(0)}:{sb(0)+15}], {kv(0,1)}, {q(0,1)}, v[{sb(0)}:{sb(0)+15}]")
    wo_dst = {}; wo_next = [0]
    def woload(dst):
        idx = wo_next[0]; wo_next[0] += 1
        wo_dst[idx] = dst
        vm.issue(f"buffer_load_dwordx4 {dst}, v6, s[8:11], s24 offen offset:{1024*(idx & 3)}", f"wo{idx}")
        if idx & 3 == 3: A("s_add_u32 s24, s24, 4096")
    extra = []
    for nt in range(7):
        extra.append(lambda nt=nt: (A("s_add_u32 s42, s28, s21") if nt == 0 else (A("s_add_u32 s42, s42, 4096") if nt == 4 else None),
                     vm.issue(f"buffer_load_dwordx2 v[{XR+2*nt}:{XR+2*nt+1}], v11, s[8:11], s42 offen offset:{1024*(nt%4)}", "x")))
    spare_dst = [f"a[{4*i}:{4*i+3}]" for i in range(64)] + [f"v[{SP+4*i}:{SP+4*i+3}]" for i in range(4)]
    def dma_piece(p, i):
        if i == 0: A(f"s_add_u32 m0, s26, {p * RING_SLOT}")
        if i == 4: A(f"s_add_u32 m0, s26, {p * RING_SLOT + 4096}\n s_add_u32 s25, s25, 4096")
        vm.issue(f"buffer_load_dwordx4 v6, s[8:11], s25 offen offset:{1024*(i&3)} lds", f"w{p}")
        if i == 6: A(f"s_add_u32 s25, s25, {RING_SLOT - 4096}")
    dmas = [(p, i) for p in range(4) for i in range(7)]
    k = 0
    while spare_dst or dmas:
        if spare_dst:
            d = spare_dst.pop(0); extra.append(lambda d=d: woload(d))
        if k % 2 == 1 and spare_dst:
            d = spare_dst.pop(0); extra.append(lambda d=d: woload(d))
        if dmas and (k % 2 == 0 or not spare_dst):
            p, i = dmas.pop(0); extra.append(lambda p=p, i=i: dma_piece(p, i))
        k += 1
    def pop():
        if extra: extra.pop(0)()
    def exps(base):
        for r in range(4): A(f"v_exp_f32 v{base+r}, v{base+r}")
    NT = 64
    for t in range(NT):
        kt, j = t >> 2, t & 3
        t1 = t + 1; kt1, j1 = t1 >> 2, t1 & 3
        tm = t - 1; ktm, jm = (tm >> 2), tm & 3
        S, Sn, Sp, P, Pp = sb(t), sb(t1), sb(tm), pb(t), pb(tm)
        if j == 3 and kt < 15: vm.wait(f"kv{kt+1}")
        if t in (16, 32, 48): st(A, f"att{t}")
        cvt(Pp+6, Sp+12); cvt(Pp+7, Sp+14)
        if t1 < NT: A(f"v_mfma_f32_32x32x16_bf16 v[{Sn}:{Sn+15}], {kv(kt1,0)}, {q(j1,0)}, 0")
        if kt + 3 < 16: kvload(kt + 3, j)
        else: woload(kv(kt + 3, j))
        exps(S)
        cvt(P+0, S+0); cvt(P+1, S+2)
        if t1 < NT: A(f"v_mfma_f32_32x32x16_bf16 v[{Sn}:{Sn+15}], {kv(kt1,1)}, {q(j1,1)}, v[{Sn}:{Sn+15}]")
        exps(S+4)
        cvt(P+2, S+4); cvt(P+3, S+6)
        A(f"v_mfma_f32_32x32x16_bf16 {o(jm)}, {kv(ktm,3)}, v[{Pp+4}:{Pp+7}], {o(jm)}")
        pop()
        if len(extra) > NT - 1 - t: pop()
        exps(S+8)
        cvt(P+4, S+8); cvt(P+5, S+10)
        A(f"v_mfma_f32_32x32x16_bf16 {o(j)}, {kv(kt,2)}, v[{P}:{P+3}], {o(j)}")
        exps(S+12)
    assert not extra
    t = NT - 1
    for i in range(8): woload(f"v[{QR+4*i}:{QR+4*i+3}]")
    for i in range(4): woload(f"v[{sb(t+1)+4*i}:{sb(t+1)+4*i+3}]")
    woload(kv(15, 1)); woload(kv(15, 2))
    cvt(pb(t)+6, sb(t)+12); cvt(pb(t)+7, sb(t)+14)
    A(f"v_mfma_f32_32x32x16_bf16 {o(3)}, {kv(15,3)}, v[{pb(t)+4}:{pb(t)+7}], {o(3)}")
    i = 0
    while wo_next[0] < 98:
        woload(f"v[{sb(t)+4*i}:{sb(t)+4*i+3}]"); i += 1
    assert i <= 4
    vm.issue("buffer_load_dword v9, v8, s[8:11], s36 offen sc1", "tab")
    st(A, "loop")
    for jl in range(1, 4):
        A(f"s_xor_b32 s42, s3, {jl}\n s_mul_i32 s42, s42, 12288\n s_add_u32 s42, s42, {EXCH}\n v_add_u32 v{11+jl}, s42, v6")
    for jl in range(1, 4):
        for rq in range(4):
            r = OR_ + 16*jl + 4*rq
            A(f"ds_write_b128 v{11+jl}, v[{r}:{r+3}] offset:{(jl-1)*4096 + rq*1024}")
    A(f"""s_mul_i32 s42, s3, 12288
    s_add_u32 s42, s42, {EXCH}
    v_add_u32 v12, s42, v6
    v_mul_u32_u24 v13, {ORS}, v5
    v_mul_u32_u24 v14, 56, v3
    v_mul_u32_u24 v15, 28, v4
    v_add3_u32 v13, v13, v14, v15
    v_add_u32 v13, s42, v13
    v_mul_u32_u24 v14, {ORS}, v5
    v_lshl_add_u32 v14, v10, 4, v14
    v_add_u32 v14, {EXCH}, v14
    v_lshrrev_b32 v15, 1, v10
    v_mul_u32_u24 v15, {12288 - 224}, v15
    v_add_u32 v15, v15, v14
    s_waitcnt lgkmcnt(0)
    s_barrier""")
    for i in range(3):
        for rq in range(4):
            r = OR_ + 16*(i+1) + 4*rq
            A(f"ds_read_b128 v[{r}:{r+3}], v12 offset:{i*4096 + rq*1024}")
    for i in range(3):
        A(f"s_waitcnt lgkmcnt({8 - 4*i})")
        for r in range(0, 16, 2): A(f"v_pk_add_f32 v[{OR_+r}:{OR_+r+1}], v[{OR_+r}:{OR_+r+1}], v[{OR_+16*(i+1)+r}:{OR_+16*(i+1)+r+1}]")
    A(f"v_rcp_f32 v{OR_+15}, v{OR_+14}")
    for r in range(0, 14, 2): A(f"v_pk_mul_f32 v[{OR_+r}:{OR_+r+1}], v[{OR_+r}:{OR_+r+1}], v[{OR_+14}:{OR_+15}] op_sel:[0,1] op_sel_hi:[1,1]")
    for p in range(7): cvt(OR_+16+p, OR_+2*p)
    for p in range(3): A(f"ds_write2_b32 v13, v{OR_+16+2*p}, v{OR_+17+2*p} offset0:{2*p} offset1:{2*p+1}")
    A(f"ds_write_b32 v13, v{OR_+22} offset:24")
    vm.wait("tab")
    A(f"""s_mov_b32 exec_hi, 0
    v_cmp_ne_u32 vcc, s37, v9
    s_mov_b32 exec_hi, -1
    s_cmp_eq_u32 vcc_lo, 0
    s_cselect_b32 s38, 1, 0
    s_waitcnt lgkmcnt(0)
    s_barrier""")
    st(A, "exch")
    BR = OR_
    for ks in range(14):
        k0 = 32 * ks
        off = (k0 // 112) * 12288 + (k0 % 112) * 2
        A(f"ds_read_b128 v[{BR+4*ks}:{BR+4*ks+3}], {'v15' if ks in (3, 10) else 'v14'} offset:{off}")
    ACC = [104, 108, PR, PR+4, PR+8, PR+12, KVR+48]
    for ks in range(14):
        A(f"s_waitcnt lgkmcnt({13-ks})")
        for nt in range(7):
            idx = ks*7 + nt
            acc = f"v[{ACC[nt]}:{ACC[nt]+3}]"
            A(f"v_mfma_f32_16x16x32_bf16 {acc}, {wo_dst[idx]}, v[{BR+4*ks}:{BR+4*ks+3}], {'0' if ks == 0 else acc}")
            if ks == 12:
                pass
    st(A, "oproj")
    X1, PK = 48, 76
    for nt in range(7):
        A(f"""v_lshlrev_b32 v{X1+4*nt}, 16, v{XR+2*nt}
        v_and_b32 v{X1+4*nt+1}, 0xffff0000, v{XR+2*nt}
        v_lshlrev_b32 v{X1+4*nt+2}, 16, v{XR+2*nt+1}
        v_and_b32 v{X1+4*nt+3}, 0xffff0000, v{XR+2*nt+1}""")
    for nt in range(7):
        for r in (0, 2): A(f"v_pk_add_f32 v[{X1+4*nt+r}:{X1+4*nt+r+1}], v[{X1+4*nt+r}:{X1+4*nt+r+1}], v[{ACC[nt]+r}:{ACC[nt]+r+1}]")
    for p in range(14): cvt(PK+p, X1+2*p)
    A(f"""s_add_u32 s42, s28, s20
    s_add_u32 s42, s42, {X1_O}
    s_add_u32 s43, s42, 4096
    s_mov_b32 exec_lo, 0x00ff00ff
    s_mov_b32 exec_hi, 0x00ff00ff""")
    store2(A, [f"buffer_store_dwordx2 v[{PK+2*nt}:{PK+2*nt+1}], v11, s[8:11], s{42 + nt//4} offen offset:{1024*(nt%4)}" for nt in range(7)])
    A("s_mov_b64 exec, -1")
    signal(A, 0)
    A.fence(2)

def att_fallback(A):
    LDS_MX = EXCH
    A.label("attn_fallback")
    A.reset_hz()
    A.fence(8)
    FK = SP + 4
    for j in range(4): A(f"v_mov_b32 v{12+j}, 0xff800000")
    A("s_mov_b32 s34, 16")
    A.label("attn_fb_loop")
    A(f"""buffer_load_dwordx4 v[{FK}:{FK+3}], v6, s[8:11], s33 offen
    buffer_load_dwordx4 v[{FK+4}:{FK+7}], v6, s[8:11], s33 offen offset:1024
    s_add_u32 s33, s33, 4096
    s_waitcnt vmcnt(0)""")
    for j in range(4):
        S = sb(0)
        A(f"v_mfma_f32_32x32x16_bf16 v[{S}:{S+15}], v[{FK}:{FK+3}], {q(j,0)}, 0")
        A(f"v_mfma_f32_32x32x16_bf16 v[{S}:{S+15}], v[{FK+4}:{FK+7}], {q(j,1)}, v[{S}:{S+15}]")
        for r in range(0, 16, 2): A(f"v_max3_f32 v{12+j}, v{S+r}, v{S+r+1}, v{12+j}")
    A("""s_sub_u32 s34, s34, 1
    s_cmp_lg_u32 s34, 0
    s_cbranch_scc1 attn_fb_loop""")
    A.fence(8)
    for j in range(4): A(f"v_mov_b32 v{SP+j}, v{12+j}")
    for j in range(4): A(f"v_permlane32_swap_b32 v{12+j}, v{SP+j}")
    for j in range(4): A(f"v_max_f32 v{12+j}, v{12+j}, v{SP+j}")
    A(f"v_and_b32 v{SP}, 31, v0\n v_lshlrev_b32 v{SP}, 2, v{SP}\n v_add_u32 v{SP}, {LDS_MX}, v{SP}")
    for jl in range(4):
        A(f"""s_xor_b32 s42, s3, {jl}
        s_lshl_b32 s42, s42, 7
        v_add_u32 v{SP+4+jl}, s42, v{SP}
        s_lshl_b32 s42, s3, 9
        v_add_u32 v{SP+1}, s42, v{SP+4+jl}
        ds_write_b32 v{SP+1}, v{12+jl}""")
    A("s_waitcnt lgkmcnt(0)\n s_barrier")
    for jl in range(4):
        for w in range(4): A(f"ds_read_b32 v{SP+8+w}, v{SP+4+jl} offset:{512*w}")
        A(f"""s_waitcnt lgkmcnt(0)
        v_max3_f32 v{12+jl}, v{SP+8}, v{SP+9}, v{SP+10}
        v_max_f32 v{12+jl}, v{12+jl}, v{SP+11}""")
    A("s_mov_b32 exec_lo, 0")
    for j in range(4):
        m = 12 + j
        A(f"""v_sub_f32 v{m}, 0, v{m}
        v_and_b32 v{SP}, 0xffff0000, v{m}
        v_sub_f32 v{m}, v{m}, v{SP}
        v_and_b32 v{SP+1}, 0xffff0000, v{m}
        v_sub_f32 v{m}, v{m}, v{SP+1}
        v_lshrrev_b32 v{SP}, 16, v{SP}
        v_or_b32 v{QR+8*j+6}, v{SP}, v{SP+1}
        v_lshrrev_b32 v{QR+8*j+7}, 16, v{m}""")
    A("s_mov_b32 exec_lo, -1\n s_branch attn_main")

def phase_gu(A):
    XF, AC = 16, 128
    vm = VM(A)
    RING = 5
    def dma(p):
        A(f"s_add_u32 m0, s26, {(p % RING) * RING_SLOT}")
        for i in range(4): vm.issue(f"buffer_load_dwordx4 v6, s[8:11], s25 offen offset:{1024*i} lds", f"w{p}")
        A(f"s_add_u32 m0, s26, {(p % RING) * RING_SLOT + 4096}\n s_add_u32 s25, s25, 4096")
        for i in range(3): vm.issue(f"buffer_load_dwordx4 v6, s[8:11], s25 offen offset:{1024*i} lds", f"w{p}")
        A(f"s_add_u32 s25, s25, {RING_SLOT - 4096}")
    dma(4)
    A(f"""s_lshr_b32 s42, s17, 4
    s_lshl_b32 s42, s42, 2
    s_add_u32 s42, s42, s3
    s_lshl_b32 s27, s16, 3
    s_add_u32 s27, s27, s42
    s_lshl_b32 s42, s42, 2
    s_lshl_b32 s44, 15, s42
    s_mul_i32 s23, s27, {28*1024}
    s_add_u32 s23, s23, s20
    s_add_u32 s23, s23, {X1_O}
    v_add_u32 v7, 0x10000, v6
    v_add_u32 v8, 0x20000, v6
    v_mov_b32 v9, 0x3f803f80""")
    for i in range(4): A(f"v_mov_b32 v{10+i}, 0")
    A(f"""s_lshr_b32 s42, s17, 2
    s_min_u32 s42, s42, 6
    s_mul_i32 s24, s42, {112*2*1024}
    s_mul_i32 s43, s3, {28*2*1024}
    s_add_u32 s24, s24, s43
    s_add_u32 s24, s24, {WD}
    s_and_b32 s43, s3, 1
    s_lshl_b32 s43, s43, 10
    v_add_u32 v4, s43, v6
    v_xor_b32 v5, 1024, v4""")
    def wf(ks, at): b = 28 * (ks & 1) + 4 * at; return f"a[{b}:{b+3}]"
    def rd(ks, at):
        p, kk = ks >> 2, ks & 3
        off = (p % RING) * RING_SLOT + kk * 7168 + at * 1024
        base = "v6" if off < 65536 else ("v7" if off < 131072 else "v8")
        A(f"ds_read_b128 {wf(ks, at)}, {base} offset:{off & 65535}")
    for at in range(7): rd(0, at)
    st(A, "gu_w")
    waitflags(A, 0, 44)
    st(A, "gu_go")
    vm.ops.append("drained")
    def xload(ks):
        vm.issue(f"buffer_load_dwordx4 v[{XF+4*ks}:{XF+4*ks+3}], v6, s[8:11], s23 offen offset:{1024*(ks&3)} sc1", f"x{ks}")
        if ks & 3 == 3: A("s_add_u32 s23, s23, 4096")
    for ks in range(8): xload(ks)
    extra = [lambda ks=ks: xload(ks) for ks in range(8, 28)]
    def wdload(i):
        ks, a = i >> 1, i & 1
        vm.issue(f"buffer_load_dwordx4 a[{64+4*i}:{67+4*i}], {'v4' if a == 0 else 'v5'}, s[8:11], s24 offen offset:{2048*(ks&1)}", "wd")
        if i & 3 == 3: A("s_add_u32 s24, s24, 4096")
    extra2 = [lambda i=i: wdload(i) for i in range(48)]
    for ks in range(28):
        p = ks >> 2
        nxt = ks + 1
        if nxt < 28 and (nxt & 3) == 0:
            if p + 1 >= 4:
                vm.wait(f"w{p+1}")
                A("s_barrier")
            elif p in (1, 2):
                A("s_barrier")
            if p in (1, 2): dma(p + RING - 1)
        vm.wait(f"x{ks}")
        if ks in (1, 8, 16, 20, 24): st(A, f"gu{ks}")
        for at in range(7):
            A(f"s_waitcnt lgkmcnt(6)" if nxt < 28 else f"s_waitcnt lgkmcnt({6-at})")
            acc = f"v[{AC+16*at}:{AC+16*at+15}]"
            A(f"v_mfma_f32_32x32x16_bf16 {acc}, {wf(ks, at)}, v[{XF+4*ks}:{XF+4*ks+3}], {'0' if ks == 0 else acc}")
            if nxt < 28: rd(nxt, at)
            if at < 4:
                r = XF + 4*ks + at
                A(f"v_dot2_f32_bf16 v{10+(at&1)}, v{r}, v9, v{10+(at&1)}\n v_dot2_f32_bf16 v{12+(at&1)}, v{r}, v{r}, v{12+(at&1)}")
            elif extra: extra.pop(0)()
            elif extra2: extra2.pop(0)()
    assert not extra and not extra2
    st(A, "gu_mm")
    A(f"""v_add_f32 v10, v10, v11
    v_add_f32 v12, v12, v13
    v_mov_b32 v11, v10
    v_mov_b32 v13, v12
    v_permlane32_swap_b32 v10, v11
    v_permlane32_swap_b32 v12, v13
    v_add_f32 v10, v10, v11
    v_add_f32 v12, v12, v13
    v_mul_f32 v10, {f2u(1.0/448):#x}, v10
    v_mul_f32 v12, {f2u(1.0/448):#x}, v12
    v_fma_f32 v12, -v10, v10, v12
    v_max_f32 v12, 0, v12
    v_add_f32 v12, {f2u(1e-5):#x}, v12
    v_rcp_f32 v10, v12
    s_mul_i32 s42, s27, {112*1024}
    s_and_b32 s43, s17, 15
    s_mul_i32 s43, s43, {7*1024}
    s_add_u32 s42, s42, s43
    s_add_u32 s42, s42, s20
    s_add_u32 s42, s42, {H_O}
    s_add_u32 s43, s42, 4096
    v_mov_b32 v11, v10""")
    for at in range(7):
        b = AC + 16 * at
        for r in range(0, 8, 2): A(f"v_pk_mul_f32 v[{b+r}:{b+r+1}], v[{b+r}:{b+r+1}], v[{b+8+r}:{b+9+r}]")
        for r in range(0, 8, 2): A(f"v_pk_mul_f32 v[{b+r}:{b+r+1}], v[{b+r}:{b+r+1}], v[10:11]")
        for p in range(4): A(f"v_cvt_pk_bf16_f32 v{16+4*at+p}, v{b+2*p}, v{b+2*p+1}")
    store2(A, [f"buffer_store_dwordx4 v[{16+4*at}:{19+4*at}], v6, s[8:11], s{42 + at//4} offen offset:{1024*(at%4)}" for at in range(7)])
    signal(A, 1)
    A.fence(2)
    for i in range(8):
        ks, a = i >> 1, i & 1
        A(f"buffer_load_dwordx4 v[{208+4*i}:{211+4*i}], {'v4' if a == 0 else 'v5'}, s[8:11], s24 offen offset:{2048*(ks&1)}")
        if i == 3: A("s_add_u32 s24, s24, 4096")

def qkv_prefetch_ops(A, vm):
    ops = []
    def one(lt, ks):
        if lt == 0 and ks == 0:
            A(f"s_mul_i32 s45, s3, {7*1024}\n s_add_u32 s45, s45, {WQKV}")
        if ks == 0:
            if lt < 4: A(f"s_xor_b32 s42, s3, {lt}\n s_lshl_b32 s43, s19, 2\n s_add_u32 s42, s42, s43")
            else: A("s_and_b32 s42, s19, 1\n s_add_u32 s42, s42, 16")
            A(f"s_mul_i32 s42, s42, {28*1024}\n s_add_u32 s42, s42, s45\n s_add_u32 s43, s42, 4096")
        b = 64 + 28*lt + 4*ks
        vm.issue(f"buffer_load_dwordx4 a[{b}:{b+3}], v6, s[8:11], s{42 + ks//4} offen offset:{1024*(ks%4)}", "wq")
    return [lambda lt=lt, ks=ks: one(lt, ks) for lt in range(5) for ks in range(7)]
def qkv_prefetch(A, vm):
    for f in qkv_prefetch_ops(A, vm): f()

def phase_down(A):
    vm = VM(A)
    HF = 16
    A(f"""s_cmp_ge_u32 s17, 28
    s_cbranch_scc1 down_skip
    s_and_b32 s28, s17, 3
    s_lshr_b32 s29, s17, 2
    s_lshr_b32 s42, s28, 1
    s_lshl_b32 s42, s42, 2
    s_add_u32 s42, s42, s3
    s_lshl_b32 s42, s42, 2
    s_lshl_b32 s44, 15, s42
    s_lshl_b32 s30, s16, 3
    s_lshl_b32 s42, s28, 1
    s_add_u32 s30, s30, s42
    s_lshr_b32 s42, s3, 1
    s_add_u32 s30, s30, s42
    s_xor_b32 s31, s30, 1
    s_mul_i32 s23, s30, {112*1024}
    s_mul_i32 s25, s31, {112*1024}
    s_mul_i32 s42, s3, {28*1024}
    s_add_u32 s42, s42, s20
    s_add_u32 s42, s42, {H_O}
    s_add_u32 s23, s23, s42
    s_add_u32 s25, s25, s42
    s_mul_i32 s34, s30, {28*1024}
    s_lshl_b32 s42, s29, 12
    s_add_u32 s34, s34, s42
    s_and_b32 s42, s3, 1
    s_lshl_b32 s42, s42, 11
    s_add_u32 s34, s34, s42
    s_add_u32 s42, s34, s20
    s_add_u32 s42, s42, {X1_O}""")
    A("""buffer_load_dwordx4 v[240:243], v6, s[8:11], s42 offen sc1
    buffer_load_dwordx4 v[244:247], v6, s[8:11], s42 offen offset:1024 sc1""")
    st(A, "dn_w")
    waitflags(A, 1, 44)
    st(A, "dn_go")
    def hf(ks, t): b = HF + 8 * (ks % 24) + 4 * t; return f"v[{b}:{b+3}]"
    def wd(ks, a):
        i = ks * 2 + a
        return f"a[{64+4*i}:{67+4*i}]" if ks < 24 else f"v[{208+4*(i-48)}:{211+4*(i-48)}]"
    def load(ks):
        vm.issue(f"buffer_load_dwordx4 {hf(ks,0)}, v6, s[8:11], s23 offen offset:{1024*(ks&3)} sc1", f"k{ks}")
        vm.issue(f"buffer_load_dwordx4 {hf(ks,1)}, v6, s[8:11], s25 offen offset:{1024*(ks&3)} sc1", f"k{ks}")
        if ks & 3 == 3: A("s_add_u32 s23, s23, 4096\n s_add_u32 s25, s25, 4096")
    PRE = 4
    for ks in range(PRE): load(ks)
    nl = PRE
    pf = qkv_prefetch_ops(A, vm)
    for ks in range(28):
        vm.wait(f"k{ks}")
        n = 0
        for t in range(2):
            for a in range(2):
                lp = a + 2*t
                acc = f"a[{16*lp}:{16*lp+15}]"
                A(f"v_mfma_f32_32x32x16_bf16 {acc}, {wd(ks,a)}, {hf(ks,t)}, {'0' if ks == 0 else acc}")
                if lp in (0, 2) and nl < 28 and (nl < 24 or nl - 24 < ks): load(nl); nl += 1
                elif nl == 28 and pf and lp != 3 and (35 - len(pf)) < 2 * ks: pf.pop(0)()
    assert nl == 28 and not pf
    st(A, "dn_mm")
    for lp in range(1, 4):
        A(f"s_xor_b32 s42, s3, {lp}\n s_mul_i32 s42, s42, 12288\n v_add_u32 v{8+lp}, s42, v6")
    for lp in range(1, 4):
        for rq in range(4):
            r = 16*lp + 4*rq
            A(f"ds_write_b128 v{8+lp}, a[{r}:{r+3}] offset:{(lp-1)*4096 + rq*1024}")
    A(f"""s_mul_i32 s42, s3, 12288
    v_add_u32 v12, s42, v6""")
    for r in range(16): A(f"v_accvgpr_read_b32 v{16+r}, a{r}")
    for p in range(8):
        A(f"v_lshlrev_b32 v{80+2*p}, 16, v{240+p}\n v_and_b32 v{81+2*p}, 0xffff0000, v{240+p}")
    for r in range(0, 16, 2): A(f"v_pk_add_f32 v[{16+r}:{17+r}], v[{16+r}:{17+r}], v[{80+r}:{81+r}]")
    A("s_waitcnt lgkmcnt(0)\n s_barrier")
    for i in range(3):
        for rq in range(4):
            r = 32 + 16*i + 4*rq
            A(f"ds_read_b128 v[{r}:{r+3}], v12 offset:{i*4096 + rq*1024}")
    for i in range(3):
        A(f"s_waitcnt lgkmcnt({8-4*i})")
        for r in range(0, 16, 2): A(f"v_pk_add_f32 v[{16+r}:{17+r}], v[{16+r}:{17+r}], v[{32+16*i+r}:{33+16*i+r}]")
    for p in range(8): A(f"v_cvt_pk_bf16_f32 v{96+p}, v{16+2*p}, v{17+2*p}")
    A(f"""s_cmp_eq_u32 s39, 1
    s_cbranch_scc0 down_x2
    v_and_b32 v3, 31, v0
    v_bfe_u32 v4, v0, 5, 1
    v_mul_u32_u24 v5, 896, v3
    v_lshl_add_u32 v5, v4, 4, v5
    s_mul_i32 s42, s30, {32*896}
    s_lshl_b32 s43, s29, 7
    s_add_u32 s42, s42, s43
    s_and_b32 s43, s3, 1
    s_lshl_b32 s43, s43, 6
    s_add_u32 s42, s42, s43
    buffer_store_dwordx4 v[96:99], v5, s[12:15], s42 offen
    buffer_store_dwordx4 v[100:103], v5, s[12:15], s42 offen offset:32""")
    if STAMPS:
        A("s_waitcnt vmcnt(0)")
        main_flush(A, 3)
    A("s_endpgm")
    A.label("down_x2")
    A(f"s_add_u32 s42, s34, s20\n s_add_u32 s42, s42, {X2_O}")
    store2(A, ["buffer_store_dwordx4 v[96:99], v6, s[8:11], s42 offen", "buffer_store_dwordx4 v[100:103], v6, s[8:11], s42 offen offset:1024"])
    signal(A, 2)
    A("s_branch qkv_wait")
    A.label("down_skip")
    A.fence(4)
    A("s_cmp_eq_u32 s39, 1\n s_cbranch_scc1 main_end")
    qkv_prefetch(A, VM(A))
    A.label("qkv_wait")
    A.fence(4)
    A(f"""s_lshr_b32 s42, s17, 3
    s_lshl_b32 s44, 0x1111111, s42
    s_add_u32 s21, s20, {X2_O}
    s_mov_b32 s20, {LBASE[1]}""")
    st(A, "qkv_w")
    waitflags(A, 2, 44)
    A("s_branch qkv_go")
    A.label("qkv_entry")
    A.fence(4)
    qkv_prefetch(A, VM(A))
    A.label("qkv_go")
    A.fence(4)

def main_flush(A, kid):
    A("s_memtime s[96:97]\n s_memrealtime s[100:101]\n s_mov_b64 exec, -1\n s_waitcnt lgkmcnt(0)")
    for k in range(25): A(f"v_writelane_b32 v1, s{46+2*k}, {k}")
    A("v_writelane_b32 v1, s96, 28\n v_writelane_b32 v1, s98, 29\n v_writelane_b32 v1, s100, 30\n v_writelane_b32 v1, s38, 31")
    A(f"""v_and_b32 v2, 63, v0
    v_lshrrev_b32 v3, 6, v0
    v_lshlrev_b32 v2, 2, v2
    v_lshl_add_u32 v2, v3, 7, v2
    s_lshl_b32 s40, s2, 10
    s_lshl_b32 s41, s39, 20
    s_add_u32 s40, s40, s41
    s_add_u32 s40, s40, {G.TS_BASE}
    s_mov_b32 exec_hi, 0
    buffer_store_dword v1, v2, s[8:11], s40 offen""")

def phase_qkv(A):
    vm = VM(A)
    XF, AC = 96, 16
    st(A, "qkv_go")
    A(f"""s_mul_i32 s42, s18, {28*1024}
    s_mul_i32 s43, s3, {7*1024}
    s_add_u32 s42, s42, s43
    s_add_u32 s42, s42, s21
    s_add_u32 s43, s42, 4096""")
    for ks in range(7):
        vm.issue(f"buffer_load_dwordx4 v[{XF+4*ks}:{XF+4*ks+3}], v6, s[8:11], s{42 + ks//4} offen offset:{1024*(ks%4)} sc1", f"x{ks}")
    A("v_mov_b32 v9, 0x3f803f80")
    for i in range(4): A(f"v_mov_b32 v{10+i}, 0")
    A("""v_and_b32 v3, 31, v0
    v_bfe_u32 v4, v0, 5, 1""")
    def w(lt, ks): b = 64 + 28*lt + 4*ks; return f"a[{b}:{b+3}]"
    def mm(kind):
        for ks in range(7):
            vm.wait(f"x{ks}")
            x = f"v[{XF+4*ks}:{XF+4*ks+3}]"
            for lt in ([4] if kind else []) + [0, 1, 2, 3]:
                acc = f"v[{AC+16*lt}:{AC+16*lt+15}]"
                c = "0" if ks == 0 else acc
                if lt == 4 and kind == 2: A(f"v_mfma_f32_32x32x16_bf16 {acc}, {x}, {w(lt,ks)}, {c}")
                else: A(f"v_mfma_f32_32x32x16_bf16 {acc}, {w(lt,ks)}, {x}, {c}")
                if lt < 4:
                    r = XF + 4*ks + lt
                    A(f"v_dot2_f32_bf16 v{10+(lt&1)}, v{r}, v9, v{10+(lt&1)}\n v_dot2_f32_bf16 v{12+(lt&1)}, v{r}, v{r}, v{12+(lt&1)}")
    A("s_cmp_eq_u32 s19, 0\n s_cbranch_scc1 qkv_mmk\n s_cmp_eq_u32 s19, 1\n s_cbranch_scc1 qkv_mmv")
    mm(0)
    A("s_branch qkv_red")
    A.label("qkv_mmk"); A.reset_hz(); mm(1); A("s_branch qkv_red")
    A.label("qkv_mmv"); A.reset_hz(); mm(2)
    A.label("qkv_red")
    A.fence(4)
    st(A, "qkv_mm")
    XT, ST, SC = 49152, 65536, 65536 + 2048
    A(f"""v_add_f32 v10, v10, v11
    v_add_f32 v11, v12, v13
    v_lshlrev_b32 v13, 3, v0
    v_add_u32 v13, {ST}, v13
    ds_write_b64 v13, v[10:11]""")
    for lp in range(1, 4):
        A(f"s_xor_b32 s42, s3, {lp}\n s_mul_i32 s42, s42, 12288\n v_add_u32 v{124+lp}, s42, v6")
    for lp in range(1, 4):
        for rq in range(4):
            r = AC + 16*lp + 4*rq
            A(f"ds_write_b128 v{124+lp}, v[{r}:{r+3}] offset:{(lp-1)*4096 + rq*1024}")
    A(f"""s_cmp_ge_u32 s19, 2
    s_cbranch_scc1 qkv_nox
    s_cmp_eq_u32 s3, 0
    s_cbranch_scc1 qkv_nox
    s_lshl_b32 s42, s3, 12
    s_add_u32 s42, s42, {XT - 4096}
    v_add_u32 v124, s42, v6""")
    for rq in range(4):
        r = AC + 64 + 4*rq
        A(f"ds_write_b128 v124, v[{r}:{r+3}] offset:{rq*1024}")
    A.label("qkv_nox")
    A(f"""s_mul_i32 s42, s3, 12288
    v_add_u32 v12, s42, v6
    v_lshlrev_b32 v13, 3, v3
    v_add_u32 v13, {ST}, v13
    s_waitcnt lgkmcnt(0)
    s_barrier""")
    for wv in range(4):
        for hf in range(2):
            i = wv*2 + hf
            A(f"ds_read_b64 v[{128+2*i}:{129+2*i}], v13 offset:{wv*512 + hf*256}")
    for i in range(3):
        for rq in range(4):
            r = AC + 16*(i+1) + 4*rq
            A(f"ds_read_b128 v[{r}:{r+3}], v12 offset:{i*4096 + rq*1024}")
    A("s_waitcnt lgkmcnt(12)")
    for sz in (8, 4, 2):
        for i in range(0, sz, 2):
            A(f"v_pk_add_f32 v[{128+i}:{129+i}], v[{128+i}:{129+i}], v[{128+sz+i}:{129+sz+i}]")
    A(f"""v_mul_f32 v128, {f2u(1.0/448):#x}, v128
    v_mul_f32 v129, {f2u(1.0/448):#x}, v129
    v_fma_f32 v129, -v128, v128, v129
    v_max_f32 v129, 0, v129
    v_add_f32 v129, {f2u(1e-5):#x}, v129
    v_rsq_f32 v10, v129""")
    for i in range(3):
        A(f"s_waitcnt lgkmcnt({8-4*i})")
        for r in range(0, 16, 2): A(f"v_pk_add_f32 v[{AC+r}:{AC+r+1}], v[{AC+r}:{AC+r+1}], v[{AC+16*(i+1)+r}:{AC+16*(i+1)+r+1}]")
    A("v_mov_b32 v11, v10")
    for r in range(0, 16, 2): A(f"v_pk_mul_f32 v[{AC+r}:{AC+r+1}], v[{AC+r}:{AC+r+1}], v[10:11]")
    for p in range(8): A(f"v_cvt_pk_bf16_f32 v{144+p}, v{AC+2*p}, v{AC+2*p+1}")
    A(f"""s_lshl_b32 s42, s18, 15
    s_lshl_b32 s43, s19, 13
    s_add_u32 s42, s42, s43
    s_lshl_b32 s43, s3, 11
    s_add_u32 s42, s42, s43
    s_add_u32 s42, s42, s20
    buffer_store_dwordx4 v[144:147], v6, s[8:11], s42 offen
    buffer_store_dwordx4 v[148:151], v6, s[8:11], s42 offen offset:1024
    s_cmp_ge_u32 s19, 2
    s_cbranch_scc1 qkv_fin
    s_cmp_lg_u32 s3, 0
    s_cbranch_scc1 qkv_fin
    v_add_u32 v12, {XT}, v6""")
    E = AC + 64
    for i in range(3):
        for rq in range(4):
            r = AC + 16*i + 4*rq
            A(f"ds_read_b128 v[{r}:{r+3}], v12 offset:{i*4096 + rq*1024}")
    A(f"""s_lshl_b32 s42, s18, 12
    s_add_u32 s42, s42, s20
    s_add_u32 s42, s42, {KV_O}""")
    for i in range(3):
        A(f"s_waitcnt lgkmcnt({8-4*i})")
        for r in range(0, 16, 2): A(f"v_pk_add_f32 v[{E+r}:{E+r+1}], v[{E+r}:{E+r+1}], v[{AC+16*i+r}:{AC+16*i+r+1}]")
    A("s_cmp_eq_u32 s19, 1\n s_cbranch_scc1 qkv_epi_v")
    for r in range(0, 16, 2): A(f"v_pk_mul_f32 v[{E+r}:{E+r+1}], v[{E+r}:{E+r+1}], v[10:11]")
    for p in range(8): A(f"v_cvt_pk_bf16_f32 v{152+p}, v{E+2*p}, v{E+2*p+1}")
    A("v_mov_b32 v20, 0\n v_mov_b32 v21, 0")
    for p in range(8): A(f"v_dot2_f32_bf16 v{20+(p&1)}, v{152+p}, v{152+p}, v{20+(p&1)}")
    A(f"""s_mov_b32 exec_lo, 0
    v_mov_b32 v158, 0x3f803f80
    v_mov_b32 v159, 0x00003f80
    s_mov_b32 exec_lo, -1
    buffer_store_dwordx4 v[152:155], v6, s[8:11], s42 offen
    buffer_store_dwordx4 v[156:159], v6, s[8:11], s42 offen offset:1024
    v_add_f32 v20, v20, v21
    v_mov_b32 v21, v20
    v_permlane32_swap_b32 v20, v21
    v_add_f32 v20, v20, v21
    v_max_f32_dpp v20, v20, v20 row_shr:1 row_mask:0xf bank_mask:0xf
    v_max_f32_dpp v20, v20, v20 row_shr:2 row_mask:0xf bank_mask:0xf
    v_max_f32_dpp v20, v20, v20 row_shr:4 row_mask:0xf bank_mask:0xf
    v_max_f32_dpp v20, v20, v20 row_shr:8 row_mask:0xf bank_mask:0xf
    v_readlane_b32 s30, v20, 15
    v_readlane_b32 s31, v20, 31
    v_mov_b32 v21, s30
    v_max_f32 v21, s31, v21
    s_lshl_b32 s42, s18, 2
    s_add_u32 s42, s42, s20
    s_add_u32 s42, s42, {KN_O}
    v_mov_b32 v22, 0
    s_mov_b64 exec, 1
    buffer_store_dword v21, v22, s[8:11], s42 offen
    s_branch qkv_fin""")
    A.label("qkv_epi_v")
    A.fence(4)
    A(f"""v_lshlrev_b32 v20, 2, v3
    v_add_u32 v20, {SC}, v20
    ds_write_b32 v20, v10
    v_lshlrev_b32 v21, 4, v4
    v_add_u32 v21, {SC}, v21
    v_and_b32 v22, 27, v3
    v_cmp_eq_u32 vcc, 26, v22
    v_mov_b32 v23, 0
    v_mov_b32 v24, 1.0
    v_cndmask_b32 v23, v23, v24, vcc
    s_waitcnt lgkmcnt(0)""")
    for qq in range(4): A(f"ds_read_b128 v[{40+4*qq}:{43+4*qq}], v21 offset:{32*qq}")
    A("s_waitcnt lgkmcnt(0)")
    for r in range(16): A(f"v_fma_f32 v{E+r}, v{E+r}, v{40+r}, v23")
    for p in range(8): A(f"v_cvt_pk_bf16_f32 v{152+p}, v{E+2*p}, v{E+2*p+1}")
    A(f"""buffer_store_dwordx4 v[152:155], v6, s[8:11], s42 offen offset:2048
    buffer_store_dwordx4 v[156:159], v6, s[8:11], s42 offen offset:3072""")
    A.label("qkv_fin")
    if STAMPS:
        A.fence(4)
        A("s_waitcnt vmcnt(0)")
        main_flush(A, 3)

ALL = [k_prep, k_main]
LAUNCHES = ["prep_kernel", "qkv0_kernel", "main0_kernel", "main1_kernel"]
```

```python
import struct, sys, os
from asm import Asm
from layout import *
import gen as G
from gen import f2u, kstart, srd, VM, STAMPS, KERNELS, finish
import gen2
from gen2 import st, SNAMES, k_prep, main_flush, uid, SPIN_LIMIT, BOUND_T

E = lambda k, d: int(os.environ.get(k, str(d)))
EL = lambda k, d: [int(x) for x in os.environ.get(k, d).split(",") if x]
ATT_ST, GU_ST, DN_ST = EL("ATT_ST", "16,32,48"), EL("GU_ST", "1"), EL("DN_ST", "")
SC1 = " sc1" if E("LD_SC1", 1) else ""
RING_SLOT = 28 * 1024
EXCH = 4 * RING_SLOT
LDS_TOTAL = 160 * 1024
ORS = 240
WQ_LDS = 61440

QR, OR_, SR, PR, KVR, XR, SP = 16, 48, 112, 144, 160, 224, 240
def q(j, s): return f"v[{QR+8*j+4*s}:{QR+8*j+4*s+3}]"
def sb(t): return SR + 16 * (t & 1)

def store2(A, vm, insts, tag):
    u = uid[0]; uid[0] += 1
    A(f"s_cmp_eq_u32 s38, 0\n s_cbranch_scc1 st_slow{u}")
    for t in insts: A(t)
    A(f"s_branch st_done{u}")
    A.label(f"st_slow{u}")
    for t in insts: A(t + " sc1")
    A.label(f"st_done{u}")
    vm.ops += [tag] * len(insts)

def signal(A, vm, ph, tag, idx="s17"):
    u = uid[0]; uid[0] += 1
    vm.wait(tag)
    A(f"""s_barrier
    s_cmp_lg_u32 s3, 0
    s_cbranch_scc1 sig_done{u}
    s_add_u32 s40, s22, {ph * 8 * 128}
    s_lshl_b32 s41, {idx}, 2
    s_add_u32 s40, s40, s41
    v_mov_b32 v1, 1
    v_mov_b32 v2, 0
    s_mov_b64 exec, 1
    s_cmp_eq_u32 s38, 0
    s_cbranch_scc1 sig_slow{u}
    buffer_store_dword v1, v2, s[8:11], s40 offen
    s_branch sig_rest{u}""")
    A.label(f"sig_slow{u}")
    A("buffer_store_dword v1, v2, s[8:11], s40 offen sc1")
    A.label(f"sig_rest{u}")
    A("s_mov_b64 exec, -1")
    A.label(f"sig_done{u}")
    A.fence(1)

def waitflags(A, vm, ph, mask_sgpr):
    u = uid[0]; uid[0] += 1
    A(f"""s_add_u32 s40, s22, {ph * 8 * 128}
    v_lshrrev_b32 v2, 2, v6
    s_mov_b32 exec_lo, s{mask_sgpr}
    s_mov_b32 exec_hi, 0
    s_mov_b32 s41, {SPIN_LIMIT}""")
    A.label(f"poll{u}")
    A(f"""buffer_load_dword v1, v2, s[8:11], s40 offen sc1
    s_sub_u32 s41, s41, 1
    s_cmp_eq_u32 s41, 0
    s_cbranch_scc1 poll_out{u}
    s_waitcnt vmcnt(0)
    v_cmp_ne_u32 vcc, 1, v1
    s_cbranch_vccnz poll{u}""")
    A.label(f"poll_out{u}")
    A("s_waitcnt vmcnt(0)\n s_mov_b64 exec, -1")
    vm.ops = ["drained"]

class VM2(VM):
    def wait(self, *tags):
        idx = [i for i, t in enumerate(self.ops) if t in tags]
        if not idx: return
        n = len(self.ops) - 1 - max(idx)
        self.A(f"s_waitcnt vmcnt({min(n, 63)})")

def k_main(A):
    for name, mode in (("main0_kernel", 0), ("main1_kernel", 1), ("qkv0_kernel", 2)):
        kstart(A, name)
        A(f"""s_cmp_ge_u32 s2, 256
        s_cbranch_scc1 main_end
        s_load_dwordx2 s[6:7], s[0:1], 88
        s_load_dwordx2 s[4:5], s[0:1], 72
        s_mov_b32 s39, {mode}
        s_mov_b32 s20, {LBASE[mode & 1]}
        s_mov_b32 s21, {X0 if mode != 1 else LBASE[0] + X2_O}
        s_mov_b32 s22, {FL + (mode & 1) * 4 * 8 * 128}
        s_branch main_body""")
        KERNELS.append((name, 256, 256, LDS_TOTAL, 512, 256))
    A.label("main_body")
    A.reset_hz()
    st(A, "start")
    A(f"""v_lshrrev_b32 v1, 6, v0
    v_and_b32 v2, 63, v0
    v_lshlrev_b32 v6, 4, v2
    v_readfirstlane_b32 s3, v1
    s_and_b32 s16, s2, 7
    s_lshr_b32 s17, s2, 3
    s_lshl_b32 s18, s16, 3
    s_lshr_b32 s40, s17, 2
    s_add_u32 s18, s18, s40
    s_and_b32 s19, s17, 3
    s_lshl_b32 s40, s16, 7
    s_add_u32 s22, s22, s40
    s_mov_b32 s38, 0
    s_mov_b32 s10, {WS_BYTES}
    s_mov_b32 s11, 0x20000
    s_mov_b32 s14, {X_BYTES}
    s_mov_b32 s15, 0x20000
    s_mul_i32 s26, s3, {7*1024}
    s_cmp_eq_u32 s39, 2
    s_cbranch_scc1 qkv_entry""")
    vm = VM2(A)
    wd = WdPrefetch(A, vm)
    phase_att(A, vm, wd)
    phase_gu(A, vm, wd)
    phase_down(A, vm)
    phase_qkv(A)
    A.label("main_end")
    A("s_endpgm")
    att_fallback(A)

def srd_fin(A):
    A("""s_waitcnt lgkmcnt(0)
    s_mov_b32 s8, s6
    s_and_b32 s9, s7, 0xffff
    s_mov_b32 s12, s4
    s_and_b32 s13, s5, 0xffff""")

class WdPrefetch:
    def __init__(self, A, vm): self.A, self.vm, self.i, self.ar = A, vm, 0, 238
    def setup(self):
        self.A(f"""s_lshr_b32 s42, s17, 2
        s_min_u32 s42, s42, 6
        s_mul_i32 s35, s42, {112*2*1024}
        s_mul_i32 s43, s3, {28*2*1024}
        s_add_u32 s35, s35, s43
        s_add_u32 s35, s35, {WD}
        s_and_b32 s43, s3, 1
        s_lshl_b32 s43, s43, 10
        v_add_u32 v238, s43, v6
        v_xor_b32 v239, 1024, v238""")
    def dst(self, i): return f"a[{64+4*i}:{67+4*i}]" if i < 48 else f"v[{208+4*(i-48)}:{211+4*(i-48)}]"
    def one(self):
        i = self.i; self.i += 1
        ks, a = i >> 1, i & 1
        self.vm.issue(f"buffer_load_dwordx4 {self.dst(i)}, v{self.ar+a}, s[8:11], s35 offen offset:{2048*(ks&1)}", "wd")
        if i & 3 == 3: self.A("s_add_u32 s35, s35, 4096")

def dma_piece(A, vm, p, i):
    sl = (p % 5) * RING_SLOT
    if i == 0: A(f"s_add_u32 m0, s26, {sl}")
    if i == 4: A(f"s_add_u32 m0, s26, {sl + 4096}\n s_add_u32 s25, s25, 4096")
    vm.issue(f"buffer_load_dwordx4 v6, s[8:11], s25 offen offset:{1024*(i&3)} lds", f"w{p}")
    if i == 6: A(f"s_add_u32 s25, s25, {RING_SLOT - 4096}")

def phase_att(A, vm, wd):
    def o(j): return f"v[{OR_+16*j}:{OR_+16*j+15}]"
    def pb(t): return PR + 8 * (t & 1)
    def kv(kt, i): b = KVR + 16 * (kt & 3) + 4 * i; return f"v[{b}:{b+3}]"
    def cvt(dst, src): A(f"v_cvt_pk_bf16_f32 v{dst}, v{src}, v{src+1}")
    A(f"""v_bfe_u32 v3, v0, 3, 2
    v_bfe_u32 v4, v0, 5, 1
    v_and_b32 v5, 7, v0
    v_lshlrev_b32 v7, 11, v3
    v_lshl_add_u32 v7, v4, 9, v7
    v_lshl_add_u32 v7, v5, 4, v7
    v_lshrrev_b32 v8, 2, v6
    s_lshl_b32 s40, s18, 15
    s_lshl_b32 s41, s19, 7
    s_add_u32 s40, s40, s41
    s_add_u32 s40, s40, s20
    s_add_u32 s41, s20, {KN_O}
    s_lshl_b32 s23, s3, 16
    s_add_u32 s23, s23, s20
    s_add_u32 s23, s23, {KV_O}
    s_mov_b32 s33, s23""")
    for jl in range(4):
        A(f"s_xor_b32 s{28+jl}, s3, {jl}\n s_lshl_b32 s{28+jl}, s{28+jl}, 13\n s_add_u32 s{28+jl}, s40, s{28+jl}")
    for r in range(64): A(f"v_mov_b32 v{OR_+r}, 0")
    for r in range(8): A(f"v_mov_b32 v{pb(1)+r}, 0")
    for r in range(4): A(f"v_mov_b32 v{KVR+48+12+r}, 0")
    for r in range(4): A(f"v_mov_b32 v{sb(1)+12+r}, 0")
    srd_fin(A)
    def kvload(kt, i):
        vm.issue(f"buffer_load_dwordx4 {kv(kt, i)}, v6, s[8:11], s23 offen offset:{1024*i}", f"kv{kt}" if i < 2 else f"vv{kt}")
        if i == 3: A("s_add_u32 s23, s23, 4096")
    def qload(jl, s_):
        vm.issue(f"buffer_load_dwordx4 {q(jl, s_)}, v7, s[8:11], s{28+jl} offen offset:{1024*s_}", f"q{s_}")
    vm.issue("buffer_load_dword v9, v8, s[8:11], s41 offen", "kn")
    for jl in range(4): qload(jl, 1)
    qload(0, 0)
    for i in range(2): kvload(0, i)
    for jl in range(1, 4): qload(jl, 0)
    for i in range(2, 4): kvload(0, i)
    A(f"""s_getreg_b32 s37, hwreg(HW_REG_XCC_ID)
    s_and_b32 s37, s37, 15
    s_add_u32 s37, s37, 1
    s_and_b32 s43, s39, 1
    s_lshl_b32 s43, s43, 3
    s_add_u32 s43, s43, s16
    s_lshl_b32 s36, s43, 12
    s_add_u32 s36, s36, {XT_BASE}
    s_lshl_b32 s42, s17, 7
    s_add_u32 s42, s42, s36
    v_mov_b32 v1, s37
    v_mov_b32 v2, 0
    s_cmp_eq_u32 s3, 0
    s_cselect_b32 exec_lo, 1, 0
    s_mov_b32 exec_hi, 0""")
    vm.issue("buffer_store_dword v1, v2, s[8:11], s42 offen sc1", "xcc")
    A(f"""s_mov_b64 exec, -1
    s_mul_i32 s24, s3, {98*1024}
    s_add_u32 s24, s24, {WO}
    s_and_b32 s42, s17, 15
    s_mul_i32 s25, s42, {28*7*1024}
    s_add_u32 s25, s25, s26
    s_add_u32 s25, s25, {WGU}
    v_bfe_u32 v10, v0, 4, 2
    v_lshrrev_b32 v11, 1, v10
    v_lshlrev_b32 v11, 9, v11
    v_lshl_add_u32 v11, v5, 4, v11
    v_and_b32 v12, 1, v10
    v_lshl_add_u32 v11, v12, 3, v11
    s_mul_i32 s34, s18, {28*1024}
    s_add_u32 s34, s34, s26
    s_lshl_b32 s42, s19, 7
    s_add_u32 s34, s34, s42""")
    wd.setup()
    for i in range(4): kvload(1, i)
    st(A, "pro")
    vm.wait("kn")
    A("""v_max_f32_dpp v9, v9, v9 row_shr:1 row_mask:0xf bank_mask:0xf
    v_max_f32_dpp v9, v9, v9 row_shr:2 row_mask:0xf bank_mask:0xf
    v_max_f32_dpp v9, v9, v9 row_shr:4 row_mask:0xf bank_mask:0xf
    v_max_f32_dpp v9, v9, v9 row_shr:8 row_mask:0xf bank_mask:0xf
    v_readlane_b32 s28, v9, 15
    v_readlane_b32 s29, v9, 31
    v_readlane_b32 s30, v9, 47
    v_readlane_b32 s31, v9, 63
    v_mov_b32 v9, s28
    v_max_f32 v9, s29, v9
    v_max_f32 v9, s30, v9
    v_max_f32 v9, s31, v9""")
    vm.wait("q1")
    A("s_mov_b32 exec_lo, 0")
    for j in range(4): A(f"v_lshlrev_b32 v{12+j}, 16, v{QR+8*j+6}")
    for j in range(4): A(f"v_mul_f32 v{12+j}, v{12+j}, v9")
    A(f"""v_max3_f32 v{SP}, v12, v13, v14
    v_max_f32 v{SP}, v{SP}, v15
    v_mov_b32 v{SP+1}, {f2u(BOUND_T):#x}
    v_cmp_nle_f32 vcc, v{SP}, v{SP+1}""")
    for j in range(4): A(f"v_cvt_pk_bf16_f32 v{QR+8*j+6}, -v{12+j}, 0")
    A("s_mov_b32 exec_lo, -1\n s_cbranch_vccnz attn_fallback")
    A.label("attn_main")
    A.fence(2)
    st(A, "bnd")
    for i in range(4): kvload(2, i)
    vm.wait("kv0")
    A(f"v_mfma_f32_32x32x16_bf16 v[{sb(0)}:{sb(0)+15}], {kv(0,0)}, {q(0,0)}, 0")
    A(f"v_mfma_f32_32x32x16_bf16 v[{sb(0)}:{sb(0)+15}], {kv(0,1)}, {q(0,1)}, v[{sb(0)}:{sb(0)+15}]")
    vm.wait("vv0")
    wo_dst = {}; wo_next = [0]
    def woload(dst):
        idx = wo_next[0]; wo_next[0] += 1
        wo_dst[idx] = dst
        vm.issue(f"buffer_load_dwordx4 {dst}, v6, s[8:11], s24 offen offset:{1024*(idx & 3)}", f"wo{idx}")
        if idx & 3 == 3: A("s_add_u32 s24, s24, 4096")
    def xres(nt):
        if nt == 0: A("s_add_u32 s42, s34, s21")
        if nt == 4: A("s_add_u32 s42, s42, 4096")
        vm.issue(f"buffer_load_dwordx2 v[{XR+2*nt}:{XR+2*nt+1}], v11, s[8:11], s42 offen offset:{1024*(nt%4)}", "x")
    spare_dst = [f"a[{4*i}:{4*i+3}]" for i in range(64)] + [f"v[{SP+4*i}:{SP+4*i+3}]" for i in range(4)]
    extra = [lambda d=d: woload(d) for d in spare_dst]
    NDMA = E("ATT_DMA", 3)
    dm = [lambda p=p, i=i: dma_piece(A, vm, p, i) for p in range(NDMA) for i in range(7)] + [lambda nt=nt: xres(nt) for nt in range(7)]
    merged = []
    while extra or dm:
        merged += extra[:3]; extra = extra[3:]
        merged += dm[:1]; dm = dm[1:]
    extra = merged
    def pop():
        if extra: extra.pop(0)()
    def exps(base):
        for r in range(4): A(f"v_exp_f32 v{base+r}, v{base+r}")
    NT = 64
    START = E("ATT_XSTART", 4)
    for t in range(NT):
        kt, j = t >> 2, t & 3
        t1 = t + 1; kt1, j1 = t1 >> 2, t1 & 3
        tm = t - 1; ktm, jm = (tm >> 2), tm & 3
        S, Sn, Sp, P, Pp = sb(t), sb(t1), sb(tm), pb(t), pb(tm)
        if j == 3 and kt < 15: vm.wait(f"kv{kt+1}", f"vv{kt+1}")
        if t in ATT_ST: st(A, f"att{t}")
        cvt(Pp+6, Sp+12); cvt(Pp+7, Sp+14)
        if t1 < NT: A(f"v_mfma_f32_32x32x16_bf16 v[{Sn}:{Sn+15}], {kv(kt1,0)}, {q(j1,0)}, 0")
        if kt + 3 < 16: kvload(kt + 3, j)
        else: woload(kv(kt + 3, j))
        exps(S)
        cvt(P+0, S+0); cvt(P+1, S+2)
        if t1 < NT: A(f"v_mfma_f32_32x32x16_bf16 v[{Sn}:{Sn+15}], {kv(kt1,1)}, {q(j1,1)}, v[{Sn}:{Sn+15}]")
        exps(S+4)
        cvt(P+2, S+4); cvt(P+3, S+6)
        A(f"v_mfma_f32_32x32x16_bf16 {o(jm)}, {kv(ktm,3)}, v[{Pp+4}:{Pp+7}], {o(jm)}")
        if t >= START:
            pop()
            if len(extra) > NT - 1 - t: pop()
        exps(S+8)
        cvt(P+4, S+8); cvt(P+5, S+10)
        A(f"v_mfma_f32_32x32x16_bf16 {o(j)}, {kv(kt,2)}, v[{P}:{P+3}], {o(j)}")
        exps(S+12)
    assert not extra
    t = NT - 1
    A("v_and_b32 v12, 31, v0\n v_lshlrev_b32 v12, 7, v12")
    vm.issue("buffer_load_dword v9, v12, s[8:11], s36 offen sc1", "tab")
    for i in range(8): woload(f"v[{QR+4*i}:{QR+4*i+3}]")
    cvt(pb(t)+6, sb(t)+12); cvt(pb(t)+7, sb(t)+14)
    A(f"v_mfma_f32_32x32x16_bf16 {o(3)}, {kv(15,3)}, v[{pb(t)+4}:{pb(t)+7}], {o(3)}")
    st(A, "loop")
    late = [lambda i=i: woload(f"v[{sb(t+1)+4*i}:{sb(t+1)+4*i+3}]") for i in range(4)]
    late += [lambda: woload(kv(15, 1)), lambda: woload(kv(15, 2))]
    late += [lambda i=i: woload(f"v[{sb(t)+4*i}:{sb(t)+4*i+3}]") for i in range(4)]
    late += [lambda p=p, i=i: dma_piece(A, vm, p, i) for p in range(NDMA, 4) for i in range(7)]
    for jl in range(1, 4):
        A(f"s_xor_b32 s42, s3, {jl}\n s_mul_i32 s42, s42, 12288\n s_add_u32 s42, s42, {EXCH}\n v_add_u32 v{11+jl}, s42, v6")
    for jl in range(1, 4):
        for rq in range(4):
            r = OR_ + 16*jl + 4*rq
            A(f"ds_write_b128 v{11+jl}, v[{r}:{r+3}] offset:{(jl-1)*4096 + rq*1024}")
            if late: late.pop(0)()
    assert wo_next[0] == 98
    A(f"""s_mul_i32 s42, s3, 12288
    s_add_u32 s42, s42, {EXCH}
    v_add_u32 v12, s42, v6
    v_mul_u32_u24 v13, {ORS}, v5
    v_mul_u32_u24 v14, 56, v3
    v_mul_u32_u24 v15, 28, v4
    v_add3_u32 v13, v13, v14, v15
    v_add_u32 v13, s42, v13
    v_mul_u32_u24 v14, {ORS}, v5
    v_lshl_add_u32 v14, v10, 4, v14
    v_add_u32 v14, {EXCH}, v14
    v_lshrrev_b32 v15, 1, v10
    v_mul_u32_u24 v15, {12288 - 224}, v15
    v_add_u32 v15, v15, v14""")
    vm.wait("tab")
    A(f"""s_mov_b32 exec_hi, 0
    v_cmp_ne_u32 vcc, s37, v9
    s_mov_b32 exec_hi, -1
    s_cmp_eq_u32 vcc_lo, 0
    s_cselect_b32 s38, 1, 0
    s_waitcnt lgkmcnt(0)
    s_barrier""")
    for i in range(3):
        for rq in range(4):
            r = OR_ + 16*(i+1) + 4*rq
            A(f"ds_read_b128 v[{r}:{r+3}], v12 offset:{i*4096 + rq*1024}")
    while late: late.pop(0)()
    for i in range(3):
        A(f"s_waitcnt lgkmcnt({8 - 4*i})")
        for r in range(0, 16, 2): A(f"v_pk_add_f32 v[{OR_+r}:{OR_+r+1}], v[{OR_+r}:{OR_+r+1}], v[{OR_+16*(i+1)+r}:{OR_+16*(i+1)+r+1}]")
    A(f"v_rcp_f32 v{OR_+15}, v{OR_+14}")
    for r in range(0, 14, 2): A(f"v_pk_mul_f32 v[{OR_+r}:{OR_+r+1}], v[{OR_+r}:{OR_+r+1}], v[{OR_+14}:{OR_+15}] op_sel:[0,1] op_sel_hi:[1,1]")
    for p in range(7): cvt(OR_+16+p, OR_+2*p)
    for p in range(3): A(f"ds_write2_b32 v13, v{OR_+16+2*p}, v{OR_+17+2*p} offset0:{2*p} offset1:{2*p+1}")
    A(f"ds_write_b32 v13, v{OR_+22} offset:24\n s_waitcnt lgkmcnt(0)\n s_barrier")
    st(A, "exch")
    BR = OR_
    for ks in range(14):
        k0 = 32 * ks
        off = (k0 // 112) * 12288 + (k0 % 112) * 2
        A(f"ds_read_b128 v[{BR+4*ks}:{BR+4*ks+3}], {'v15' if ks in (3, 10) else 'v14'} offset:{off}")
    ACC = [104, 108, PR, PR+4, PR+8, PR+12, KVR+48]
    X1, PK = KVR, KVR + 28
    WDO = E("OPROJ_WD", 20)
    for ks in range(14):
        A(f"s_waitcnt lgkmcnt({13-ks})")
        for nt in range(7):
            idx = ks*7 + nt
            if idx in (68, 80, 88): vm.wait(f"wo{min(idx + 11, 97)}")
            acc = f"v[{ACC[nt]}:{ACC[nt]+3}]"
            A(f"v_mfma_f32_16x16x32_bf16 {acc}, {wo_dst[idx]}, v[{BR+4*ks}:{BR+4*ks+3}], {'0' if ks == 0 else acc}")
            if idx >= 18 and idx % 4 == 2 and wd.i < WDO and wd.i + 16 < idx: wd.one()
    st(A, "oproj")
    A("v_mov_b32 v248, v238\n v_mov_b32 v249, v239")
    wd.ar = 248
    X1, PK = 48, 76
    for nt in range(7):
        A(f"""v_lshlrev_b32 v{X1+4*nt}, 16, v{XR+2*nt}
        v_and_b32 v{X1+4*nt+1}, 0xffff0000, v{XR+2*nt}
        v_lshlrev_b32 v{X1+4*nt+2}, 16, v{XR+2*nt+1}
        v_and_b32 v{X1+4*nt+3}, 0xffff0000, v{XR+2*nt+1}""")
    for nt in range(7):
        for r in (0, 2): A(f"v_pk_add_f32 v[{X1+4*nt+r}:{X1+4*nt+r+1}], v[{X1+4*nt+r}:{X1+4*nt+r+1}], v[{ACC[nt]+r}:{ACC[nt]+r+1}]")
    for p in range(14): cvt(PK+p, X1+2*p)
    A(f"""s_add_u32 s42, s34, s20
    s_add_u32 s42, s42, {X1_O}
    s_add_u32 s43, s42, 4096
    s_mov_b32 exec_lo, 0x00ff00ff
    s_mov_b32 exec_hi, 0x00ff00ff""")
    store2(A, vm, [f"buffer_store_dwordx2 v[{PK+2*nt}:{PK+2*nt+1}], v11, s[8:11], s{42 + nt//4} offen offset:{1024*(nt%4)}" for nt in range(7)], "st")
    A("s_mov_b64 exec, -1")
    A(f"""v_pk_add_f32 v[92:93], v[{X1}:{X1+1}], v[{X1+2}:{X1+3}]
    v_pk_mul_f32 v[94:95], v[{X1}:{X1+1}], v[{X1}:{X1+1}]
    v_pk_add_f32 v[96:97], v[{X1+4}:{X1+5}], v[{X1+6}:{X1+7}]
    v_pk_mul_f32 v[98:99], v[{X1+2}:{X1+3}], v[{X1+2}:{X1+3}]""")
    for p in range(2, 14):
        c = 4 * (p & 1)
        if p >= 4: A(f"v_pk_add_f32 v[{92+c}:{93+c}], v[{92+c}:{93+c}], v[{X1+2*p}:{X1+2*p+1}]")
        A(f"v_pk_fma_f32 v[{94+c}:{95+c}], v[{X1+2*p}:{X1+2*p+1}], v[{X1+2*p}:{X1+2*p+1}], v[{94+c}:{95+c}]")
    A(f"""v_pk_add_f32 v[92:93], v[92:93], v[96:97]
    v_pk_add_f32 v[94:95], v[94:95], v[98:99]
    v_add_f32 v92, v92, v93
    v_add_f32 v93, v94, v95
    v_mov_b32 v94, v92
    v_mov_b32 v95, v93
    v_lshlrev_b32 v96, 5, v5
    s_lshl_b32 s42, s18, 10
    v_permlane32_swap_b32 v92, v94
    v_permlane32_swap_b32 v93, v95
    v_pk_add_f32 v[92:93], v[92:93], v[94:95]
    s_lshl_b32 s43, s19, 8
    s_add_u32 s42, s42, s43
    s_lshl_b32 s43, s3, 3
    v_mov_b32 v94, v92
    v_mov_b32 v95, v93
    s_add_u32 s42, s42, s43
    s_add_u32 s42, s42, s20
    v_permlane16_swap_b32 v92, v94
    v_permlane16_swap_b32 v93, v95
    v_pk_add_f32 v[92:93], v[92:93], v[94:95]
    s_add_u32 s42, s42, {ST1_O}
    s_mov_b64 exec, 0xff""")
    store2(A, vm, ["buffer_store_dwordx2 v[92:93], v96, s[8:11], s42 offen"], "st")
    A("s_mov_b64 exec, -1")
    for i in range(E("SIG0_WD", 4)): wd.one()
    signal(A, vm, 0, "st")
    for i in range(7): dma_piece(A, vm, 4, i)

def att_fallback(A):
    LDS_MX = EXCH
    A.label("attn_fallback")
    A.reset_hz()
    A.fence(8)
    FK = SP + 4
    A("s_mov_b32 exec_lo, 0")
    for j in range(4): A(f"v_mov_b32 v{QR+8*j+6}, 0")
    A("s_mov_b32 exec_lo, -1")
    for j in range(4): A(f"v_mov_b32 v{12+j}, 0xff800000")
    A("s_mov_b32 s44, 16")
    A.label("attn_fb_loop")
    A(f"""buffer_load_dwordx4 v[{FK}:{FK+3}], v6, s[8:11], s33 offen
    buffer_load_dwordx4 v[{FK+4}:{FK+7}], v6, s[8:11], s33 offen offset:1024
    s_add_u32 s33, s33, 4096
    s_waitcnt vmcnt(0)""")
    for j in range(4):
        S = sb(0)
        A(f"v_mfma_f32_32x32x16_bf16 v[{S}:{S+15}], v[{FK}:{FK+3}], {q(j,0)}, 0")
        A(f"v_mfma_f32_32x32x16_bf16 v[{S}:{S+15}], v[{FK+4}:{FK+7}], {q(j,1)}, v[{S}:{S+15}]")
        for r in range(0, 16, 2): A(f"v_max3_f32 v{12+j}, v{S+r}, v{S+r+1}, v{12+j}")
    A("""s_sub_u32 s44, s44, 1
    s_cmp_lg_u32 s44, 0
    s_cbranch_scc1 attn_fb_loop""")
    A.fence(8)
    for j in range(4): A(f"v_mov_b32 v{SP+j}, v{12+j}")
    for j in range(4): A(f"v_permlane32_swap_b32 v{12+j}, v{SP+j}")
    for j in range(4): A(f"v_max_f32 v{12+j}, v{12+j}, v{SP+j}")
    A(f"v_and_b32 v{SP}, 31, v0\n v_lshlrev_b32 v{SP}, 2, v{SP}\n v_add_u32 v{SP}, {LDS_MX}, v{SP}")
    for jl in range(4):
        A(f"""s_xor_b32 s42, s3, {jl}
        s_lshl_b32 s42, s42, 7
        v_add_u32 v{SP+4+jl}, s42, v{SP}
        s_lshl_b32 s42, s3, 9
        v_add_u32 v{SP+1}, s42, v{SP+4+jl}
        ds_write_b32 v{SP+1}, v{12+jl}""")
    A("s_waitcnt lgkmcnt(0)\n s_barrier")
    for jl in range(4):
        for w in range(4): A(f"ds_read_b32 v{SP+8+w}, v{SP+4+jl} offset:{512*w}")
        A(f"""s_waitcnt lgkmcnt(0)
        v_max3_f32 v{12+jl}, v{SP+8}, v{SP+9}, v{SP+10}
        v_max_f32 v{12+jl}, v{12+jl}, v{SP+11}""")
    A("s_mov_b32 exec_lo, 0")
    for j in range(4):
        m = 12 + j
        A(f"""v_sub_f32 v{m}, 0, v{m}
        v_and_b32 v{SP}, 0xffff0000, v{m}
        v_sub_f32 v{m}, v{m}, v{SP}
        v_and_b32 v{SP+1}, 0xffff0000, v{m}
        v_sub_f32 v{m}, v{m}, v{SP+1}
        v_lshrrev_b32 v{SP}, 16, v{SP}
        v_or_b32 v{QR+8*j+6}, v{SP}, v{SP+1}
        v_lshrrev_b32 v{QR+8*j+7}, 16, v{m}""")
    A("s_mov_b32 exec_lo, -1\n s_branch attn_main")
    A.label("code_end")

def wq_src(A, i):
    lt, ks = divmod(i, 7)
    if i == 0: A(f"s_add_u32 s45, s26, {WQKV}")
    if ks == 0:
        if lt < 4: A(f"s_xor_b32 s42, s3, {lt}\n s_lshl_b32 s43, s19, 2\n s_add_u32 s42, s42, s43")
        else: A("s_and_b32 s42, s19, 1\n s_add_u32 s42, s42, 16")
        A(f"s_mul_i32 s42, s42, {28*1024}\n s_add_u32 s30, s42, s45\n s_add_u32 s31, s30, 4096")
    return f"s{30 + ks//4} offen offset:{1024*(ks%4)}", 1024*(ks%4)
def wq_load(A, vm, i):
    src, io = wq_src(A, i)
    if i < 25:
        A(f"s_add_u32 m0, s27, {WQ_LDS + i*4096 - io}")
        vm.issue(f"buffer_load_dwordx4 v6, s[8:11], {src} lds", "wq")
    else:
        vm.issue(f"buffer_load_dwordx4 a[{64+4*(i-25)}:{67+4*(i-25)}], v6, s[8:11], {src}", "wq")

def phase_gu(A, vm, wd):
    XF, AC = 16, 128
    A(f"""s_lshr_b32 s42, s17, 4
    s_lshl_b32 s42, s42, 2
    s_add_u32 s42, s42, s3
    s_lshl_b32 s28, s16, 3
    s_add_u32 s28, s28, s42
    s_lshl_b32 s42, s42, 2
    s_lshl_b32 s44, 15, s42
    s_mul_i32 s23, s28, {28*1024}
    s_add_u32 s23, s23, s20
    s_add_u32 s23, s23, {X1_O}
    s_lshl_b32 s24, s28, 10
    s_add_u32 s24, s24, s20
    s_add_u32 s24, s24, {ST1_O}
    s_lshl_b32 s27, s3, 10
    v_add_u32 v7, 0x10000, v6
    v_add_u32 v8, 0x20000, v6
    v_and_b32 v3, 31, v0
    v_bfe_u32 v4, v0, 5, 1
    v_lshlrev_b32 v5, 5, v3
    v_lshl_add_u32 v5, v4, 4, v5""")
    def wf(ks, at): b = 28 * (ks & 1) + 4 * at; return f"a[{b}:{b+3}]"
    def rd(ks, at):
        p, kk = ks >> 2, ks & 3
        off = (p % 5) * RING_SLOT + kk * 7168 + at * 1024
        base = "v6" if off < 65536 else ("v7" if off < 131072 else "v8")
        A(f"ds_read_b128 {wf(ks, at)}, {base} offset:{off & 65535}")
    for at in range(7): rd(0, at)
    st(A, "gu_w")
    waitflags(A, vm, 0, 44)
    st(A, "gu_go")
    def xload(ks):
        vm.issue(f"buffer_load_dwordx4 v[{XF+4*ks}:{XF+4*ks+3}], v6, s[8:11], s23 offen offset:{1024*(ks&3)} sc1", f"x{ks}")
        if ks & 3 == 3: A("s_add_u32 s23, s23, 4096")
    XPRE = E("GU_XPRE", 6)
    for ks in range(XPRE): xload(ks)
    extra = [lambda ks=ks: xload(ks) for ks in range(XPRE, 28)]
    extra.append(lambda: vm.issue("buffer_load_dwordx4 v[12:15], v5, s[8:11], s24 offen sc1", "stat"))
    extra += [wd.one] * (48 - wd.i)
    PER = E("GU_PER", 3)
    for ks in range(28):
        p = ks >> 2
        nxt = ks + 1
        if nxt < 28 and (nxt & 3) == 0:
            if p + 1 >= 4:
                vm.wait(f"w{p+1}")
                A("s_barrier")
            elif p in (1, 2):
                A("s_barrier")
            if p in (1, 2): extra = [lambda i=i, p=p: dma_piece(A, vm, p + 4, i) for i in range(7)] + extra
            if p == 4: extra += [lambda i=i: wq_load(A, vm, i) for i in range(13)]
            if p == 5: extra += [lambda i=i: wq_load(A, vm, i) for i in range(13, 25)]
        vm.wait(f"x{ks}")
        if ks in GU_ST: st(A, f"gu{ks}")
        for at in range(7):
            A(f"s_waitcnt lgkmcnt(6)" if nxt < 28 else f"s_waitcnt lgkmcnt({6-at})")
            acc = f"v[{AC+16*at}:{AC+16*at+15}]"
            A(f"v_mfma_f32_32x32x16_bf16 {acc}, {wf(ks, at)}, v[{XF+4*ks}:{XF+4*ks+3}], {'0' if ks == 0 else acc}")
            if nxt < 28: rd(nxt, at)
            if at in ((1, 3, 5) if PER == 3 else (0, 2, 4, 6)) and extra: extra.pop(0)()
    st(A, "gu_mm")
    vm.wait("stat")
    A(f"""v_pk_add_f32 v[12:13], v[12:13], v[14:15]
    s_mul_i32 s42, s28, {112*1024}
    s_and_b32 s43, s17, 15
    v_mov_b32 v14, v12
    v_mov_b32 v15, v13
    s_mul_i32 s43, s43, {7*1024}
    s_add_u32 s42, s42, s43
    v_permlane32_swap_b32 v12, v14
    v_permlane32_swap_b32 v13, v15
    v_pk_add_f32 v[12:13], v[12:13], v[14:15]
    v_mul_f32 v12, {f2u(1.0/448):#x}, v12
    v_mul_f32 v13, {f2u(1.0/448):#x}, v13
    v_fma_f32 v13, -v12, v12, v13
    v_max_f32 v13, 0, v13
    v_add_f32 v13, {f2u(1e-5):#x}, v13
    v_rcp_f32 v10, v13
    s_add_u32 s42, s42, s20
    s_add_u32 s24, s42, {H_O}
    s_add_u32 s25, s24, 4096
    v_mov_b32 v11, v10""")
    for at in range(7):
        b = AC + 16 * at
        for r in range(0, 8, 2): A(f"v_pk_mul_f32 v[{b+r}:{b+r+1}], v[{b+r}:{b+r+1}], v[{b+8+r}:{b+9+r}]")
        for r in range(0, 8, 2): A(f"v_pk_mul_f32 v[{b+r}:{b+r+1}], v[{b+r}:{b+r+1}], v[10:11]")
        for p in range(4): A(f"v_cvt_pk_bf16_f32 v{16+4*at+p}, v{b+2*p}, v{b+2*p+1}")
    store2(A, vm, [f"buffer_store_dwordx4 v[{16+4*at}:{19+4*at}], v6, s[8:11], s{24 + at//4} offen offset:{1024*(at%4)}" for at in range(7)], "st")
    while extra: extra.pop(0)()
    for i in range(8): wd.one()
    signal(A, vm, 1, "st")

def phase_down(A, vm):
    HF = 16
    A(f"""s_cmp_ge_u32 s17, 28
    s_cbranch_scc1 down_skip
    s_and_b32 s28, s17, 3
    s_lshr_b32 s29, s17, 2
    s_lshr_b32 s42, s28, 1
    s_lshl_b32 s42, s42, 2
    s_add_u32 s42, s42, s3
    s_lshl_b32 s42, s42, 2
    s_lshl_b32 s44, 15, s42
    s_lshl_b32 s32, s16, 3
    s_lshl_b32 s42, s28, 1
    s_add_u32 s32, s32, s42
    s_lshr_b32 s42, s3, 1
    s_add_u32 s32, s32, s42
    s_xor_b32 s33, s32, 1
    s_mul_i32 s23, s32, {112*1024}
    s_mul_i32 s25, s33, {112*1024}
    s_mul_i32 s42, s3, {28*1024}
    s_add_u32 s42, s42, s20
    s_add_u32 s42, s42, {H_O}
    s_add_u32 s23, s23, s42
    s_add_u32 s25, s25, s42
    s_mul_i32 s34, s32, {28*1024}
    s_lshl_b32 s42, s29, 12
    s_add_u32 s34, s34, s42
    s_and_b32 s42, s3, 1
    s_lshl_b32 s42, s42, 11
    s_add_u32 s34, s34, s42
    s_add_u32 s42, s34, s20
    s_add_u32 s42, s42, {X1_O}""")
    A("""buffer_load_dwordx4 v[240:243], v6, s[8:11], s42 offen sc1
    buffer_load_dwordx4 v[244:247], v6, s[8:11], s42 offen offset:1024 sc1""")
    st(A, "dn_w")
    waitflags(A, vm, 1, 44)
    st(A, "dn_go")
    def hf(ks, t): b = HF + 8 * (ks % 24) + 4 * t; return f"v[{b}:{b+3}]"
    def wdf(ks, a):
        i = ks * 2 + a
        return f"a[{64+4*i}:{67+4*i}]" if ks < 24 else f"v[{208+4*(i-48)}:{211+4*(i-48)}]"
    def load(ks):
        vm.issue(f"buffer_load_dwordx4 {hf(ks,0)}, v6, s[8:11], s23 offen offset:{1024*(ks&3)}{SC1}", f"k{ks}")
        vm.issue(f"buffer_load_dwordx4 {hf(ks,1)}, v6, s[8:11], s25 offen offset:{1024*(ks&3)}{SC1}", f"k{ks}")
        if ks & 3 == 3: A("s_add_u32 s23, s23, 4096\n s_add_u32 s25, s25, 4096")
    PRE = E("DN_PRE", 4)
    for ks in range(PRE): load(ks)
    nl = PRE
    for ks in range(28):
        vm.wait(f"k{ks}")
        if ks in DN_ST: st(A, f"dn{ks}")
        for t in range(2):
            for a in range(2):
                lp = a + 2*t
                acc = f"a[{16*lp}:{16*lp+15}]"
                A(f"v_mfma_f32_32x32x16_bf16 {acc}, {wdf(ks,a)}, {hf(ks,t)}, {'0' if ks == 0 else acc}")
                if nl < 28 and (nl < 24 or nl - 24 < ks): load(nl); nl += 1
    assert nl == 28
    st(A, "dn_mm")
    for lp in range(1, 4):
        A(f"s_xor_b32 s42, s3, {lp}\n s_mul_i32 s42, s42, 12288\n v_add_u32 v{8+lp}, s42, v6")
    for p in range(8):
        A(f"v_lshlrev_b32 v{80+2*p}, 16, v{240+p}\n v_and_b32 v{81+2*p}, 0xffff0000, v{240+p}")
    for lp in range(1, 4):
        for rq in range(4):
            r = 16*lp + 4*rq
            A(f"ds_write_b128 v{8+lp}, a[{r}:{r+3}] offset:{(lp-1)*4096 + rq*1024}")
    A(f"""s_mul_i32 s42, s3, 12288
    v_add_u32 v12, s42, v6""")
    for r in range(16): A(f"v_accvgpr_read_b32 v{16+r}, a{r}")
    for r in range(0, 16, 2): A(f"v_pk_add_f32 v[{16+r}:{17+r}], v[{16+r}:{17+r}], v[{80+r}:{81+r}]")
    A("s_waitcnt lgkmcnt(0)\n s_barrier")
    for i in range(3):
        for rq in range(4):
            r = 32 + 16*i + 4*rq
            A(f"ds_read_b128 v[{r}:{r+3}], v12 offset:{i*4096 + rq*1024}")
    for i in range(3):
        A(f"s_waitcnt lgkmcnt({8-4*i})")
        for r in range(0, 16, 2): A(f"v_pk_add_f32 v[{16+r}:{17+r}], v[{16+r}:{17+r}], v[{32+16*i+r}:{33+16*i+r}]")
    for p in range(8): A(f"v_cvt_pk_bf16_f32 v{96+p}, v{16+2*p}, v{17+2*p}")
    A(f"""s_cmp_eq_u32 s39, 1
    s_cbranch_scc0 down_x2
    v_mul_u32_u24 v5, 896, v3
    v_lshl_add_u32 v5, v4, 4, v5
    s_mul_i32 s42, s32, {32*896}
    s_lshl_b32 s43, s29, 7
    s_add_u32 s42, s42, s43
    s_and_b32 s43, s3, 1
    s_lshl_b32 s43, s43, 6
    s_add_u32 s42, s42, s43
    buffer_store_dwordx4 v[96:99], v5, s[12:15], s42 offen
    buffer_store_dwordx4 v[100:103], v5, s[12:15], s42 offen offset:32""")
    if STAMPS:
        A("s_waitcnt vmcnt(0)")
        main_flush(A, 3)
    A("s_endpgm")
    A.label("down_x2")
    A.fence(2)
    A(f"s_add_u32 s42, s34, s20\n s_add_u32 s42, s42, {X2_O}")
    store2(A, vm, ["buffer_store_dwordx4 v[96:99], v6, s[8:11], s42 offen", "buffer_store_dwordx4 v[100:103], v6, s[8:11], s42 offen offset:1024"], "st")
    A(f"""v_pk_add_f32 v[32:33], v[16:17], v[18:19]
    v_pk_mul_f32 v[34:35], v[16:17], v[16:17]
    v_pk_add_f32 v[36:37], v[20:21], v[22:23]
    v_pk_mul_f32 v[38:39], v[18:19], v[18:19]""")
    for p in range(2, 8):
        c = 4 * (p & 1)
        if p >= 4: A(f"v_pk_add_f32 v[{32+c}:{33+c}], v[{32+c}:{33+c}], v[{16+2*p}:{17+2*p}]")
        A(f"v_pk_fma_f32 v[{34+c}:{35+c}], v[{16+2*p}:{17+2*p}], v[{16+2*p}:{17+2*p}], v[{34+c}:{35+c}]")
    A(f"""v_pk_add_f32 v[32:33], v[32:33], v[36:37]
    v_pk_add_f32 v[34:35], v[34:35], v[38:39]
    v_add_f32 v32, v32, v33
    v_add_f32 v33, v34, v35
    v_mov_b32 v34, v32
    v_mov_b32 v35, v33
    v_lshlrev_b32 v36, 7, v3
    s_lshl_b32 s42, s32, 12
    v_permlane32_swap_b32 v32, v34
    v_permlane32_swap_b32 v33, v35
    v_pk_add_f32 v[32:33], v[32:33], v[34:35]
    s_lshl_b32 s43, s29, 4
    s_add_u32 s42, s42, s43
    s_and_b32 s43, s3, 1
    s_lshl_b32 s43, s43, 3
    s_add_u32 s42, s42, s43
    s_add_u32 s42, s42, {ST2 + 0x40000}
    s_mov_b32 exec_hi, 0""")
    store2(A, vm, ["buffer_store_dwordx2 v[32:33], v36, s[8:11], s42 offen"], "st")
    A(f"""s_mov_b32 exec_hi, -1
    s_lshl_b32 s24, s28, 3
    s_add_u32 s24, s24, s29""")
    for i in range(25, 35): wq_load(A, vm, i)
    signal(A, vm, 2, "st", "s24")
    A("s_branch qkv_wait")
    A.label("down_skip")
    A.fence(4)
    A("s_cmp_eq_u32 s39, 1\n s_cbranch_scc1 main_end")
    A("s_barrier\n s_barrier" if False else "s_nop 0")
    for i in range(25, 35): wq_load(A, VM2(A), i)
    A.label("qkv_wait")
    A.fence(4)
    A(f"""s_lshr_b32 s42, s17, 3
    s_lshl_b32 s42, s42, 3
    s_lshl_b32 s44, 0x7f, s42
    s_add_u32 s21, s20, {X2_O}
    s_mov_b32 s20, {LBASE[1]}
    s_mov_b32 s24, {ST2 + 0x40000}""")
    st(A, "qkv_w")
    waitflags(A, vm, 2, 44)
    A("s_branch qkv_go")
    A.label("qkv_entry")
    A.fence(4)
    srd_fin(A)
    A(f"""s_lshl_b32 s27, s3, 10
    s_mov_b32 s24, {ST2}
    v_and_b32 v3, 31, v0
    v_bfe_u32 v4, v0, 5, 1""")
    A.label("qkv_go")
    A.fence(4)

def phase_qkv(A):
    vm = VM2(A)
    XF, AC, WB = 96, 16, 160
    st(A, "qkv_go")
    A(f"""s_mul_i32 s42, s18, {28*1024}
    s_add_u32 s42, s42, s26
    s_add_u32 s42, s42, s21
    s_add_u32 s43, s42, 4096
    s_lshl_b32 s25, s18, 12
    s_add_u32 s24, s24, s25
    v_lshlrev_b32 v5, 7, v3
    v_lshl_add_u32 v5, v4, 6, v5
    v_add_u32 v7, s27, v6
    v_add_u32 v7, {WQ_LDS}, v7
    v_add_u32 v8, 0x10000, v7""")
    for r in range(4): A(f"v_mov_b32 v{140+r}, 0")
    for ks in range(7):
        vm.issue(f"buffer_load_dwordx4 v[{XF+4*ks}:{XF+4*ks+3}], v6, s[8:11], s{42 + ks//4} offen offset:{1024*(ks%4)} sc1", f"x{ks}")
    for i in range(3): vm.issue(f"buffer_load_dwordx4 v[{128+4*i}:{131+4*i}], v5, s[8:11], s24 offen offset:{16*i} sc1", "stat")
    A("s_mov_b32 exec_hi, 0")
    vm.issue(f"buffer_load_dwordx4 v[140:143], v5, s[8:11], s24 offen offset:48 sc1", "stat")
    A("s_mov_b32 exec_hi, -1")
    A("s_cmp_eq_u32 s39, 2\n s_cbranch_scc0 qkv_havew")
    v2 = VM2(A)
    for i in range(35): wq_load(A, v2, i)
    A("s_waitcnt vmcnt(0)")
    A.label("qkv_havew")
    A.fence(2)
    def w(i): return f"a[{104+4*i}:{107+4*i}]" if i < 25 else f"a[{64+4*(i-25)}:{67+4*(i-25)}]"
    order = sorted(range(25), key=lambda i: (i % 7, i // 7))
    for n, i in enumerate(order):
        off = i * 4096
        A(f"ds_read_b128 {w(i)}, {'v7' if off < 65536 else 'v8'} offset:{off & 65535}")
        if n == 14: break
    rest = order[15:]
    pos = {i: n for n, i in enumerate(order)}
    def mm(kind):
        issued = 15; rs = list(rest)
        for ks in range(7):
            vm.wait(f"x{ks}")
            x = f"v[{XF+4*ks}:{XF+4*ks+3}]"
            for lt in ([4] if kind else []) + [0, 1, 2, 3]:
                i = lt * 7 + ks
                if i < 25: A(f"s_waitcnt lgkmcnt({min(15, issued - 1 - pos[i])})")
                acc = f"v[{AC+16*lt}:{AC+16*lt+15}]"
                c = "0" if ks == 0 else acc
                if lt == 4 and kind == 2: A(f"v_mfma_f32_32x32x16_bf16 {acc}, {x}, {w(i)}, {c}")
                else: A(f"v_mfma_f32_32x32x16_bf16 {acc}, {w(i)}, {x}, {c}")
                if rs:
                    j = rs.pop(0); off = j * 4096
                    A(f"ds_read_b128 {w(j)}, {'v7' if off < 65536 else 'v8'} offset:{off & 65535}"); issued += 1
    A("s_cmp_eq_u32 s19, 0\n s_cbranch_scc1 qkv_mmk\n s_cmp_eq_u32 s19, 1\n s_cbranch_scc1 qkv_mmv")
    mm(0)
    A("s_branch qkv_red")
    A.label("qkv_mmk"); A.reset_hz(); mm(1); A("s_branch qkv_red")
    A.label("qkv_mmv"); A.reset_hz(); mm(2)
    A.label("qkv_red")
    A.fence(4)
    st(A, "qkv_mm")
    XT = 49152
    for lp in range(1, 4):
        A(f"s_xor_b32 s42, s3, {lp}\n s_mul_i32 s42, s42, 12288\n v_add_u32 v{124+lp}, s42, v6")
    A.fence(4)
    for lp in range(1, 4):
        for rq in range(4):
            r = AC + 16*lp + 4*rq
            A(f"ds_write_b128 v{124+lp}, v[{r}:{r+3}] offset:{(lp-1)*4096 + rq*1024}")
    A(f"""s_cmp_ge_u32 s19, 2
    s_cbranch_scc1 qkv_nox
    s_cmp_eq_u32 s3, 0
    s_cbranch_scc1 qkv_nox
    s_lshl_b32 s42, s3, 12
    s_add_u32 s42, s42, {XT - 4096}
    v_add_u32 v124, s42, v6""")
    for rq in range(4):
        r = AC + 64 + 4*rq
        A(f"ds_write_b128 v124, v[{r}:{r+3}] offset:{rq*1024}")
    A.label("qkv_nox")
    A(f"""s_mul_i32 s42, s3, 12288
    v_add_u32 v12, s42, v6""")
    vm.wait("stat")
    for sz in (8, 4, 2):
        for i in range(0, sz, 2):
            A(f"v_pk_add_f32 v[{128+i}:{129+i}], v[{128+i}:{129+i}], v[{128+sz+i}:{129+sz+i}]")
    A(f"""v_mov_b32 v130, v128
    v_mov_b32 v131, v129
    s_lshl_b32 s42, s18, 15
    s_lshl_b32 s43, s19, 13
    v_permlane32_swap_b32 v128, v130
    v_permlane32_swap_b32 v129, v131
    v_pk_add_f32 v[128:129], v[128:129], v[130:131]
    v_mul_f32 v128, {f2u(1.0/448):#x}, v128
    v_mul_f32 v129, {f2u(1.0/448):#x}, v129
    v_fma_f32 v129, -v128, v128, v129
    v_max_f32 v129, 0, v129
    v_add_f32 v129, {f2u(1e-5):#x}, v129
    v_rsq_f32 v10, v129
    s_add_u32 s42, s42, s43
    s_lshl_b32 s43, s3, 11
    s_add_u32 s42, s42, s43
    s_add_u32 s42, s42, s20
    v_mov_b32 v11, v10
    s_waitcnt lgkmcnt(0)
    s_barrier""")
    for i in range(3):
        for rq in range(4):
            r = AC + 16*(i+1) + 4*rq
            A(f"ds_read_b128 v[{r}:{r+3}], v12 offset:{i*4096 + rq*1024}")
    for i in range(3):
        A(f"s_waitcnt lgkmcnt({8-4*i})")
        for r in range(0, 16, 2): A(f"v_pk_add_f32 v[{AC+r}:{AC+r+1}], v[{AC+r}:{AC+r+1}], v[{AC+16*(i+1)+r}:{AC+16*(i+1)+r+1}]")
    for r in range(0, 16, 2): A(f"v_pk_mul_f32 v[{AC+r}:{AC+r+1}], v[{AC+r}:{AC+r+1}], v[10:11]")
    for p in range(8): A(f"v_cvt_pk_bf16_f32 v{144+p}, v{AC+2*p}, v{AC+2*p+1}")
    def norm(base, d):
        A(f"v_mov_b32 v{d}, 0\n v_mov_b32 v{d+1}, 0")
        for p in range(8): A(f"v_dot2_f32_bf16 v{d+(p&1)}, v{base+p}, v{base+p}, v{d+(p&1)}")
        A(f"""v_add_f32 v{d}, v{d}, v{d+1}
        v_mov_b32 v{d+1}, v{d}
        v_permlane32_swap_b32 v{d}, v{d+1}
        v_add_f32 v{d}, v{d}, v{d+1}
        v_sqrt_f32 v{d}, v{d}
        v_mul_f32 v{d}, {f2u(1.01):#x}, v{d}""")
    A("buffer_store_dwordx4 v[144:147], v6, s[8:11], s42 offen")
    norm(144, 132)
    A(f"""s_mov_b32 exec_lo, 0
    v_cvt_pk_bf16_f32 v150, v132, 0
    s_mov_b32 exec_lo, -1
    buffer_store_dwordx4 v[148:151], v6, s[8:11], s42 offen offset:1024
    s_cmp_ge_u32 s19, 2
    s_cbranch_scc1 qkv_fin
    s_cmp_lg_u32 s3, 0
    s_cbranch_scc1 qkv_fin
    v_add_u32 v12, {XT}, v6""")
    EE = AC + 64
    for i in range(3):
        for rq in range(4):
            r = AC + 16*i + 4*rq
            A(f"ds_read_b128 v[{r}:{r+3}], v12 offset:{i*4096 + rq*1024}")
    A(f"""s_lshl_b32 s42, s18, 12
    s_add_u32 s42, s42, s20
    s_add_u32 s42, s42, {KV_O}""")
    for i in range(3):
        A(f"s_waitcnt lgkmcnt({8-4*i})")
        for r in range(0, 16, 2): A(f"v_pk_add_f32 v[{EE+r}:{EE+r+1}], v[{EE+r}:{EE+r+1}], v[{AC+16*i+r}:{AC+16*i+r+1}]")
    A("s_cmp_eq_u32 s19, 1\n s_cbranch_scc1 qkv_epi_v")
    for r in range(0, 16, 2): A(f"v_pk_mul_f32 v[{EE+r}:{EE+r+1}], v[{EE+r}:{EE+r+1}], v[10:11]")
    for p in range(8): A(f"v_cvt_pk_bf16_f32 v{152+p}, v{EE+2*p}, v{EE+2*p+1}")
    A("buffer_store_dwordx4 v[152:155], v6, s[8:11], s42 offen")
    norm(152, 20)
    A(f"""s_mov_b32 exec_lo, 0
    v_mov_b32 v158, 0x3f803f80
    v_mov_b32 v159, 0x00003f80
    s_mov_b32 exec_lo, -1
    buffer_store_dwordx4 v[156:159], v6, s[8:11], s42 offen offset:1024
    v_max_f32_dpp v20, v20, v20 row_shr:1 row_mask:0xf bank_mask:0xf
    v_max_f32_dpp v20, v20, v20 row_shr:2 row_mask:0xf bank_mask:0xf
    v_max_f32_dpp v20, v20, v20 row_shr:4 row_mask:0xf bank_mask:0xf
    v_max_f32_dpp v20, v20, v20 row_shr:8 row_mask:0xf bank_mask:0xf
    v_readlane_b32 s30, v20, 15
    v_readlane_b32 s31, v20, 31
    v_mov_b32 v21, s30
    v_max_f32 v21, s31, v21
    s_lshl_b32 s42, s18, 2
    s_add_u32 s42, s42, s20
    s_add_u32 s42, s42, {KN_O}
    v_mov_b32 v22, 0
    s_mov_b64 exec, 1
    buffer_store_dword v21, v22, s[8:11], s42 offen
    s_branch qkv_fin""")
    A.label("qkv_epi_v")
    A.fence(4)
    A(f"""v_lshlrev_b32 v20, 2, v3
    ds_write_b32 v20, v10
    v_lshlrev_b32 v21, 4, v4
    v_and_b32 v22, 27, v3
    v_cmp_eq_u32 vcc, 26, v22
    v_mov_b32 v23, 0
    v_mov_b32 v24, 1.0
    v_cndmask_b32 v23, v23, v24, vcc
    s_waitcnt lgkmcnt(0)""")
    for qq in range(4): A(f"ds_read_b128 v[{40+4*qq}:{43+4*qq}], v21 offset:{32*qq}")
    A("s_waitcnt lgkmcnt(0)")
    for r in range(16): A(f"v_fma_f32 v{EE+r}, v{EE+r}, v{40+r}, v23")
    for p in range(8): A(f"v_cvt_pk_bf16_f32 v{152+p}, v{EE+2*p}, v{EE+2*p+1}")
    A(f"""buffer_store_dwordx4 v[152:155], v6, s[8:11], s42 offen offset:2048
    buffer_store_dwordx4 v[156:159], v6, s[8:11], s42 offen offset:3072""")
    A.label("qkv_fin")
    if STAMPS:
        A.fence(4)
        A("s_waitcnt vmcnt(0)")
        main_flush(A, 3)

ALL = [k_prep, k_main]
LAUNCHES = ["prep_kernel", "qkv0_kernel", "main0_kernel", "main1_kernel"]
```

```python
S, D, H, DH, F = 2048, 448, 16, 28, 1792
KB = 1024
WS_BYTES = 268435456
X_BYTES = S * D * 2
WQKV = 0x000000
WO   = 0x080000
WGU  = 0x100000
WD   = 0x420000
LBASE = [0x600000, 0x1600000]
Q_O   = 0x000000
KV_O  = 0x200000
KN_O  = 0x240000
X1_O  = 0x280000
XN1_O = 0x480000
H_O   = 0x680000
X2_O  = 0xD80000
QSCALE = (28.0 ** -0.5) * 1.4426950408889634
def swap23(i): return (i & 3) | ((i & 4) << 1) | ((i & 8) >> 1) | (i & ~15)
X0   = 0x2600000
FL   = 0x2800000
FL_BYTES = 0x3000
ST1_O = 0x260000
ST2   = 0x2900000
XT_BASE = FL + 0x4000
```

```python
import sys, os
os.environ.setdefault("INPLACE", "1")
sys.path.insert(0, "gen")
import gen3
from asm import Asm
A = Asm()
launches = sys.argv[2].split(",") if len(sys.argv) > 2 else None
for f in gen3.ALL: f(A)
if launches is None: launches = gen3.LAUNCHES
open(sys.argv[1], "w").write(gen3.finish(A, launches))
print("nops inserted:", A.nops, "lines:", len(A.lines))
open(sys.argv[1][:-2] + ".names", "w").write(",".join(gen3.SNAMES))
```

```python
import struct, sys, os
from asm import Asm
from layout import *
import gen as G
from gen import f2u, kstart, srd, v_swap23, VM, STAMPS, KERNELS, finish
SNAMES = []
def st(A, name):
    if not STAMPS: return
    if name not in SNAMES: SNAMES.append(name)
    k = SNAMES.index(name)
    assert k < 25
    if k == 0: A("s_memrealtime s[98:99]")
    A(f"s_memtime s[{46+2*k}:{47+2*k}]")

BOUND_T = 45.0
SPIN_LIMIT = 200000

PT = int(os.environ.get("PTOUCH", "0"))
def ptouch(A):
    if not PT: return
    A(f"""s_lshl_b32 s50, s2, 2
    s_add_u32 s50, s50, s3
    s_min_u32 s50, s50, 1023
    s_mul_i32 s50, s50, {7*1024}
    s_add_u32 s50, s50, {LBASE[0] + H_O}
    v_lshlrev_b32 v78, 7, v2
    v_min_u32 v78, {55*128}, v78
    buffer_load_dword v15, v78, s[28:31], s50 offen""")
def k_prep(A):
    name = "prep_kernel"
    kstart(A, name)
    A("""s_cmp_ge_u32 s2, 264
    s_cbranch_scc1 prep_end
    s_load_dwordx8 s[4:11], s[0:1], 8
    s_load_dwordx4 s[12:15], s[0:1], 48
    s_load_dwordx2 s[16:17], s[0:1], 64
    s_load_dwordx2 s[18:19], s[0:1], 88
    s_load_dwordx2 s[44:45], s[0:1], 0
    v_lshrrev_b32 v1, 6, v0
    v_and_b32 v2, 63, v0
    v_and_b32 v3, 15, v0
    v_bfe_u32 v4, v0, 4, 2
    v_readfirstlane_b32 s3, v1""")
    if int(os.environ.get("CPF", "1")):
        A.raw("""    s_getpc_b64 s[46:47]
cpf_pc:
    s_add_u32 s46, s46, main0_kernel - cpf_pc
    s_addc_u32 s47, s47, 0
    s_lshr_b32 s48, s2, 3
    s_lshl_b32 s48, s48, 2
    s_add_u32 s48, s48, s3
    s_lshl_b32 s48, s48, 8
    v_lshlrev_b32 v78, 2, v2
    v_add_u32 v78, s48, v78
    v_min_u32 v78, code_end - main0_kernel - 4, v78
    global_load_dword v79, v78, s[46:47]""")
    v_swap23(A, 5, 3, 6)
    A("""v_and_b32 v7, 1, v4
    v_lshrrev_b32 v8, 1, v4
    s_waitcnt lgkmcnt(0)""")
    srd(A, 28, 18, 19, WS_BYTES)
    A("""v_lshlrev_b32 v9, 5, v7
    v_add_u32 v9, v9, v3
    v_lshlrev_b32 v9, 4, v9
    s_mov_b32 s27, 0x20000
    s_mov_b32 s40, 0
    s_and_b32 s38, s3, 1
    s_lshr_b32 s39, s3, 1
    s_cmp_lt_u32 s2, 112
    s_cbranch_scc1 prep_wgu
    s_cmp_lt_u32 s2, 130
    s_cbranch_scc1 prep_qkv
    s_cmp_lt_u32 s2, 144
    s_cbranch_scc1 prep_wo
    s_cmp_ge_u32 s2, 200
    s_cbranch_scc1 prep_x""")
    A(f"""s_sub_u32 s32, s2, 144
    s_mov_b32 s24, s16
    s_and_b32 s25, s17, 0xffff
    s_mov_b32 s26, {F*D*2}
    s_mov_b32 s33, 896
    s_mov_b32 s34, 128
    s_mov_b32 s35, {112*2*1024}
    s_mul_i32 s36, s32, {32*896}
    s_lshl_b32 s37, s3, 5
    s_add_u32 s36, s36, s37
    v_mul_u32_u24 v10, {8*896}, v4
    v_lshl_add_u32 v10, v5, 1, v10
    v_add_u32 v10, s36, v10
    s_lshl_b32 s36, s32, 12
    s_lshl_b32 s37, s39, 10
    s_add_u32 s36, s36, s37
    s_lshl_b32 s37, s38, 8
    s_add_u32 s36, s36, s37
    s_add_u32 s36, s36, {WD}
    v_lshlrev_b32 v11, 11, v8
    v_add3_u32 v11, v11, v9, s36
    s_branch prep_common""")
    A.label("prep_wo")
    A(f"""s_sub_u32 s32, s2, 130
    s_lshl_b32 s32, s32, 2
    s_add_u32 s32, s32, s3
    s_mul_i32 s42, s32, 4682
    s_lshr_b32 s42, s42, 16
    s_mul_i32 s37, s42, 14
    s_sub_u32 s43, s32, s37
    s_mov_b32 s24, s10
    s_and_b32 s25, s11, 0xffff
    s_mov_b32 s26, {D*D*2}
    s_mov_b32 s33, 896
    s_mov_b32 s34, 32
    s_mov_b32 s35, 1024
    s_mul_i32 s36, s43, {32*896}
    s_mul_i32 s37, s42, 224
    s_add_u32 s36, s36, s37
    v_mul_u32_u24 v10, {8*896}, v4
    v_lshl_add_u32 v10, v3, 1, v10
    v_add_u32 v10, s36, v10
    s_mul_i32 s36, s32, {7*1024}
    s_add_u32 s36, s36, {WO}
    v_lshlrev_b32 v11, 4, v2
    v_add_u32 v11, s36, v11
    s_branch prep_common""")
    A.label("prep_x")
    A(f"""s_sub_u32 s32, s2, 200
    s_mov_b32 s24, s44
    s_and_b32 s25, s45, 0xffff
    s_mov_b32 s26, {X_BYTES}
    v_and_b32 v10, 31, v0
    v_mul_u32_u24 v10, 896, v10
    v_bfe_u32 v11, v0, 5, 1
    v_lshl_add_u32 v10, v11, 4, v10
    s_mul_i32 s36, s32, {32*896}
    s_mul_i32 s37, s3, 224
    s_add_u32 s36, s36, s37
    v_lshlrev_b32 v11, 4, v2
    s_mul_i32 s33, s32, {28*1024}
    s_mul_i32 s37, s3, {7*1024}
    s_add_u32 s33, s33, s37
    s_add_u32 s33, s33, {X0}
    s_add_u32 s34, s33, 4096""")
    for u in range(7): A(f"buffer_load_dwordx4 v[{16+4*u}:{19+4*u}], v10, s[24:27], s36 offen offset:{32*u}")
    ptouch(A)
    A(f"""s_cmp_ge_u32 s32, 20
    s_cbranch_scc1 prep_x2
    v_mov_b32 v60, 0
    v_mov_b32 v61, 0
    v_mov_b32 v62, 0
    v_mov_b32 v63, 0
    v_lshlrev_b32 v12, 4, v0
    s_lshl_b32 s37, s32, 12
    s_add_u32 s37, s37, {FL}
    buffer_store_dwordx4 v[60:63], v12, s[28:31], s37 offen""")
    A.label("prep_x2")
    A("v_mov_b32 v12, 0\n v_mov_b32 v13, 0\n v_mov_b32 v14, 0\n v_mov_b32 v15, 0\n v_mov_b32 v9, 0x3f803f80\n s_waitcnt vmcnt(0)")
    for u in range(7): A(f"buffer_store_dwordx4 v[{16+4*u}:{19+4*u}], v11, s[28:31], s{33 + u//4} offen offset:{1024*(u%4)}")
    for i in range(28):
        A(f"v_dot2_f32_bf16 v{12+2*(i&1)}, v{16+i}, v9, v{12+2*(i&1)}\n v_dot2_f32_bf16 v{13+2*(i&1)}, v{16+i}, v{16+i}, v{13+2*(i&1)}")
    A(f"""v_add_f32 v12, v12, v14
    v_add_f32 v13, v13, v15
    v_mov_b32 v14, v12
    v_mov_b32 v15, v13
    v_permlane32_swap_b32 v12, v14
    v_permlane32_swap_b32 v13, v15
    v_add_f32 v12, v12, v14
    v_add_f32 v13, v13, v15
    v_mov_b32 v14, 0
    v_mov_b32 v15, 0
    v_and_b32 v10, 31, v0
    v_lshlrev_b32 v10, 7, v10
    s_lshl_b32 s36, s32, 12
    s_lshl_b32 s37, s3, 3
    s_add_u32 s36, s36, s37
    s_add_u32 s36, s36, {ST2}
    s_mov_b32 exec_hi, 0
    buffer_store_dwordx2 v[12:13], v10, s[28:31], s36 offen
    buffer_store_dwordx2 v[14:15], v10, s[28:31], s36 offen offset:32
    buffer_store_dwordx2 v[14:15], v10, s[28:31], s36 offen offset:64
    buffer_store_dwordx2 v[14:15], v10, s[28:31], s36 offen offset:96
    s_endpgm""")
    A.label("prep_wgu")
    A(f"""s_mov_b32 s40, 1
    s_mov_b32 s41, 1.0
    s_mul_i32 s42, s2, 9363
    s_lshr_b32 s42, s42, 16
    s_mul_i32 s37, s42, 7
    s_sub_u32 s43, s2, s37
    s_cmp_eq_u32 s38, 0
    s_cselect_b32 s24, s12, s14
    s_cselect_b32 s25, s13, s15
    s_and_b32 s25, s25, 0xffff
    s_mov_b32 s26, {F*D*2}
    s_mov_b32 s33, 3584
    s_lshl_b32 s37, s2, 4
    v_add_u32 v12, s37, v5
    s_mov_b64 vcc, -1
    s_mov_b32 s35, {14*1024}
    s_mul_i32 s36, s42, {28*7*1024}
    s_lshl_b32 s37, s43, 10
    s_add_u32 s36, s36, s37
    s_mul_i32 s37, s39, {7*14*1024}
    s_add_u32 s36, s36, s37
    s_add_u32 s36, s36, {WGU}
    v_mul_u32_u24 v11, {7*1024}, v8
    s_branch prep_c2""")
    A.label("prep_qkv")
    A(f"""s_mov_b32 s40, 1
    s_sub_u32 s32, s2, 112
    s_lshl_b32 s37, s38, 4
    v_add_u32 v12, s37, v5
    s_mov_b32 s41, 1.0
    s_cmp_eq_u32 s32, 17
    s_cbranch_scc1 prep_v
    v_cmp_gt_u32 vcc, 28, v12
    s_cmp_eq_u32 s32, 16
    s_cbranch_scc1 prep_k
    s_mov_b32 s24, s4
    s_and_b32 s25, s5, 0xffff
    s_mov_b32 s26, {D*D*2}
    s_mov_b32 s33, 896
    s_mul_i32 s37, s32, 28
    v_add_u32 v12, s37, v12
    s_mov_b32 s41, {f2u(QSCALE):#x}
    s_branch prep_qkv2""")
    A.label("prep_k")
    A(f"""s_mov_b32 s24, s6
    s_and_b32 s25, s7, 0xffff
    s_mov_b32 s26, {D*DH*2}
    s_mov_b32 s33, 56
    s_branch prep_qkv2""")
    A.label("prep_v")
    A(f"""v_add_u32 v12, s37, v3
    v_and_b32 v13, 3, v12
    v_lshrrev_b32 v14, 3, v12
    v_lshl_add_u32 v13, v14, 2, v13
    v_bfe_u32 v14, v12, 2, 1
    v_mul_u32_u24 v14, 14, v14
    v_cmp_gt_u32 vcc, 14, v13
    v_add_u32 v12, v13, v14
    s_mov_b32 s24, s8
    s_and_b32 s25, s9, 0xffff
    s_mov_b32 s26, {D*DH*2}
    s_mov_b32 s33, 56""")
    A.label("prep_qkv2")
    A(f"""s_mov_b32 s35, 2048
    s_mul_i32 s36, s32, {28*1024}
    s_mul_i32 s37, s39, {14*1024}
    s_add_u32 s36, s36, s37
    s_add_u32 s36, s36, {WQKV}
    v_lshlrev_b32 v11, 10, v8""")
    A.label("prep_c2")
    A.fence(4)
    A(f"""s_lshl_b32 s37, s38, 8
    s_add_u32 s36, s36, s37
    v_add3_u32 v11, v11, v9, s36
    s_lshl_b32 s34, s33, 5
    s_mul_i32 s36, s39, 224
    v_lshlrev_b32 v10, 3, v4
    v_add_u32 v10, s36, v10
    v_mul_lo_u32 v10, v10, s33
    v_lshl_add_u32 v10, v12, 1, v10
    v_mov_b32 v13, 0x7fffff00
    v_cndmask_b32 v10, v13, v10, vcc""")
    A.label("prep_common")
    A.fence(4)
    A("s_mov_b32 s36, 0")
    R = 16
    for u in range(7):
        A("s_mov_b32 s37, s36")
        for j in range(8):
            A(f"buffer_load_ushort v{R+8*u+j}, v10, s[24:27], s37 offen")
            if j < 7: A("s_add_u32 s37, s37, s33")
        if u < 6: A("s_add_u32 s36, s36, s34")
    ptouch(A)
    A("""s_cmp_eq_u32 s40, 1
    s_cbranch_scc1 prep_center""")
    A("s_mov_b32 s36, 0")
    for u in range(7):
        A(f"s_waitcnt vmcnt({min(63, 48 - 8*u + u + PT)})")
        b = R + 8*u
        for p in range(4):
            A(f"v_lshl_or_b32 v{b+p}, v{b+2*p+1}, 16, v{b+2*p}")
        A(f"buffer_store_dwordx4 v[{b}:{b+3}], v11, s[28:31], s36 offen")
        if u < 6: A("s_add_u32 s36, s36, s35")
    A("s_endpgm")
    A.label("prep_center")
    A.fence(2)
    A("v_mov_b32 v12, 0\n v_mov_b32 v13, 0")
    for i in range(56):
        if i % 8 == 0: A(f"s_waitcnt vmcnt({48 - i + PT})")
        A(f"v_lshlrev_b32 v{R+i}, 16, v{R+i}")
        A(f"v_add_f32 v{12 + (i&1)}, v{12 + (i&1)}, v{R+i}")
    A(f"""v_add_f32 v12, v12, v13
    v_lshlrev_b32 v14, 2, v0
    ds_write_b32 v14, v12
    s_lshl_b32 s37, s38, 8
    v_lshlrev_b32 v14, 2, v3
    v_add_u32 v14, s37, v14
    s_waitcnt lgkmcnt(0)
    s_barrier""")
    for i in range(8):
        A(f"ds_read_b32 v{72+i}, v14 offset:{(i>>2)*512 + (i&3)*64}")
    A("s_waitcnt lgkmcnt(0)")
    for i in range(1, 8):
        A(f"v_add_f32 v72, v72, v{72+i}")
    A(f"v_mul_f32 v72, {f2u(1.0/448):#x}, v72\n v_mul_f32 v72, s41, v72\n s_mov_b32 s36, 0")
    for u in range(7):
        b = R + 8*u
        for j in range(8):
            A(f"v_fma_f32 v{b+j}, v{b+j}, s41, -v72")
        for p in range(4):
            A(f"v_cvt_pk_bf16_f32 v{b+p}, v{b+2*p}, v{b+2*p+1}")
        A(f"buffer_store_dwordx4 v[{b}:{b+3}], v11, s[28:31], s36 offen")
        if u < 6: A("s_add_u32 s36, s36, s35")
    A.label("prep_end")
    A("s_endpgm")
    KERNELS.append((name, 264, 256, 1024, 80, 80))

RING_SLOT = 28 * 1024
EXCH = 4 * RING_SLOT
LDS_TOTAL = 160 * 1024
ORS = 240

uid = [0]
def signal(A, ph, younger=0, idx="s17"):
    u = uid[0]; uid[0] += 1
    A(f"""s_waitcnt vmcnt({younger})
    s_barrier
    s_cmp_lg_u32 s3, 0
    s_cbranch_scc1 sig_done{u}
    s_add_u32 s40, s22, {ph * 8 * 128}
    s_lshl_b32 s41, {idx}, 2
    s_add_u32 s40, s40, s41
    v_mov_b32 v1, 1
    v_mov_b32 v2, 0
    s_mov_b64 exec, 1
    s_cmp_eq_u32 s38, 0
    s_cbranch_scc1 sig_slow{u}
    buffer_store_dword v1, v2, s[8:11], s40 offen
    s_branch sig_rest{u}""")
    A.label(f"sig_slow{u}")
    A("buffer_store_dword v1, v2, s[8:11], s40 offen sc1")
    A.label(f"sig_rest{u}")
    A("s_mov_b64 exec, -1")
    A.label(f"sig_done{u}")

def waitflags(A, ph, mask_sgpr):
    u = uid[0]; uid[0] += 1
    A(f"""s_add_u32 s40, s22, {ph * 8 * 128}
    v_lshrrev_b32 v2, 2, v6
    s_mov_b32 exec_lo, s{mask_sgpr}
    s_mov_b32 exec_hi, 0
    s_mov_b32 s41, {SPIN_LIMIT}""")
    A.label(f"poll{u}")
    A(f"""buffer_load_dword v1, v2, s[8:11], s40 offen sc1
    s_sub_u32 s41, s41, 1
    s_cmp_eq_u32 s41, 0
    s_cbranch_scc1 poll_out{u}
    s_waitcnt vmcnt(0)
    v_cmp_ne_u32 vcc, 1, v1
    s_cbranch_vccnz poll{u}""")
    A.label(f"poll_out{u}")
    A("s_mov_b64 exec, -1")

def store2(A, insts):
    u = uid[0]; uid[0] += 1
    A(f"s_cmp_eq_u32 s38, 0\n s_cbranch_scc1 st_slow{u}")
    for t in insts: A(t)
    A(f"s_branch st_done{u}")
    A.label(f"st_slow{u}")
    for t in insts: A(t + " sc1" if t.startswith("buffer_store") else t)
    A.label(f"st_done{u}")

def k_main(A):
    for name, mode in (("main0_kernel", 0), ("main1_kernel", 1), ("qkv0_kernel", 2)):
        kstart(A, name)
        A(f"""s_cmp_ge_u32 s2, 256
        s_cbranch_scc1 main_end
        s_load_dwordx2 s[6:7], s[0:1], 88
        s_load_dwordx2 s[4:5], s[0:1], 72
        s_mov_b32 s39, {mode}
        s_mov_b32 s20, {LBASE[mode & 1]}
        s_mov_b32 s21, {X0 if mode != 1 else LBASE[0] + X2_O}
        s_mov_b32 s22, {FL + (mode & 1) * 4 * 8 * 128}
        s_branch main_body""")
        KERNELS.append((name, 256, 256, LDS_TOTAL, 512, 256))
    A.label("main_body")
    A.reset_hz()
    st(A, "start")
    A(f"""v_lshrrev_b32 v1, 6, v0
    v_and_b32 v2, 63, v0
    v_lshlrev_b32 v6, 4, v2
    v_readfirstlane_b32 s3, v1
    s_and_b32 s16, s2, 7
    s_lshr_b32 s17, s2, 3
    s_lshl_b32 s18, s16, 3
    s_lshr_b32 s40, s17, 2
    s_add_u32 s18, s18, s40
    s_and_b32 s19, s17, 3
    s_lshl_b32 s40, s16, 7
    s_add_u32 s22, s22, s40
    s_mov_b32 s38, 0
    s_getreg_b32 s37, hwreg(HW_REG_XCC_ID)
    s_and_b32 s37, s37, 15
    s_add_u32 s37, s37, 1
    s_waitcnt lgkmcnt(0)""")
    srd(A, 8, 6, 7, WS_BYTES)
    srd(A, 12, 4, 5, X_BYTES)
    A("""s_cmp_eq_u32 s39, 2
    s_cbranch_scc1 qkv_entry""")
    phase_att(A)
    phase_gu(A)
    phase_down(A)
    phase_qkv(A)
    A.label("main_end")
    A("s_endpgm")
    att_fallback(A)

QR, OR_, SR, PR, KVR, XR, SP = 16, 48, 112, 144, 160, 224, 240
def q(j, s): return f"v[{QR+8*j+4*s}:{QR+8*j+4*s+3}]"
def sb(t): return SR + 16 * (t & 1)

def phase_att(A):
    vm = VM(A)
    def o(j): return f"v[{OR_+16*j}:{OR_+16*j+15}]"
    def pb(t): return PR + 8 * (t & 1)
    def kv(kt, i): b = KVR + 16 * (kt & 3) + 4 * i; return f"v[{b}:{b+3}]"
    def cvt(dst, src): A(f"v_cvt_pk_bf16_f32 v{dst}, v{src}, v{src+1}")
    A(f"""v_bfe_u32 v3, v0, 3, 2
    v_bfe_u32 v4, v0, 5, 1
    v_and_b32 v5, 7, v0
    v_lshlrev_b32 v7, 11, v3
    v_lshl_add_u32 v7, v4, 9, v7
    v_lshl_add_u32 v7, v5, 4, v7
    v_lshrrev_b32 v8, 2, v6
    s_lshl_b32 s40, s18, 15
    s_lshl_b32 s41, s19, 7
    s_add_u32 s40, s40, s41
    s_add_u32 s40, s40, s20
    s_add_u32 s41, s20, {KN_O}
    s_lshl_b32 s23, s3, 16
    s_add_u32 s23, s23, s20
    s_add_u32 s23, s23, {KV_O}
    s_mov_b32 s33, s23""")
    def kvload(kt, i):
        vm.issue(f"buffer_load_dwordx4 {kv(kt, i)}, v6, s[8:11], s23 offen offset:{1024*i}", f"kv{kt}")
        if i == 3: A("s_add_u32 s23, s23, 4096")
    def qload(jl):
        A(f"s_xor_b32 s42, s3, {jl}\n s_lshl_b32 s42, s42, 13\n s_add_u32 s42, s40, s42")
        for s_ in range(2):
            vm.issue(f"buffer_load_dwordx4 {q(jl, s_)}, v7, s[8:11], s42 offen offset:{1024*s_}", "q")
    vm.issue("buffer_load_dword v9, v8, s[8:11], s41 offen", "kn")
    for jl in range(4): qload(jl)
    for i in range(4): kvload(0, i)
    A(f"""s_lshl_b32 s42, s17, 2
    s_add_u32 s42, s42, s22
    s_and_b32 s43, s39, 1
    s_mul_i32 s43, s43, {4*8*128 - 8*128}
    s_sub_u32 s42, s42, s43
    s_add_u32 s36, s42, 0x2000
    v_mov_b32 v1, s37
    v_mov_b32 v2, 0
    s_mov_b64 exec, 1""")
    vm.issue("buffer_store_dword v1, v2, s[8:11], s36 offen sc1", "xcc")
    A(f"""s_mov_b64 exec, -1
    s_lshl_b32 s42, s17, 2
    s_sub_u32 s36, s36, s42
    s_mul_i32 s24, s3, {98*1024}
    s_add_u32 s24, s24, {WO}
    s_and_b32 s42, s17, 15
    s_mul_i32 s25, s42, {28*7*1024}
    s_mul_i32 s26, s3, {7*1024}
    s_add_u32 s25, s25, s26
    s_add_u32 s25, s25, {WGU}""")
    for i in range(4): kvload(1, i)
    A(f"""v_bfe_u32 v10, v0, 4, 2
    v_lshrrev_b32 v11, 1, v10
    v_lshlrev_b32 v11, 9, v11
    v_lshl_add_u32 v11, v5, 4, v11
    v_and_b32 v12, 1, v10
    v_lshl_add_u32 v11, v12, 3, v11
    s_mul_i32 s28, s18, {28*1024}
    s_add_u32 s28, s28, s26
    s_lshl_b32 s42, s19, 7
    s_add_u32 s28, s28, s42""")
    for r in range(64): A(f"v_mov_b32 v{OR_+r}, 0")
    for r in range(8): A(f"v_mov_b32 v{pb(1)+r}, 0")
    for r in range(4): A(f"v_mov_b32 v{KVR+48+12+r}, 0")
    for r in range(4): A(f"v_mov_b32 v{sb(1)+12+r}, 0")
    for i in range(4): kvload(2, i)
    st(A, "pro")
    vm.wait("kn")
    A("""v_max_f32_dpp v9, v9, v9 row_shr:1 row_mask:0xf bank_mask:0xf
    v_max_f32_dpp v9, v9, v9 row_shr:2 row_mask:0xf bank_mask:0xf
    v_max_f32_dpp v9, v9, v9 row_shr:4 row_mask:0xf bank_mask:0xf
    v_max_f32_dpp v9, v9, v9 row_shr:8 row_mask:0xf bank_mask:0xf
    v_readlane_b32 s30, v9, 15
    v_readlane_b32 s31, v9, 31
    v_readlane_b32 s34, v9, 47
    v_readlane_b32 s35, v9, 63
    v_mov_b32 v9, s30
    v_max_f32 v9, s31, v9
    v_max_f32 v9, s34, v9
    v_max_f32 v9, s35, v9""")
    vm.wait("q")
    for j in range(4): A(f"v_mov_b32 v{12+j}, 0")
    for r in range(8):
        for j in range(4):
            A(f"v_dot2_f32_bf16 v{12+j}, v{QR+8*j+r}, v{QR+8*j+r}, v{12+j}")
    for j in range(4): A(f"v_mov_b32 v{SP+j}, v{12+j}")
    for j in range(4): A(f"v_permlane32_swap_b32 v{12+j}, v{SP+j}")
    for j in range(4): A(f"v_add_f32 v{12+j}, v{12+j}, v{SP+j}")
    for j in range(4): A(f"v_mul_f32 v{12+j}, v{12+j}, v9")
    for j in range(4): A(f"v_sqrt_f32 v{12+j}, v{12+j}")
    for j in range(4): A(f"v_mul_f32 v{12+j}, {f2u(1.01):#x}, v{12+j}")
    A(f"""v_max3_f32 v{SP}, v12, v13, v14
    v_max_f32 v{SP}, v{SP}, v15
    v_mov_b32 v{SP+1}, {f2u(BOUND_T):#x}
    v_cmp_nle_f32 vcc, v{SP}, v{SP+1}
    s_cbranch_vccnz attn_fallback""")
    A("s_mov_b32 exec_lo, 0")
    for j in range(4): A(f"v_cvt_pk_bf16_f32 v{QR+8*j+6}, -v{12+j}, 0")
    A("s_mov_b32 exec_lo, -1")
    A.label("attn_main")
    A.fence(2)
    st(A, "bnd")
    vm.wait("kv0")
    A(f"v_mfma_f32_32x32x16_bf16 v[{sb(0)}:{sb(0)+15}], {kv(0,0)}, {q(0,0)}, 0")
    A(f"v_mfma_f32_32x32x16_bf16 v[{sb(0)}:{sb(0)+15}], {kv(0,1)}, {q(0,1)}, v[{sb(0)}:{sb(0)+15}]")
    wo_dst = {}; wo_next = [0]
    def woload(dst):
        idx = wo_next[0]; wo_next[0] += 1
        wo_dst[idx] = dst
        vm.issue(f"buffer_load_dwordx4 {dst}, v6, s[8:11], s24 offen offset:{1024*(idx & 3)}", f"wo{idx}")
        if idx & 3 == 3: A("s_add_u32 s24, s24, 4096")
    extra = []
    for nt in range(7):
        extra.append(lambda nt=nt: (A("s_add_u32 s42, s28, s21") if nt == 0 else (A("s_add_u32 s42, s42, 4096") if nt == 4 else None),
                     vm.issue(f"buffer_load_dwordx2 v[{XR+2*nt}:{XR+2*nt+1}], v11, s[8:11], s42 offen offset:{1024*(nt%4)}", "x")))
    spare_dst = [f"a[{4*i}:{4*i+3}]" for i in range(64)] + [f"v[{SP+4*i}:{SP+4*i+3}]" for i in range(4)]
    def dma_piece(p, i):
        if i == 0: A(f"s_add_u32 m0, s26, {p * RING_SLOT}")
        if i == 4: A(f"s_add_u32 m0, s26, {p * RING_SLOT + 4096}\n s_add_u32 s25, s25, 4096")
        vm.issue(f"buffer_load_dwordx4 v6, s[8:11], s25 offen offset:{1024*(i&3)} lds", f"w{p}")
        if i == 6: A(f"s_add_u32 s25, s25, {RING_SLOT - 4096}")
    dmas = [(p, i) for p in range(4) for i in range(7)]
    k = 0
    while spare_dst or dmas:
        if spare_dst:
            d = spare_dst.pop(0); extra.append(lambda d=d: woload(d))
        if k % 2 == 1 and spare_dst:
            d = spare_dst.pop(0); extra.append(lambda d=d: woload(d))
        if dmas and (k % 2 == 0 or not spare_dst):
            p, i = dmas.pop(0); extra.append(lambda p=p, i=i: dma_piece(p, i))
        k += 1
    def pop():
        if extra: extra.pop(0)()
    def exps(base):
        for r in range(4): A(f"v_exp_f32 v{base+r}, v{base+r}")
    NT = 64
    for t in range(NT):
        kt, j = t >> 2, t & 3
        t1 = t + 1; kt1, j1 = t1 >> 2, t1 & 3
        tm = t - 1; ktm, jm = (tm >> 2), tm & 3
        S, Sn, Sp, P, Pp = sb(t), sb(t1), sb(tm), pb(t), pb(tm)
        if j == 3 and kt < 15: vm.wait(f"kv{kt+1}")
        if t in (16, 32, 48): st(A, f"att{t}")
        cvt(Pp+6, Sp+12); cvt(Pp+7, Sp+14)
        if t1 < NT: A(f"v_mfma_f32_32x32x16_bf16 v[{Sn}:{Sn+15}], {kv(kt1,0)}, {q(j1,0)}, 0")
        if kt + 3 < 16: kvload(kt + 3, j)
        else: woload(kv(kt + 3, j))
        exps(S)
        cvt(P+0, S+0); cvt(P+1, S+2)
        if t1 < NT: A(f"v_mfma_f32_32x32x16_bf16 v[{Sn}:{Sn+15}], {kv(kt1,1)}, {q(j1,1)}, v[{Sn}:{Sn+15}]")
        exps(S+4)
        cvt(P+2, S+4); cvt(P+3, S+6)
        A(f"v_mfma_f32_32x32x16_bf16 {o(jm)}, {kv(ktm,3)}, v[{Pp+4}:{Pp+7}], {o(jm)}")
        pop()
        if len(extra) > NT - 1 - t: pop()
        exps(S+8)
        cvt(P+4, S+8); cvt(P+5, S+10)
        A(f"v_mfma_f32_32x32x16_bf16 {o(j)}, {kv(kt,2)}, v[{P}:{P+3}], {o(j)}")
        exps(S+12)
    assert not extra
    t = NT - 1
    for i in range(8): woload(f"v[{QR+4*i}:{QR+4*i+3}]")
    for i in range(4): woload(f"v[{sb(t+1)+4*i}:{sb(t+1)+4*i+3}]")
    woload(kv(15, 1)); woload(kv(15, 2))
    cvt(pb(t)+6, sb(t)+12); cvt(pb(t)+7, sb(t)+14)
    A(f"v_mfma_f32_32x32x16_bf16 {o(3)}, {kv(15,3)}, v[{pb(t)+4}:{pb(t)+7}], {o(3)}")
    i = 0
    while wo_next[0] < 98:
        woload(f"v[{sb(t)+4*i}:{sb(t)+4*i+3}]"); i += 1
    assert i <= 4
    vm.issue("buffer_load_dword v9, v8, s[8:11], s36 offen sc1", "tab")
    st(A, "loop")
    for jl in range(1, 4):
        A(f"s_xor_b32 s42, s3, {jl}\n s_mul_i32 s42, s42, 12288\n s_add_u32 s42, s42, {EXCH}\n v_add_u32 v{11+jl}, s42, v6")
    for jl in range(1, 4):
        for rq in range(4):
            r = OR_ + 16*jl + 4*rq
            A(f"ds_write_b128 v{11+jl}, v[{r}:{r+3}] offset:{(jl-1)*4096 + rq*1024}")
    A(f"""s_mul_i32 s42, s3, 12288
    s_add_u32 s42, s42, {EXCH}
    v_add_u32 v12, s42, v6
    v_mul_u32_u24 v13, {ORS}, v5
    v_mul_u32_u24 v14, 56, v3
    v_mul_u32_u24 v15, 28, v4
    v_add3_u32 v13, v13, v14, v15
    v_add_u32 v13, s42, v13
    v_mul_u32_u24 v14, {ORS}, v5
    v_lshl_add_u32 v14, v10, 4, v14
    v_add_u32 v14, {EXCH}, v14
    v_lshrrev_b32 v15, 1, v10
    v_mul_u32_u24 v15, {12288 - 224}, v15
    v_add_u32 v15, v15, v14
    s_waitcnt lgkmcnt(0)
    s_barrier""")
    for i in range(3):
        for rq in range(4):
            r = OR_ + 16*(i+1) + 4*rq
            A(f"ds_read_b128 v[{r}:{r+3}], v12 offset:{i*4096 + rq*1024}")
    for i in range(3):
        A(f"s_waitcnt lgkmcnt({8 - 4*i})")
        for r in range(0, 16, 2): A(f"v_pk_add_f32 v[{OR_+r}:{OR_+r+1}], v[{OR_+r}:{OR_+r+1}], v[{OR_+16*(i+1)+r}:{OR_+16*(i+1)+r+1}]")
    A(f"v_rcp_f32 v{OR_+15}, v{OR_+14}")
    for r in range(0, 14, 2): A(f"v_pk_mul_f32 v[{OR_+r}:{OR_+r+1}], v[{OR_+r}:{OR_+r+1}], v[{OR_+14}:{OR_+15}] op_sel:[0,1] op_sel_hi:[1,1]")
    for p in range(7): cvt(OR_+16+p, OR_+2*p)
    for p in range(3): A(f"ds_write2_b32 v13, v{OR_+16+2*p}, v{OR_+17+2*p} offset0:{2*p} offset1:{2*p+1}")
    A(f"ds_write_b32 v13, v{OR_+22} offset:24")
    vm.wait("tab")
    A(f"""s_mov_b32 exec_hi, 0
    v_cmp_ne_u32 vcc, s37, v9
    s_mov_b32 exec_hi, -1
    s_cmp_eq_u32 vcc_lo, 0
    s_cselect_b32 s38, 1, 0
    s_waitcnt lgkmcnt(0)
    s_barrier""")
    st(A, "exch")
    BR = OR_
    for ks in range(14):
        k0 = 32 * ks
        off = (k0 // 112) * 12288 + (k0 % 112) * 2
        A(f"ds_read_b128 v[{BR+4*ks}:{BR+4*ks+3}], {'v15' if ks in (3, 10) else 'v14'} offset:{off}")
    ACC = [104, 108, PR, PR+4, PR+8, PR+12, KVR+48]
    for ks in range(14):
        A(f"s_waitcnt lgkmcnt({13-ks})")
        for nt in range(7):
            idx = ks*7 + nt
            acc = f"v[{ACC[nt]}:{ACC[nt]+3}]"
            A(f"v_mfma_f32_16x16x32_bf16 {acc}, {wo_dst[idx]}, v[{BR+4*ks}:{BR+4*ks+3}], {'0' if ks == 0 else acc}")
            if ks == 12:
                pass
    st(A, "oproj")
    X1, PK = 48, 76
    for nt in range(7):
        A(f"""v_lshlrev_b32 v{X1+4*nt}, 16, v{XR+2*nt}
        v_and_b32 v{X1+4*nt+1}, 0xffff0000, v{XR+2*nt}
        v_lshlrev_b32 v{X1+4*nt+2}, 16, v{XR+2*nt+1}
        v_and_b32 v{X1+4*nt+3}, 0xffff0000, v{XR+2*nt+1}""")
    for nt in range(7):
        for r in (0, 2): A(f"v_pk_add_f32 v[{X1+4*nt+r}:{X1+4*nt+r+1}], v[{X1+4*nt+r}:{X1+4*nt+r+1}], v[{ACC[nt]+r}:{ACC[nt]+r+1}]")
    for p in range(14): cvt(PK+p, X1+2*p)
    A(f"""s_add_u32 s42, s28, s20
    s_add_u32 s42, s42, {X1_O}
    s_add_u32 s43, s42, 4096
    s_mov_b32 exec_lo, 0x00ff00ff
    s_mov_b32 exec_hi, 0x00ff00ff""")
    store2(A, [f"buffer_store_dwordx2 v[{PK+2*nt}:{PK+2*nt+1}], v11, s[8:11], s{42 + nt//4} offen offset:{1024*(nt%4)}" for nt in range(7)])
    A("s_mov_b64 exec, -1")
    signal(A, 0)
    A.fence(2)

def att_fallback(A):
    LDS_MX = EXCH
    A.label("attn_fallback")
    A.reset_hz()
    A.fence(8)
    FK = SP + 4
    for j in range(4): A(f"v_mov_b32 v{12+j}, 0xff800000")
    A("s_mov_b32 s34, 16")
    A.label("attn_fb_loop")
    A(f"""buffer_load_dwordx4 v[{FK}:{FK+3}], v6, s[8:11], s33 offen
    buffer_load_dwordx4 v[{FK+4}:{FK+7}], v6, s[8:11], s33 offen offset:1024
    s_add_u32 s33, s33, 4096
    s_waitcnt vmcnt(0)""")
    for j in range(4):
        S = sb(0)
        A(f"v_mfma_f32_32x32x16_bf16 v[{S}:{S+15}], v[{FK}:{FK+3}], {q(j,0)}, 0")
        A(f"v_mfma_f32_32x32x16_bf16 v[{S}:{S+15}], v[{FK+4}:{FK+7}], {q(j,1)}, v[{S}:{S+15}]")
        for r in range(0, 16, 2): A(f"v_max3_f32 v{12+j}, v{S+r}, v{S+r+1}, v{12+j}")
    A("""s_sub_u32 s34, s34, 1
    s_cmp_lg_u32 s34, 0
    s_cbranch_scc1 attn_fb_loop""")
    A.fence(8)
    for j in range(4): A(f"v_mov_b32 v{SP+j}, v{12+j}")
    for j in range(4): A(f"v_permlane32_swap_b32 v{12+j}, v{SP+j}")
    for j in range(4): A(f"v_max_f32 v{12+j}, v{12+j}, v{SP+j}")
    A(f"v_and_b32 v{SP}, 31, v0\n v_lshlrev_b32 v{SP}, 2, v{SP}\n v_add_u32 v{SP}, {LDS_MX}, v{SP}")
    for jl in range(4):
        A(f"""s_xor_b32 s42, s3, {jl}
        s_lshl_b32 s42, s42, 7
        v_add_u32 v{SP+4+jl}, s42, v{SP}
        s_lshl_b32 s42, s3, 9
        v_add_u32 v{SP+1}, s42, v{SP+4+jl}
        ds_write_b32 v{SP+1}, v{12+jl}""")
    A("s_waitcnt lgkmcnt(0)\n s_barrier")
    for jl in range(4):
        for w in range(4): A(f"ds_read_b32 v{SP+8+w}, v{SP+4+jl} offset:{512*w}")
        A(f"""s_waitcnt lgkmcnt(0)
        v_max3_f32 v{12+jl}, v{SP+8}, v{SP+9}, v{SP+10}
        v_max_f32 v{12+jl}, v{12+jl}, v{SP+11}""")
    A("s_mov_b32 exec_lo, 0")
    for j in range(4):
        m = 12 + j
        A(f"""v_sub_f32 v{m}, 0, v{m}
        v_and_b32 v{SP}, 0xffff0000, v{m}
        v_sub_f32 v{m}, v{m}, v{SP}
        v_and_b32 v{SP+1}, 0xffff0000, v{m}
        v_sub_f32 v{m}, v{m}, v{SP+1}
        v_lshrrev_b32 v{SP}, 16, v{SP}
        v_or_b32 v{QR+8*j+6}, v{SP}, v{SP+1}
        v_lshrrev_b32 v{QR+8*j+7}, 16, v{m}""")
    A("s_mov_b32 exec_lo, -1\n s_branch attn_main")

def phase_gu(A):
    XF, AC = 16, 128
    vm = VM(A)
    RING = 5
    def dma(p):
        A(f"s_add_u32 m0, s26, {(p % RING) * RING_SLOT}")
        for i in range(4): vm.issue(f"buffer_load_dwordx4 v6, s[8:11], s25 offen offset:{1024*i} lds", f"w{p}")
        A(f"s_add_u32 m0, s26, {(p % RING) * RING_SLOT + 4096}\n s_add_u32 s25, s25, 4096")
        for i in range(3): vm.issue(f"buffer_load_dwordx4 v6, s[8:11], s25 offen offset:{1024*i} lds", f"w{p}")
        A(f"s_add_u32 s25, s25, {RING_SLOT - 4096}")
    dma(4)
    A(f"""s_lshr_b32 s42, s17, 4
    s_lshl_b32 s42, s42, 2
    s_add_u32 s42, s42, s3
    s_lshl_b32 s27, s16, 3
    s_add_u32 s27, s27, s42
    s_lshl_b32 s42, s42, 2
    s_lshl_b32 s44, 15, s42
    s_mul_i32 s23, s27, {28*1024}
    s_add_u32 s23, s23, s20
    s_add_u32 s23, s23, {X1_O}
    v_add_u32 v7, 0x10000, v6
    v_add_u32 v8, 0x20000, v6
    v_mov_b32 v9, 0x3f803f80""")
    for i in range(4): A(f"v_mov_b32 v{10+i}, 0")
    A(f"""s_lshr_b32 s42, s17, 2
    s_min_u32 s42, s42, 6
    s_mul_i32 s24, s42, {112*2*1024}
    s_mul_i32 s43, s3, {28*2*1024}
    s_add_u32 s24, s24, s43
    s_add_u32 s24, s24, {WD}
    s_and_b32 s43, s3, 1
    s_lshl_b32 s43, s43, 10
    v_add_u32 v4, s43, v6
    v_xor_b32 v5, 1024, v4""")
    def wf(ks, at): b = 28 * (ks & 1) + 4 * at; return f"a[{b}:{b+3}]"
    def rd(ks, at):
        p, kk = ks >> 2, ks & 3
        off = (p % RING) * RING_SLOT + kk * 7168 + at * 1024
        base = "v6" if off < 65536 else ("v7" if off < 131072 else "v8")
        A(f"ds_read_b128 {wf(ks, at)}, {base} offset:{off & 65535}")
    for at in range(7): rd(0, at)
    st(A, "gu_w")
    waitflags(A, 0, 44)
    st(A, "gu_go")
    vm.ops.append("drained")
    def xload(ks):
        vm.issue(f"buffer_load_dwordx4 v[{XF+4*ks}:{XF+4*ks+3}], v6, s[8:11], s23 offen offset:{1024*(ks&3)} sc1", f"x{ks}")
        if ks & 3 == 3: A("s_add_u32 s23, s23, 4096")
    for ks in range(8): xload(ks)
    extra = [lambda ks=ks: xload(ks) for ks in range(8, 28)]
    def wdload(i):
        ks, a = i >> 1, i & 1
        vm.issue(f"buffer_load_dwordx4 a[{64+4*i}:{67+4*i}], {'v4' if a == 0 else 'v5'}, s[8:11], s24 offen offset:{2048*(ks&1)}", "wd")
        if i & 3 == 3: A("s_add_u32 s24, s24, 4096")
    extra2 = [lambda i=i: wdload(i) for i in range(48)]
    for ks in range(28):
        p = ks >> 2
        nxt = ks + 1
        if nxt < 28 and (nxt & 3) == 0:
            if p + 1 >= 4:
                vm.wait(f"w{p+1}")
                A("s_barrier")
            elif p in (1, 2):
                A("s_barrier")
            if p in (1, 2): dma(p + RING - 1)
        vm.wait(f"x{ks}")
        if ks in (1, 8, 16, 20, 24): st(A, f"gu{ks}")
        for at in range(7):
            A(f"s_waitcnt lgkmcnt(6)" if nxt < 28 else f"s_waitcnt lgkmcnt({6-at})")
            acc = f"v[{AC+16*at}:{AC+16*at+15}]"
            A(f"v_mfma_f32_32x32x16_bf16 {acc}, {wf(ks, at)}, v[{XF+4*ks}:{XF+4*ks+3}], {'0' if ks == 0 else acc}")
            if nxt < 28: rd(nxt, at)
            if at < 4:
                r = XF + 4*ks + at
                A(f"v_dot2_f32_bf16 v{10+(at&1)}, v{r}, v9, v{10+(at&1)}\n v_dot2_f32_bf16 v{12+(at&1)}, v{r}, v{r}, v{12+(at&1)}")
            elif extra: extra.pop(0)()
            elif extra2: extra2.pop(0)()
    assert not extra and not extra2
    st(A, "gu_mm")
    A(f"""v_add_f32 v10, v10, v11
    v_add_f32 v12, v12, v13
    v_mov_b32 v11, v10
    v_mov_b32 v13, v12
    v_permlane32_swap_b32 v10, v11
    v_permlane32_swap_b32 v12, v13
    v_add_f32 v10, v10, v11
    v_add_f32 v12, v12, v13
    v_mul_f32 v10, {f2u(1.0/448):#x}, v10
    v_mul_f32 v12, {f2u(1.0/448):#x}, v12
    v_fma_f32 v12, -v10, v10, v12
    v_max_f32 v12, 0, v12
    v_add_f32 v12, {f2u(1e-5):#x}, v12
    v_rcp_f32 v10, v12
    s_mul_i32 s42, s27, {112*1024}
    s_and_b32 s43, s17, 15
    s_mul_i32 s43, s43, {7*1024}
    s_add_u32 s42, s42, s43
    s_add_u32 s42, s42, s20
    s_add_u32 s42, s42, {H_O}
    s_add_u32 s43, s42, 4096
    v_mov_b32 v11, v10""")
    for at in range(7):
        b = AC + 16 * at
        for r in range(0, 8, 2): A(f"v_pk_mul_f32 v[{b+r}:{b+r+1}], v[{b+r}:{b+r+1}], v[{b+8+r}:{b+9+r}]")
        for r in range(0, 8, 2): A(f"v_pk_mul_f32 v[{b+r}:{b+r+1}], v[{b+r}:{b+r+1}], v[10:11]")
        for p in range(4): A(f"v_cvt_pk_bf16_f32 v{16+4*at+p}, v{b+2*p}, v{b+2*p+1}")
    store2(A, [f"buffer_store_dwordx4 v[{16+4*at}:{19+4*at}], v6, s[8:11], s{42 + at//4} offen offset:{1024*(at%4)}" for at in range(7)])
    signal(A, 1)
    A.fence(2)
    for i in range(8):
        ks, a = i >> 1, i & 1
        A(f"buffer_load_dwordx4 v[{208+4*i}:{211+4*i}], {'v4' if a == 0 else 'v5'}, s[8:11], s24 offen offset:{2048*(ks&1)}")
        if i == 3: A("s_add_u32 s24, s24, 4096")

def qkv_prefetch_ops(A, vm):
    ops = []
    def one(lt, ks):
        if lt == 0 and ks == 0:
            A(f"s_mul_i32 s45, s3, {7*1024}\n s_add_u32 s45, s45, {WQKV}")
        if ks == 0:
            if lt < 4: A(f"s_xor_b32 s42, s3, {lt}\n s_lshl_b32 s43, s19, 2\n s_add_u32 s42, s42, s43")
            else: A("s_and_b32 s42, s19, 1\n s_add_u32 s42, s42, 16")
            A(f"s_mul_i32 s42, s42, {28*1024}\n s_add_u32 s42, s42, s45\n s_add_u32 s43, s42, 4096")
        b = 64 + 28*lt + 4*ks
        vm.issue(f"buffer_load_dwordx4 a[{b}:{b+3}], v6, s[8:11], s{42 + ks//4} offen offset:{1024*(ks%4)}", "wq")
    return [lambda lt=lt, ks=ks: one(lt, ks) for lt in range(5) for ks in range(7)]
def qkv_prefetch(A, vm):
    for f in qkv_prefetch_ops(A, vm): f()

def phase_down(A):
    vm = VM(A)
    HF = 16
    A(f"""s_cmp_ge_u32 s17, 28
    s_cbranch_scc1 down_skip
    s_and_b32 s28, s17, 3
    s_lshr_b32 s29, s17, 2
    s_lshr_b32 s42, s28, 1
    s_lshl_b32 s42, s42, 2
    s_add_u32 s42, s42, s3
    s_lshl_b32 s42, s42, 2
    s_lshl_b32 s44, 15, s42
    s_lshl_b32 s30, s16, 3
    s_lshl_b32 s42, s28, 1
    s_add_u32 s30, s30, s42
    s_lshr_b32 s42, s3, 1
    s_add_u32 s30, s30, s42
    s_xor_b32 s31, s30, 1
    s_mul_i32 s23, s30, {112*1024}
    s_mul_i32 s25, s31, {112*1024}
    s_mul_i32 s42, s3, {28*1024}
    s_add_u32 s42, s42, s20
    s_add_u32 s42, s42, {H_O}
    s_add_u32 s23, s23, s42
    s_add_u32 s25, s25, s42
    s_mul_i32 s34, s30, {28*1024}
    s_lshl_b32 s42, s29, 12
    s_add_u32 s34, s34, s42
    s_and_b32 s42, s3, 1
    s_lshl_b32 s42, s42, 11
    s_add_u32 s34, s34, s42
    s_add_u32 s42, s34, s20
    s_add_u32 s42, s42, {X1_O}""")
    A("""buffer_load_dwordx4 v[240:243], v6, s[8:11], s42 offen sc1
    buffer_load_dwordx4 v[244:247], v6, s[8:11], s42 offen offset:1024 sc1""")
    st(A, "dn_w")
    waitflags(A, 1, 44)
    st(A, "dn_go")
    def hf(ks, t): b = HF + 8 * (ks % 24) + 4 * t; return f"v[{b}:{b+3}]"
    def wd(ks, a):
        i = ks * 2 + a
        return f"a[{64+4*i}:{67+4*i}]" if ks < 24 else f"v[{208+4*(i-48)}:{211+4*(i-48)}]"
    def load(ks):
        vm.issue(f"buffer_load_dwordx4 {hf(ks,0)}, v6, s[8:11], s23 offen offset:{1024*(ks&3)} sc1", f"k{ks}")
        vm.issue(f"buffer_load_dwordx4 {hf(ks,1)}, v6, s[8:11], s25 offen offset:{1024*(ks&3)} sc1", f"k{ks}")
        if ks & 3 == 3: A("s_add_u32 s23, s23, 4096\n s_add_u32 s25, s25, 4096")
    PRE = 4
    for ks in range(PRE): load(ks)
    nl = PRE
    pf = qkv_prefetch_ops(A, vm)
    for ks in range(28):
        vm.wait(f"k{ks}")
        n = 0
        for t in range(2):
            for a in range(2):
                lp = a + 2*t
                acc = f"a[{16*lp}:{16*lp+15}]"
                A(f"v_mfma_f32_32x32x16_bf16 {acc}, {wd(ks,a)}, {hf(ks,t)}, {'0' if ks == 0 else acc}")
                if lp in (0, 2) and nl < 28 and (nl < 24 or nl - 24 < ks): load(nl); nl += 1
                elif nl == 28 and pf and lp != 3 and (35 - len(pf)) < 2 * ks: pf.pop(0)()
    assert nl == 28 and not pf
    st(A, "dn_mm")
    for lp in range(1, 4):
        A(f"s_xor_b32 s42, s3, {lp}\n s_mul_i32 s42, s42, 12288\n v_add_u32 v{8+lp}, s42, v6")
    for lp in range(1, 4):
        for rq in range(4):
            r = 16*lp + 4*rq
            A(f"ds_write_b128 v{8+lp}, a[{r}:{r+3}] offset:{(lp-1)*4096 + rq*1024}")
    A(f"""s_mul_i32 s42, s3, 12288
    v_add_u32 v12, s42, v6""")
    for r in range(16): A(f"v_accvgpr_read_b32 v{16+r}, a{r}")
    for p in range(8):
        A(f"v_lshlrev_b32 v{80+2*p}, 16, v{240+p}\n v_and_b32 v{81+2*p}, 0xffff0000, v{240+p}")
    for r in range(0, 16, 2): A(f"v_pk_add_f32 v[{16+r}:{17+r}], v[{16+r}:{17+r}], v[{80+r}:{81+r}]")
    A("s_waitcnt lgkmcnt(0)\n s_barrier")
    for i in range(3):
        for rq in range(4):
            r = 32 + 16*i + 4*rq
            A(f"ds_read_b128 v[{r}:{r+3}], v12 offset:{i*4096 + rq*1024}")
    for i in range(3):
        A(f"s_waitcnt lgkmcnt({8-4*i})")
        for r in range(0, 16, 2): A(f"v_pk_add_f32 v[{16+r}:{17+r}], v[{16+r}:{17+r}], v[{32+16*i+r}:{33+16*i+r}]")
    for p in range(8): A(f"v_cvt_pk_bf16_f32 v{96+p}, v{16+2*p}, v{17+2*p}")
    A(f"""s_cmp_eq_u32 s39, 1
    s_cbranch_scc0 down_x2
    v_and_b32 v3, 31, v0
    v_bfe_u32 v4, v0, 5, 1
    v_mul_u32_u24 v5, 896, v3
    v_lshl_add_u32 v5, v4, 4, v5
    s_mul_i32 s42, s30, {32*896}
    s_lshl_b32 s43, s29, 7
    s_add_u32 s42, s42, s43
    s_and_b32 s43, s3, 1
    s_lshl_b32 s43, s43, 6
    s_add_u32 s42, s42, s43
    buffer_store_dwordx4 v[96:99], v5, s[12:15], s42 offen
    buffer_store_dwordx4 v[100:103], v5, s[12:15], s42 offen offset:32""")
    if STAMPS:
        A("s_waitcnt vmcnt(0)")
        main_flush(A, 3)
    A("s_endpgm")
    A.label("down_x2")
    A(f"s_add_u32 s42, s34, s20\n s_add_u32 s42, s42, {X2_O}")
    store2(A, ["buffer_store_dwordx4 v[96:99], v6, s[8:11], s42 offen", "buffer_store_dwordx4 v[100:103], v6, s[8:11], s42 offen offset:1024"])
    signal(A, 2)
    A("s_branch qkv_wait")
    A.label("down_skip")
    A.fence(4)
    A("s_cmp_eq_u32 s39, 1\n s_cbranch_scc1 main_end")
    qkv_prefetch(A, VM(A))
    A.label("qkv_wait")
    A.fence(4)
    A(f"""s_lshr_b32 s42, s17, 3
    s_lshl_b32 s44, 0x1111111, s42
    s_add_u32 s21, s20, {X2_O}
    s_mov_b32 s20, {LBASE[1]}""")
    st(A, "qkv_w")
    waitflags(A, 2, 44)
    A("s_branch qkv_go")
    A.label("qkv_entry")
    A.fence(4)
    qkv_prefetch(A, VM(A))
    A.label("qkv_go")
    A.fence(4)

def main_flush(A, kid):
    A("s_memtime s[96:97]\n s_memrealtime s[100:101]\n s_mov_b64 exec, -1\n s_waitcnt lgkmcnt(0)")
    for k in range(25): A(f"v_writelane_b32 v1, s{46+2*k}, {k}")
    A("v_writelane_b32 v1, s96, 28\n v_writelane_b32 v1, s98, 29\n v_writelane_b32 v1, s100, 30\n v_writelane_b32 v1, s38, 31")
    A(f"""v_and_b32 v2, 63, v0
    v_lshrrev_b32 v3, 6, v0
    v_lshlrev_b32 v2, 2, v2
    v_lshl_add_u32 v2, v3, 7, v2
    s_lshl_b32 s40, s2, 10
    s_lshl_b32 s41, s39, 20
    s_add_u32 s40, s40, s41
    s_add_u32 s40, s40, {G.TS_BASE}
    s_mov_b32 exec_hi, 0
    buffer_store_dword v1, v2, s[8:11], s40 offen""")

def phase_qkv(A):
    vm = VM(A)
    XF, AC = 96, 16
    st(A, "qkv_go")
    A(f"""s_mul_i32 s42, s18, {28*1024}
    s_mul_i32 s43, s3, {7*1024}
    s_add_u32 s42, s42, s43
    s_add_u32 s42, s42, s21
    s_add_u32 s43, s42, 4096""")
    for ks in range(7):
        vm.issue(f"buffer_load_dwordx4 v[{XF+4*ks}:{XF+4*ks+3}], v6, s[8:11], s{42 + ks//4} offen offset:{1024*(ks%4)} sc1", f"x{ks}")
    A("v_mov_b32 v9, 0x3f803f80")
    for i in range(4): A(f"v_mov_b32 v{10+i}, 0")
    A("""v_and_b32 v3, 31, v0
    v_bfe_u32 v4, v0, 5, 1""")
    def w(lt, ks): b = 64 + 28*lt + 4*ks; return f"a[{b}:{b+3}]"
    def mm(kind):
        for ks in range(7):
            vm.wait(f"x{ks}")
            x = f"v[{XF+4*ks}:{XF+4*ks+3}]"
            for lt in ([4] if kind else []) + [0, 1, 2, 3]:
                acc = f"v[{AC+16*lt}:{AC+16*lt+15}]"
                c = "0" if ks == 0 else acc
                if lt == 4 and kind == 2: A(f"v_mfma_f32_32x32x16_bf16 {acc}, {x}, {w(lt,ks)}, {c}")
                else: A(f"v_mfma_f32_32x32x16_bf16 {acc}, {w(lt,ks)}, {x}, {c}")
                if lt < 4:
                    r = XF + 4*ks + lt
                    A(f"v_dot2_f32_bf16 v{10+(lt&1)}, v{r}, v9, v{10+(lt&1)}\n v_dot2_f32_bf16 v{12+(lt&1)}, v{r}, v{r}, v{12+(lt&1)}")
    A("s_cmp_eq_u32 s19, 0\n s_cbranch_scc1 qkv_mmk\n s_cmp_eq_u32 s19, 1\n s_cbranch_scc1 qkv_mmv")
    mm(0)
    A("s_branch qkv_red")
    A.label("qkv_mmk"); A.reset_hz(); mm(1); A("s_branch qkv_red")
    A.label("qkv_mmv"); A.reset_hz(); mm(2)
    A.label("qkv_red")
    A.fence(4)
    st(A, "qkv_mm")
    XT, ST, SC = 49152, 65536, 65536 + 2048
    A(f"""v_add_f32 v10, v10, v11
    v_add_f32 v11, v12, v13
    v_lshlrev_b32 v13, 3, v0
    v_add_u32 v13, {ST}, v13
    ds_write_b64 v13, v[10:11]""")
    for lp in range(1, 4):
        A(f"s_xor_b32 s42, s3, {lp}\n s_mul_i32 s42, s42, 12288\n v_add_u32 v{124+lp}, s42, v6")
    for lp in range(1, 4):
        for rq in range(4):
            r = AC + 16*lp + 4*rq
            A(f"ds_write_b128 v{124+lp}, v[{r}:{r+3}] offset:{(lp-1)*4096 + rq*1024}")
    A(f"""s_cmp_ge_u32 s19, 2
    s_cbranch_scc1 qkv_nox
    s_cmp_eq_u32 s3, 0
    s_cbranch_scc1 qkv_nox
    s_lshl_b32 s42, s3, 12
    s_add_u32 s42, s42, {XT - 4096}
    v_add_u32 v124, s42, v6""")
    for rq in range(4):
        r = AC + 64 + 4*rq
        A(f"ds_write_b128 v124, v[{r}:{r+3}] offset:{rq*1024}")
    A.label("qkv_nox")
    A(f"""s_mul_i32 s42, s3, 12288
    v_add_u32 v12, s42, v6
    v_lshlrev_b32 v13, 3, v3
    v_add_u32 v13, {ST}, v13
    s_waitcnt lgkmcnt(0)
    s_barrier""")
    for wv in range(4):
        for hf in range(2):
            i = wv*2 + hf
            A(f"ds_read_b64 v[{128+2*i}:{129+2*i}], v13 offset:{wv*512 + hf*256}")
    for i in range(3):
        for rq in range(4):
            r = AC + 16*(i+1) + 4*rq
            A(f"ds_read_b128 v[{r}:{r+3}], v12 offset:{i*4096 + rq*1024}")
    A("s_waitcnt lgkmcnt(12)")
    for sz in (8, 4, 2):
        for i in range(0, sz, 2):
            A(f"v_pk_add_f32 v[{128+i}:{129+i}], v[{128+i}:{129+i}], v[{128+sz+i}:{129+sz+i}]")
    A(f"""v_mul_f32 v128, {f2u(1.0/448):#x}, v128
    v_mul_f32 v129, {f2u(1.0/448):#x}, v129
    v_fma_f32 v129, -v128, v128, v129
    v_max_f32 v129, 0, v129
    v_add_f32 v129, {f2u(1e-5):#x}, v129
    v_rsq_f32 v10, v129""")
    for i in range(3):
        A(f"s_waitcnt lgkmcnt({8-4*i})")
        for r in range(0, 16, 2): A(f"v_pk_add_f32 v[{AC+r}:{AC+r+1}], v[{AC+r}:{AC+r+1}], v[{AC+16*(i+1)+r}:{AC+16*(i+1)+r+1}]")
    A("v_mov_b32 v11, v10")
    for r in range(0, 16, 2): A(f"v_pk_mul_f32 v[{AC+r}:{AC+r+1}], v[{AC+r}:{AC+r+1}], v[10:11]")
    for p in range(8): A(f"v_cvt_pk_bf16_f32 v{144+p}, v{AC+2*p}, v{AC+2*p+1}")
    A(f"""s_lshl_b32 s42, s18, 15
    s_lshl_b32 s43, s19, 13
    s_add_u32 s42, s42, s43
    s_lshl_b32 s43, s3, 11
    s_add_u32 s42, s42, s43
    s_add_u32 s42, s42, s20
    buffer_store_dwordx4 v[144:147], v6, s[8:11], s42 offen
    buffer_store_dwordx4 v[148:151], v6, s[8:11], s42 offen offset:1024
    s_cmp_ge_u32 s19, 2
    s_cbranch_scc1 qkv_fin
    s_cmp_lg_u32 s3, 0
    s_cbranch_scc1 qkv_fin
    v_add_u32 v12, {XT}, v6""")
    E = AC + 64
    for i in range(3):
        for rq in range(4):
            r = AC + 16*i + 4*rq
            A(f"ds_read_b128 v[{r}:{r+3}], v12 offset:{i*4096 + rq*1024}")
    A(f"""s_lshl_b32 s42, s18, 12
    s_add_u32 s42, s42, s20
    s_add_u32 s42, s42, {KV_O}""")
    for i in range(3):
        A(f"s_waitcnt lgkmcnt({8-4*i})")
        for r in range(0, 16, 2): A(f"v_pk_add_f32 v[{E+r}:{E+r+1}], v[{E+r}:{E+r+1}], v[{AC+16*i+r}:{AC+16*i+r+1}]")
    A("s_cmp_eq_u32 s19, 1\n s_cbranch_scc1 qkv_epi_v")
    for r in range(0, 16, 2): A(f"v_pk_mul_f32 v[{E+r}:{E+r+1}], v[{E+r}:{E+r+1}], v[10:11]")
    for p in range(8): A(f"v_cvt_pk_bf16_f32 v{152+p}, v{E+2*p}, v{E+2*p+1}")
    A("v_mov_b32 v20, 0\n v_mov_b32 v21, 0")
    for p in range(8): A(f"v_dot2_f32_bf16 v{20+(p&1)}, v{152+p}, v{152+p}, v{20+(p&1)}")
    A(f"""s_mov_b32 exec_lo, 0
    v_mov_b32 v158, 0x3f803f80
    v_mov_b32 v159, 0x00003f80
    s_mov_b32 exec_lo, -1
    buffer_store_dwordx4 v[152:155], v6, s[8:11], s42 offen
    buffer_store_dwordx4 v[156:159], v6, s[8:11], s42 offen offset:1024
    v_add_f32 v20, v20, v21
    v_mov_b32 v21, v20
    v_permlane32_swap_b32 v20, v21
    v_add_f32 v20, v20, v21
    v_max_f32_dpp v20, v20, v20 row_shr:1 row_mask:0xf bank_mask:0xf
    v_max_f32_dpp v20, v20, v20 row_shr:2 row_mask:0xf bank_mask:0xf
    v_max_f32_dpp v20, v20, v20 row_shr:4 row_mask:0xf bank_mask:0xf
    v_max_f32_dpp v20, v20, v20 row_shr:8 row_mask:0xf bank_mask:0xf
    v_readlane_b32 s30, v20, 15
    v_readlane_b32 s31, v20, 31
    v_mov_b32 v21, s30
    v_max_f32 v21, s31, v21
    s_lshl_b32 s42, s18, 2
    s_add_u32 s42, s42, s20
    s_add_u32 s42, s42, {KN_O}
    v_mov_b32 v22, 0
    s_mov_b64 exec, 1
    buffer_store_dword v21, v22, s[8:11], s42 offen
    s_branch qkv_fin""")
    A.label("qkv_epi_v")
    A.fence(4)
    A(f"""v_lshlrev_b32 v20, 2, v3
    v_add_u32 v20, {SC}, v20
    ds_write_b32 v20, v10
    v_lshlrev_b32 v21, 4, v4
    v_add_u32 v21, {SC}, v21
    v_and_b32 v22, 27, v3
    v_cmp_eq_u32 vcc, 26, v22
    v_mov_b32 v23, 0
    v_mov_b32 v24, 1.0
    v_cndmask_b32 v23, v23, v24, vcc
    s_waitcnt lgkmcnt(0)""")
    for qq in range(4): A(f"ds_read_b128 v[{40+4*qq}:{43+4*qq}], v21 offset:{32*qq}")
    A("s_waitcnt lgkmcnt(0)")
    for r in range(16): A(f"v_fma_f32 v{E+r}, v{E+r}, v{40+r}, v23")
    for p in range(8): A(f"v_cvt_pk_bf16_f32 v{152+p}, v{E+2*p}, v{E+2*p+1}")
    A(f"""buffer_store_dwordx4 v[152:155], v6, s[8:11], s42 offen offset:2048
    buffer_store_dwordx4 v[156:159], v6, s[8:11], s42 offen offset:3072""")
    A.label("qkv_fin")
    if STAMPS:
        A.fence(4)
        A("s_waitcnt vmcnt(0)")
        main_flush(A, 3)

ALL = [k_prep, k_main]
LAUNCHES = ["prep_kernel", "qkv0_kernel", "main0_kernel", "main1_kernel"]
```

```python
import struct, sys, os
from asm import Asm
from layout import *
import gen as G
from gen import f2u, kstart, srd, VM, STAMPS, KERNELS, finish
import gen2
from gen2 import st, SNAMES, k_prep, main_flush, uid, SPIN_LIMIT, BOUND_T

E = lambda k, d: int(os.environ.get(k, str(d)))
EL = lambda k, d: [int(x) for x in os.environ.get(k, d).split(",") if x]
ATT_ST, GU_ST, DN_ST = EL("ATT_ST", "16,32,48"), EL("GU_ST", "1"), EL("DN_ST", "")
SC1 = " sc1" if E("LD_SC1", 1) else ""
RING_SLOT = 28 * 1024
EXCH = 4 * RING_SLOT
LDS_TOTAL = 160 * 1024
ORS = 240
WQ_LDS = 61440

QR, OR_, SR, PR, KVR, XR, SP = 16, 48, 112, 144, 160, 224, 240
def q(j, s): return f"v[{QR+8*j+4*s}:{QR+8*j+4*s+3}]"
def sb(t): return SR + 16 * (t & 1)

def store2(A, vm, insts, tag, force=""):
    u = uid[0]; uid[0] += 1
    if force:
        for t in insts: A(t + " " + force)
        vm.ops += [tag] * len(insts)
        return
    A(f"s_cmp_eq_u32 s38, 0\n s_cbranch_scc1 st_slow{u}")
    for t in insts: A(t)
    A(f"s_branch st_done{u}")
    A.label(f"st_slow{u}")
    for t in insts: A(t + " sc1")
    A.label(f"st_done{u}")
    vm.ops += [tag] * len(insts)

def signal(A, vm, ph, tag, idx="s17"):
    u = uid[0]; uid[0] += 1
    vm.wait(tag)
    A(f"""s_barrier
    s_cmp_lg_u32 s3, 0
    s_cbranch_scc1 sig_done{u}
    s_add_u32 s40, s22, {ph * 8 * 128}
    s_lshl_b32 s41, {idx}, 2
    s_add_u32 s40, s40, s41
    v_mov_b32 v1, 1
    v_mov_b32 v2, 0
    s_mov_b64 exec, 1
    s_cmp_eq_u32 s38, 0
    s_cbranch_scc1 sig_slow{u}
    buffer_store_dword v1, v2, s[8:11], s40 offen
    s_branch sig_rest{u}""")
    A.label(f"sig_slow{u}")
    A("buffer_store_dword v1, v2, s[8:11], s40 offen sc1")
    A.label(f"sig_rest{u}")
    A("s_mov_b64 exec, -1")
    A.label(f"sig_done{u}")
    A.fence(1)

def waitflags(A, vm, ph, mask_sgpr):
    u = uid[0]; uid[0] += 1
    A(f"""s_add_u32 s40, s22, {ph * 8 * 128}
    v_lshrrev_b32 v2, 2, v6
    s_mov_b32 exec_lo, s{mask_sgpr}
    s_mov_b32 exec_hi, 0
    s_mov_b32 s41, {SPIN_LIMIT}""")
    A.label(f"poll{u}")
    A(f"""buffer_load_dword v1, v2, s[8:11], s40 offen sc1
    s_sub_u32 s41, s41, 1
    s_cmp_eq_u32 s41, 0
    s_cbranch_scc1 poll_out{u}
    s_waitcnt vmcnt(0)
    v_cmp_ne_u32 vcc, 1, v1
    s_cbranch_vccnz poll{u}""")
    A.label(f"poll_out{u}")
    A("s_waitcnt vmcnt(0)\n s_mov_b64 exec, -1")
    vm.ops = ["drained"]

class VM2(VM):
    def wait(self, *tags):
        idx = [i for i, t in enumerate(self.ops) if t in tags]
        if not idx: return
        n = len(self.ops) - 1 - max(idx)
        self.A(f"s_waitcnt vmcnt({min(n, 63)})")

def k_main(A):
    for name, mode in (("main0_kernel", 0), ("main1_kernel", 1), ("qkv0_kernel", 2)):
        kstart(A, name)
        A(f"""s_cmp_ge_u32 s2, 256
        s_cbranch_scc1 main_end
        s_load_dwordx2 s[6:7], s[0:1], 88
        s_load_dwordx2 s[4:5], s[0:1], 72
        s_mov_b32 s39, {mode}
        s_mov_b32 s20, {ABASE[mode & 1]}
        s_mov_b32 s28, {LBASE[mode & 1]}
        s_mov_b32 s21, {X0 if mode != 1 else LBASE[0] + X2_O}
        s_mov_b32 s22, {FL + (mode & 1) * 4 * 8 * 128}
        s_branch main_body""")
        KERNELS.append((name, 256, 256, LDS_TOTAL, 512, 256))
    A.label("main_body")
    A.reset_hz()
    st(A, "start")
    A(f"""v_lshrrev_b32 v1, 6, v0
    v_and_b32 v2, 63, v0
    v_lshlrev_b32 v6, 4, v2
    v_readfirstlane_b32 s3, v1
    s_and_b32 s16, s2, 7
    s_lshr_b32 s17, s2, 3
    s_lshl_b32 s18, s16, 3
    s_lshr_b32 s40, s17, 2
    s_add_u32 s18, s18, s40
    s_and_b32 s19, s17, 3
    s_lshl_b32 s40, s16, 7
    s_add_u32 s22, s22, s40
    s_mov_b32 s38, 0
    s_mov_b32 s10, {WS_BYTES}
    s_mov_b32 s11, 0x20000
    s_mov_b32 s14, {X_BYTES}
    s_mov_b32 s15, 0x20000
    s_mul_i32 s26, s3, {7*1024}
    s_cmp_eq_u32 s39, 2
    s_cbranch_scc1 qkv_entry""")
    vm = VM2(A)
    wd = WdPrefetch(A, vm)
    phase_att(A, vm, wd)
    phase_gu(A, vm, wd)
    phase_down(A, vm)
    phase_qkv(A)
    A.label("main_end")
    A("s_endpgm")
    att_fallback(A)

def srd_fin(A):
    A("""s_waitcnt lgkmcnt(0)
    s_mov_b32 s8, s6
    s_and_b32 s9, s7, 0xffff
    s_mov_b32 s12, s4
    s_and_b32 s13, s5, 0xffff""")

class WdPrefetch:
    def __init__(self, A, vm): self.A, self.vm, self.i, self.ar = A, vm, 0, 238
    def setup(self):
        self.A(f"""s_lshr_b32 s42, s17, 2
        s_min_u32 s42, s42, 6
        s_mul_i32 s35, s42, {112*2*1024}
        s_mul_i32 s43, s3, {28*2*1024}
        s_add_u32 s35, s35, s43
        s_add_u32 s35, s35, {WD}
        s_and_b32 s43, s3, 1
        s_lshl_b32 s43, s43, 10
        v_add_u32 v238, s43, v6
        v_xor_b32 v239, 1024, v238""")
    def dst(self, i): return f"a[{64+4*i}:{67+4*i}]" if i < 48 else f"v[{208+4*(i-48)}:{211+4*(i-48)}]"
    def one(self):
        i = self.i; self.i += 1
        ks, a = i >> 1, i & 1
        self.vm.issue(f"buffer_load_dwordx4 {self.dst(i)}, v{self.ar+a}, s[8:11], s35 offen offset:{2048*(ks&1)}", "wd")
        if i & 3 == 3: self.A("s_add_u32 s35, s35, 4096")

def dma_piece(A, vm, p, i):
    sl = (p % 5) * RING_SLOT
    if i == 0: A(f"s_add_u32 m0, s26, {sl}")
    if i == 4: A(f"s_add_u32 m0, s26, {sl + 4096}\n s_add_u32 s25, s25, 4096")
    vm.issue(f"buffer_load_dwordx4 v6, s[8:11], s25 offen offset:{1024*(i&3)} lds", f"w{p}")
    if i == 6: A(f"s_add_u32 s25, s25, {RING_SLOT - 4096}")

def phase_att(A, vm, wd):
    def o(j): return f"v[{OR_+16*j}:{OR_+16*j+15}]"
    def pb(t): return PR + 8 * (t & 1)
    def kv(kt, i): b = KVR + 16 * (kt & 3) + 4 * i; return f"v[{b}:{b+3}]"
    def cvt(dst, src): A(f"v_cvt_pk_bf16_f32 v{dst}, v{src}, v{src+1}")
    A(f"""v_bfe_u32 v3, v0, 3, 2
    v_bfe_u32 v4, v0, 5, 1
    v_and_b32 v5, 7, v0
    v_lshlrev_b32 v7, 11, v3
    v_lshl_add_u32 v7, v4, 9, v7
    v_lshl_add_u32 v7, v5, 4, v7
    v_lshrrev_b32 v8, 2, v6
    s_lshl_b32 s40, s18, 15
    s_lshl_b32 s41, s19, 7
    s_add_u32 s40, s40, s41
    s_add_u32 s40, s40, s20
    s_add_u32 s41, s28, {KN_O}
    s_lshl_b32 s23, s3, 16
    s_add_u32 s23, s23, s28
    s_add_u32 s23, s23, {KV_O}
    s_mov_b32 s33, s23""")
    for jl in range(4):
        A(f"s_xor_b32 s{28+jl}, s3, {jl}\n s_lshl_b32 s{28+jl}, s{28+jl}, 13\n s_add_u32 s{28+jl}, s40, s{28+jl}")
    for r in range(64): A(f"v_mov_b32 v{OR_+r}, 0")
    for r in range(8): A(f"v_mov_b32 v{pb(1)+r}, 0")
    for r in range(4): A(f"v_mov_b32 v{KVR+48+12+r}, 0")
    for r in range(4): A(f"v_mov_b32 v{sb(1)+12+r}, 0")
    srd_fin(A)
    def kvload(kt, i):
        vm.issue(f"buffer_load_dwordx4 {kv(kt, i)}, v6, s[8:11], s23 offen offset:{1024*i}", f"kv{kt}" if i < 2 else f"vv{kt}")
        if i == 3: A("s_add_u32 s23, s23, 4096")
    def qload(jl, s_):
        vm.issue(f"buffer_load_dwordx4 {q(jl, s_)}, v7, s[8:11], s{28+jl} offen offset:{1024*s_}", f"q{s_}")
    vm.issue("buffer_load_dword v9, v8, s[8:11], s41 offen", "kn")
    for jl in range(4): qload(jl, 1)
    qload(0, 0)
    for i in range(2): kvload(0, i)
    for jl in range(1, 4): qload(jl, 0)
    for i in range(2, 4): kvload(0, i)
    A(f"""s_getreg_b32 s37, hwreg(HW_REG_XCC_ID)
    s_and_b32 s37, s37, 15
    s_add_u32 s37, s37, 1
    s_and_b32 s43, s39, 1
    s_lshl_b32 s43, s43, 3
    s_add_u32 s43, s43, s16
    s_lshl_b32 s36, s43, 12
    s_add_u32 s36, s36, {XT_BASE}
    s_lshl_b32 s42, s17, 7
    s_add_u32 s42, s42, s36
    v_mov_b32 v1, s37
    v_mov_b32 v2, 0
    s_cmp_eq_u32 s3, 0
    s_cselect_b32 exec_lo, 1, 0
    s_mov_b32 exec_hi, 0""")
    vm.issue("buffer_store_dword v1, v2, s[8:11], s42 offen sc1", "xcc")
    A(f"""s_mov_b64 exec, -1
    s_mul_i32 s24, s3, {98*1024}
    s_add_u32 s24, s24, {WO}
    s_and_b32 s42, s17, 15
    s_mul_i32 s25, s42, {28*7*1024}
    s_add_u32 s25, s25, s26
    s_add_u32 s25, s25, {WGU}
    v_bfe_u32 v10, v0, 4, 2
    v_lshrrev_b32 v11, 1, v10
    v_lshlrev_b32 v11, 9, v11
    v_lshl_add_u32 v11, v5, 4, v11
    v_and_b32 v12, 1, v10
    v_lshl_add_u32 v11, v12, 3, v11
    s_mul_i32 s34, s18, {28*1024}
    s_add_u32 s34, s34, s26
    s_lshl_b32 s42, s19, 7
    s_add_u32 s34, s34, s42""")
    wd.setup()
    for i in range(4): kvload(1, i)
    st(A, "pro")
    vm.wait("kn")
    A("""v_max_f32_dpp v9, v9, v9 row_shr:1 row_mask:0xf bank_mask:0xf
    v_max_f32_dpp v9, v9, v9 row_shr:2 row_mask:0xf bank_mask:0xf
    v_max_f32_dpp v9, v9, v9 row_shr:4 row_mask:0xf bank_mask:0xf
    v_max_f32_dpp v9, v9, v9 row_shr:8 row_mask:0xf bank_mask:0xf
    v_readlane_b32 s28, v9, 15
    v_readlane_b32 s29, v9, 31
    v_readlane_b32 s30, v9, 47
    v_readlane_b32 s31, v9, 63
    v_mov_b32 v9, s28
    v_max_f32 v9, s29, v9
    v_max_f32 v9, s30, v9
    v_max_f32 v9, s31, v9""")
    vm.wait("q1")
    A("s_mov_b32 exec_lo, 0")
    for j in range(4): A(f"v_lshlrev_b32 v{12+j}, 16, v{QR+8*j+6}")
    for j in range(4): A(f"v_mul_f32 v{12+j}, v{12+j}, v9")
    A(f"""v_max3_f32 v{SP}, v12, v13, v14
    v_max_f32 v{SP}, v{SP}, v15
    v_mov_b32 v{SP+1}, {f2u(BOUND_T):#x}
    v_cmp_nle_f32 vcc, v{SP}, v{SP+1}""")
    for j in range(4): A(f"v_cvt_pk_bf16_f32 v{QR+8*j+6}, -v{12+j}, 0")
    A("s_mov_b32 exec_lo, -1\n s_cbranch_vccnz attn_fallback")
    A.label("attn_main")
    A.fence(2)
    st(A, "bnd")
    for i in range(4): kvload(2, i)
    vm.wait("kv0")
    A(f"v_mfma_f32_32x32x16_bf16 v[{sb(0)}:{sb(0)+15}], {kv(0,0)}, {q(0,0)}, 0")
    A(f"v_mfma_f32_32x32x16_bf16 v[{sb(0)}:{sb(0)+15}], {kv(0,1)}, {q(0,1)}, v[{sb(0)}:{sb(0)+15}]")
    vm.wait("vv0")
    wo_dst = {}; wo_next = [0]
    def woload(dst):
        idx = wo_next[0]; wo_next[0] += 1
        wo_dst[idx] = dst
        vm.issue(f"buffer_load_dwordx4 {dst}, v6, s[8:11], s24 offen offset:{1024*(idx & 3)}", f"wo{idx}")
        if idx & 3 == 3: A("s_add_u32 s24, s24, 4096")
    def xres(nt):
        if nt == 0: A("s_add_u32 s42, s34, s21")
        if nt == 4: A("s_add_u32 s42, s42, 4096")
        vm.issue(f"buffer_load_dwordx2 v[{XR+2*nt}:{XR+2*nt+1}], v11, s[8:11], s42 offen offset:{1024*(nt%4)}", "x")
    spare_dst = [f"a[{4*i}:{4*i+3}]" for i in range(64)] + [f"v[{SP+4*i}:{SP+4*i+3}]" for i in range(4)]
    extra = [lambda d=d: woload(d) for d in spare_dst]
    NDMA = E("ATT_DMA", 3)
    dm = [lambda p=p, i=i: dma_piece(A, vm, p, i) for p in range(NDMA) for i in range(7)] + [lambda nt=nt: xres(nt) for nt in range(7)]
    merged = []
    while extra or dm:
        merged += extra[:3]; extra = extra[3:]
        merged += dm[:1]; dm = dm[1:]
    extra = merged
    def pop():
        if extra: extra.pop(0)()
    def exps(base):
        for r in range(4): A(f"v_exp_f32 v{base+r}, v{base+r}")
    NT = 64
    START = E("ATT_XSTART", 4)
    HT = EL("ATT_HT", "")
    def htouch(k):
        if k == 0:
            A(f"""s_lshr_b32 s28, s17, 4
            s_lshl_b32 s28, s28, 2
            s_add_u32 s28, s28, s3
            s_lshl_b32 s29, s16, 3
            s_add_u32 s28, s28, s29
            s_mul_i32 s28, s28, {112*1024}
            s_and_b32 s29, s17, 15
            s_mul_i32 s29, s29, {7*1024}
            s_add_u32 s28, s28, s29
            s_add_u32 s28, s28, s20
            s_add_u32 s28, s28, {H_O}
            v_lshlrev_b32 v12, 7, v5""")
        if k == 4: A("s_add_u32 s28, s28, 4096")
        vm.issue(f"buffer_load_dword v13, v12, s[8:11], s28 offen offset:{1024*(k&3)}", "touch")
    for t in range(NT):
        kt, j = t >> 2, t & 3
        t1 = t + 1; kt1, j1 = t1 >> 2, t1 & 3
        tm = t - 1; ktm, jm = (tm >> 2), tm & 3
        S, Sn, Sp, P, Pp = sb(t), sb(t1), sb(tm), pb(t), pb(tm)
        if j == 3 and kt < 15: vm.wait(f"kv{kt+1}", f"vv{kt+1}")
        if t in ATT_ST: st(A, f"att{t}")
        cvt(Pp+6, Sp+12); cvt(Pp+7, Sp+14)
        if t1 < NT: A(f"v_mfma_f32_32x32x16_bf16 v[{Sn}:{Sn+15}], {kv(kt1,0)}, {q(j1,0)}, 0")
        if kt + 3 < 16: kvload(kt + 3, j)
        else: woload(kv(kt + 3, j))
        exps(S)
        cvt(P+0, S+0); cvt(P+1, S+2)
        if t1 < NT: A(f"v_mfma_f32_32x32x16_bf16 v[{Sn}:{Sn+15}], {kv(kt1,1)}, {q(j1,1)}, v[{Sn}:{Sn+15}]")
        if t in HT: htouch(HT.index(t))
        exps(S+4)
        cvt(P+2, S+4); cvt(P+3, S+6)
        A(f"v_mfma_f32_32x32x16_bf16 {o(jm)}, {kv(ktm,3)}, v[{Pp+4}:{Pp+7}], {o(jm)}")
        if t >= START:
            pop()
            if len(extra) > NT - 1 - t: pop()
        exps(S+8)
        cvt(P+4, S+8); cvt(P+5, S+10)
        A(f"v_mfma_f32_32x32x16_bf16 {o(j)}, {kv(kt,2)}, v[{P}:{P+3}], {o(j)}")
        exps(S+12)
    assert not extra
    t = NT - 1
    A("v_and_b32 v12, 31, v0\n v_lshlrev_b32 v12, 7, v12")
    vm.issue("buffer_load_dword v9, v12, s[8:11], s36 offen sc1", "tab")
    for i in range(8): woload(f"v[{QR+4*i}:{QR+4*i+3}]")
    cvt(pb(t)+6, sb(t)+12); cvt(pb(t)+7, sb(t)+14)
    A(f"v_mfma_f32_32x32x16_bf16 {o(3)}, {kv(15,3)}, v[{pb(t)+4}:{pb(t)+7}], {o(3)}")
    st(A, "loop")
    late = [lambda i=i: woload(f"v[{sb(t+1)+4*i}:{sb(t+1)+4*i+3}]") for i in range(4)]
    late += [lambda: woload(kv(15, 1)), lambda: woload(kv(15, 2))]
    late += [lambda i=i: woload(f"v[{sb(t)+4*i}:{sb(t)+4*i+3}]") for i in range(4)]
    late += [lambda p=p, i=i: dma_piece(A, vm, p, i) for p in range(NDMA, 4) for i in range(7)]
    for jl in range(1, 4):
        A(f"s_xor_b32 s42, s3, {jl}\n s_mul_i32 s42, s42, 12288\n s_add_u32 s42, s42, {EXCH}\n v_add_u32 v{11+jl}, s42, v6")
    for jl in range(1, 4):
        for rq in range(4):
            r = OR_ + 16*jl + 4*rq
            A(f"ds_write_b128 v{11+jl}, v[{r}:{r+3}] offset:{(jl-1)*4096 + rq*1024}")
            if late: late.pop(0)()
    assert wo_next[0] == 98
    A(f"""s_mul_i32 s42, s3, 12288
    s_add_u32 s42, s42, {EXCH}
    v_add_u32 v12, s42, v6
    v_mul_u32_u24 v13, {ORS}, v5
    v_mul_u32_u24 v14, 56, v3
    v_mul_u32_u24 v15, 28, v4
    v_add3_u32 v13, v13, v14, v15
    v_add_u32 v13, s42, v13
    v_mul_u32_u24 v14, {ORS}, v5
    v_lshl_add_u32 v14, v10, 4, v14
    v_add_u32 v14, {EXCH}, v14
    v_lshrrev_b32 v15, 1, v10
    v_mul_u32_u24 v15, {12288 - 224}, v15
    v_add_u32 v15, v15, v14""")
    vm.wait("tab")
    A(f"""s_mov_b32 exec_hi, 0
    v_cmp_ne_u32 vcc, s37, v9
    s_mov_b32 exec_hi, -1
    s_cmp_eq_u32 vcc_lo, 0
    s_cselect_b32 s38, 1, 0
    s_waitcnt lgkmcnt(0)
    s_barrier""")
    for i in range(3):
        for rq in range(4):
            r = OR_ + 16*(i+1) + 4*rq
            A(f"ds_read_b128 v[{r}:{r+3}], v12 offset:{i*4096 + rq*1024}")
    while late: late.pop(0)()
    for i in range(3):
        A(f"s_waitcnt lgkmcnt({8 - 4*i})")
        for r in range(0, 16, 2): A(f"v_pk_add_f32 v[{OR_+r}:{OR_+r+1}], v[{OR_+r}:{OR_+r+1}], v[{OR_+16*(i+1)+r}:{OR_+16*(i+1)+r+1}]")
    A(f"v_rcp_f32 v{OR_+15}, v{OR_+14}")
    for r in range(0, 14, 2): A(f"v_pk_mul_f32 v[{OR_+r}:{OR_+r+1}], v[{OR_+r}:{OR_+r+1}], v[{OR_+14}:{OR_+15}] op_sel:[0,1] op_sel_hi:[1,1]")
    for p in range(7): cvt(OR_+16+p, OR_+2*p)
    for p in range(3): A(f"ds_write2_b32 v13, v{OR_+16+2*p}, v{OR_+17+2*p} offset0:{2*p} offset1:{2*p+1}")
    A(f"ds_write_b32 v13, v{OR_+22} offset:24\n s_waitcnt lgkmcnt(0)\n s_barrier")
    st(A, "exch")
    BR = OR_
    for ks in range(14):
        k0 = 32 * ks
        off = (k0 // 112) * 12288 + (k0 % 112) * 2
        A(f"ds_read_b128 v[{BR+4*ks}:{BR+4*ks+3}], {'v15' if ks in (3, 10) else 'v14'} offset:{off}")
    ACC = [104, 108, PR, PR+4, PR+8, PR+12, KVR+48]
    X1, PK = KVR, KVR + 28
    WDO = E("OPROJ_WD", 20)
    for ks in range(14):
        A(f"s_waitcnt lgkmcnt({13-ks})")
        for nt in range(7):
            idx = ks*7 + nt
            if idx in (68, 80, 88): vm.wait(f"wo{min(idx + 11, 97)}")
            acc = f"v[{ACC[nt]}:{ACC[nt]+3}]"
            A(f"v_mfma_f32_16x16x32_bf16 {acc}, {wo_dst[idx]}, v[{BR+4*ks}:{BR+4*ks+3}], {'0' if ks == 0 else acc}")
            if idx >= 18 and idx % 4 == 2 and wd.i < WDO and wd.i + 16 < idx: wd.one()
    st(A, "oproj")
    A("v_mov_b32 v248, v238\n v_mov_b32 v249, v239")
    wd.ar = 248
    X1, PK = 48, 76
    for nt in range(7):
        A(f"""v_lshlrev_b32 v{X1+4*nt}, 16, v{XR+2*nt}
        v_and_b32 v{X1+4*nt+1}, 0xffff0000, v{XR+2*nt}
        v_lshlrev_b32 v{X1+4*nt+2}, 16, v{XR+2*nt+1}
        v_and_b32 v{X1+4*nt+3}, 0xffff0000, v{XR+2*nt+1}""")
    for nt in range(7):
        for r in (0, 2): A(f"v_pk_add_f32 v[{X1+4*nt+r}:{X1+4*nt+r+1}], v[{X1+4*nt+r}:{X1+4*nt+r+1}], v[{ACC[nt]+r}:{ACC[nt]+r+1}]")
    for p in range(14): cvt(PK+p, X1+2*p)
    A(f"""s_add_u32 s42, s34, s20
    s_add_u32 s42, s42, {X1_O}
    s_add_u32 s43, s42, 4096
    s_mov_b32 exec_lo, 0x00ff00ff
    s_mov_b32 exec_hi, 0x00ff00ff""")
    store2(A, vm, [f"buffer_store_dwordx2 v[{PK+2*nt}:{PK+2*nt+1}], v11, s[8:11], s{42 + nt//4} offen offset:{1024*(nt%4)}" for nt in range(7)], "st")
    A("s_mov_b64 exec, -1")
    A(f"""v_pk_add_f32 v[92:93], v[{X1}:{X1+1}], v[{X1+2}:{X1+3}]
    v_pk_mul_f32 v[94:95], v[{X1}:{X1+1}], v[{X1}:{X1+1}]
    v_pk_add_f32 v[96:97], v[{X1+4}:{X1+5}], v[{X1+6}:{X1+7}]
    v_pk_mul_f32 v[98:99], v[{X1+2}:{X1+3}], v[{X1+2}:{X1+3}]""")
    for p in range(2, 14):
        c = 4 * (p & 1)
        if p >= 4: A(f"v_pk_add_f32 v[{92+c}:{93+c}], v[{92+c}:{93+c}], v[{X1+2*p}:{X1+2*p+1}]")
        A(f"v_pk_fma_f32 v[{94+c}:{95+c}], v[{X1+2*p}:{X1+2*p+1}], v[{X1+2*p}:{X1+2*p+1}], v[{94+c}:{95+c}]")
    A(f"""v_pk_add_f32 v[92:93], v[92:93], v[96:97]
    v_pk_add_f32 v[94:95], v[94:95], v[98:99]
    v_add_f32 v92, v92, v93
    v_add_f32 v93, v94, v95
    v_mov_b32 v94, v92
    v_mov_b32 v95, v93
    v_lshlrev_b32 v96, 5, v5
    s_lshl_b32 s42, s18, 10
    v_permlane32_swap_b32 v92, v94
    v_permlane32_swap_b32 v93, v95
    v_pk_add_f32 v[92:93], v[92:93], v[94:95]
    s_lshl_b32 s43, s19, 8
    s_add_u32 s42, s42, s43
    s_lshl_b32 s43, s3, 3
    v_mov_b32 v94, v92
    v_mov_b32 v95, v93
    s_add_u32 s42, s42, s43
    s_add_u32 s42, s42, s20
    v_permlane16_swap_b32 v92, v94
    v_permlane16_swap_b32 v93, v95
    v_pk_add_f32 v[92:93], v[92:93], v[94:95]
    s_add_u32 s42, s42, {ST1_O}
    s_mov_b64 exec, 0xff""")
    store2(A, vm, ["buffer_store_dwordx2 v[92:93], v96, s[8:11], s42 offen"], "st")
    A("s_mov_b64 exec, -1")
    for i in range(E("SIG0_WD", 4)): wd.one()
    signal(A, vm, 0, "st")
    for i in range(7): dma_piece(A, vm, 4, i)

def att_fallback(A):
    LDS_MX = EXCH
    A.label("attn_fallback")
    A.reset_hz()
    A.fence(8)
    FK = SP + 4
    A("s_mov_b32 exec_lo, 0")
    for j in range(4): A(f"v_mov_b32 v{QR+8*j+6}, 0")
    A("s_mov_b32 exec_lo, -1")
    for j in range(4): A(f"v_mov_b32 v{12+j}, 0xff800000")
    A("s_mov_b32 s44, 16")
    A.label("attn_fb_loop")
    A(f"""buffer_load_dwordx4 v[{FK}:{FK+3}], v6, s[8:11], s33 offen
    buffer_load_dwordx4 v[{FK+4}:{FK+7}], v6, s[8:11], s33 offen offset:1024
    s_add_u32 s33, s33, 4096
    s_waitcnt vmcnt(0)""")
    for j in range(4):
        S = sb(0)
        A(f"v_mfma_f32_32x32x16_bf16 v[{S}:{S+15}], v[{FK}:{FK+3}], {q(j,0)}, 0")
        A(f"v_mfma_f32_32x32x16_bf16 v[{S}:{S+15}], v[{FK+4}:{FK+7}], {q(j,1)}, v[{S}:{S+15}]")
        for r in range(0, 16, 2): A(f"v_max3_f32 v{12+j}, v{S+r}, v{S+r+1}, v{12+j}")
    A("""s_sub_u32 s44, s44, 1
    s_cmp_lg_u32 s44, 0
    s_cbranch_scc1 attn_fb_loop""")
    A.fence(8)
    for j in range(4): A(f"v_mov_b32 v{SP+j}, v{12+j}")
    for j in range(4): A(f"v_permlane32_swap_b32 v{12+j}, v{SP+j}")
    for j in range(4): A(f"v_max_f32 v{12+j}, v{12+j}, v{SP+j}")
    A(f"v_and_b32 v{SP}, 31, v0\n v_lshlrev_b32 v{SP}, 2, v{SP}\n v_add_u32 v{SP}, {LDS_MX}, v{SP}")
    for jl in range(4):
        A(f"""s_xor_b32 s42, s3, {jl}
        s_lshl_b32 s42, s42, 7
        v_add_u32 v{SP+4+jl}, s42, v{SP}
        s_lshl_b32 s42, s3, 9
        v_add_u32 v{SP+1}, s42, v{SP+4+jl}
        ds_write_b32 v{SP+1}, v{12+jl}""")
    A("s_waitcnt lgkmcnt(0)\n s_barrier")
    for jl in range(4):
        for w in range(4): A(f"ds_read_b32 v{SP+8+w}, v{SP+4+jl} offset:{512*w}")
        A(f"""s_waitcnt lgkmcnt(0)
        v_max3_f32 v{12+jl}, v{SP+8}, v{SP+9}, v{SP+10}
        v_max_f32 v{12+jl}, v{12+jl}, v{SP+11}""")
    A("s_mov_b32 exec_lo, 0")
    for j in range(4):
        m = 12 + j
        A(f"""v_sub_f32 v{m}, 0, v{m}
        v_and_b32 v{SP}, 0xffff0000, v{m}
        v_sub_f32 v{m}, v{m}, v{SP}
        v_and_b32 v{SP+1}, 0xffff0000, v{m}
        v_sub_f32 v{m}, v{m}, v{SP+1}
        v_lshrrev_b32 v{SP}, 16, v{SP}
        v_or_b32 v{QR+8*j+6}, v{SP}, v{SP+1}
        v_lshrrev_b32 v{QR+8*j+7}, 16, v{m}""")
    A("s_mov_b32 exec_lo, -1\n s_branch attn_main")
    A.label("code_end")

def wq_src(A, i):
    lt, ks = divmod(i, 7)
    if i == 0: A(f"s_add_u32 s45, s26, {WQKV}")
    if ks == 0:
        if lt < 4: A(f"s_xor_b32 s42, s3, {lt}\n s_lshl_b32 s43, s19, 2\n s_add_u32 s42, s42, s43")
        else: A("s_and_b32 s42, s19, 1\n s_add_u32 s42, s42, 16")
        A(f"s_mul_i32 s42, s42, {28*1024}\n s_add_u32 s30, s42, s45\n s_add_u32 s31, s30, 4096")
    return f"s{30 + ks//4} offen offset:{1024*(ks%4)}", 1024*(ks%4)
def wq_load(A, vm, i):
    src, io = wq_src(A, i)
    if i < 25:
        A(f"s_add_u32 m0, s27, {WQ_LDS + i*4096 - io}")
        vm.issue(f"buffer_load_dwordx4 v6, s[8:11], {src} lds", "wq")
    else:
        vm.issue(f"buffer_load_dwordx4 a[{64+4*(i-25)}:{67+4*(i-25)}], v6, s[8:11], {src}", "wq")

def phase_gu(A, vm, wd):
    XF, AC = 16, 128
    A(f"""s_lshr_b32 s42, s17, 4
    s_lshl_b32 s42, s42, 2
    s_add_u32 s42, s42, s3
    s_lshl_b32 s28, s16, 3
    s_add_u32 s28, s28, s42
    s_lshl_b32 s42, s42, 2
    s_lshl_b32 s44, 15, s42
    s_mul_i32 s23, s28, {28*1024}
    s_add_u32 s23, s23, s20
    s_add_u32 s23, s23, {X1_O}
    s_lshl_b32 s24, s28, 10
    s_add_u32 s24, s24, s20
    s_add_u32 s24, s24, {ST1_O}
    s_lshl_b32 s27, s3, 10
    v_add_u32 v7, 0x10000, v6
    v_add_u32 v8, 0x20000, v6
    v_and_b32 v3, 31, v0
    v_bfe_u32 v4, v0, 5, 1
    v_lshlrev_b32 v5, 5, v3
    v_lshl_add_u32 v5, v4, 4, v5""")
    def wf(ks, at): b = 28 * (ks & 1) + 4 * at; return f"a[{b}:{b+3}]"
    def rd(ks, at):
        p, kk = ks >> 2, ks & 3
        off = (p % 5) * RING_SLOT + kk * 7168 + at * 1024
        base = "v6" if off < 65536 else ("v7" if off < 131072 else "v8")
        A(f"ds_read_b128 {wf(ks, at)}, {base} offset:{off & 65535}")
    for at in range(7): rd(0, at)
    st(A, "gu_w")
    waitflags(A, vm, 0, 44)
    st(A, "gu_go")
    def xload(ks):
        vm.issue(f"buffer_load_dwordx4 v[{XF+4*ks}:{XF+4*ks+3}], v6, s[8:11], s23 offen offset:{1024*(ks&3)} sc1", f"x{ks}")
        if ks & 3 == 3: A("s_add_u32 s23, s23, 4096")
    XPRE = E("GU_XPRE", 6)
    for ks in range(XPRE): xload(ks)
    extra = [lambda ks=ks: xload(ks) for ks in range(XPRE, 28)]
    extra.append(lambda: vm.issue("buffer_load_dwordx4 v[12:15], v5, s[8:11], s24 offen sc1", "stat"))
    extra += [wd.one] * (48 - wd.i)
    PER = E("GU_PER", 3)
    def htouch():
        A(f"""s_mul_i32 s42, s28, {112*1024}
        s_and_b32 s43, s17, 15
        s_mul_i32 s43, s43, {7*1024}
        s_add_u32 s42, s42, s43
        s_add_u32 s42, s42, s20
        s_add_u32 s42, s42, {H_O}
        v_lshlrev_b32 v9, 3, v6
        v_min_u32 v9, {55*128}, v9""")
        vm.issue("buffer_load_dword v9, v9, s[8:11], s42 offen", "touch")
    for ks in range(28):
        p = ks >> 2
        nxt = ks + 1
        if nxt < 28 and (nxt & 3) == 0:
            if p + 1 >= 4:
                vm.wait(f"w{p+1}")
                A("s_barrier")
            elif p in (1, 2):
                A("s_barrier")
            if p in (1, 2): extra = [lambda i=i, p=p: dma_piece(A, vm, p + 4, i) for i in range(7)] + extra
            if p == E("H_TOUCH", 99): extra.insert(7, htouch)
            if p == 4: extra += [lambda i=i: wq_load(A, vm, i) for i in range(13)]
            if p == 5: extra += [lambda i=i: wq_load(A, vm, i) for i in range(13, 25)]
        vm.wait(f"x{ks}")
        if ks in GU_ST: st(A, f"gu{ks}")
        for at in range(7):
            A(f"s_waitcnt lgkmcnt(6)" if nxt < 28 else f"s_waitcnt lgkmcnt({6-at})")
            acc = f"v[{AC+16*at}:{AC+16*at+15}]"
            A(f"v_mfma_f32_32x32x16_bf16 {acc}, {wf(ks, at)}, v[{XF+4*ks}:{XF+4*ks+3}], {'0' if ks == 0 else acc}")
            if nxt < 28: rd(nxt, at)
            if at in ((1, 3, 5) if PER == 3 else (0, 2, 4, 6)) and extra: extra.pop(0)()
    st(A, "gu_mm")
    vm.wait("stat")
    A(f"""v_pk_add_f32 v[12:13], v[12:13], v[14:15]
    s_mul_i32 s42, s28, {112*1024}
    s_and_b32 s43, s17, 15
    v_mov_b32 v14, v12
    v_mov_b32 v15, v13
    s_mul_i32 s43, s43, {7*1024}
    s_add_u32 s42, s42, s43
    v_permlane32_swap_b32 v12, v14
    v_permlane32_swap_b32 v13, v15
    v_pk_add_f32 v[12:13], v[12:13], v[14:15]
    v_mul_f32 v12, {f2u(1.0/448):#x}, v12
    v_mul_f32 v13, {f2u(1.0/448):#x}, v13
    v_fma_f32 v13, -v12, v12, v13
    v_max_f32 v13, 0, v13
    v_add_f32 v13, {f2u(1e-5):#x}, v13
    v_rcp_f32 v10, v13
    s_add_u32 s42, s42, s20
    s_add_u32 s24, s42, {H_O}
    s_add_u32 s25, s24, 4096
    v_mov_b32 v11, v10""")
    for at in range(7):
        b = AC + 16 * at
        for r in range(0, 8, 2): A(f"v_pk_mul_f32 v[{b+r}:{b+r+1}], v[{b+r}:{b+r+1}], v[{b+8+r}:{b+9+r}]")
        for r in range(0, 8, 2): A(f"v_pk_mul_f32 v[{b+r}:{b+r+1}], v[{b+r}:{b+r+1}], v[10:11]")
        for p in range(4): A(f"v_cvt_pk_bf16_f32 v{16+4*at+p}, v{b+2*p}, v{b+2*p+1}")
    store2(A, vm, [f"buffer_store_dwordx4 v[{16+4*at}:{19+4*at}], v6, s[8:11], s{24 + at//4} offen offset:{1024*(at%4)}" for at in range(7)], "st", os.environ.get("H_FORCE", "sc1"))
    while extra: extra.pop(0)()
    for i in range(8): wd.one()
    signal(A, vm, 1, "st")

def phase_down(A, vm):
    HF = 16
    A(f"""s_cmp_ge_u32 s17, 28
    s_cbranch_scc1 down_skip
    s_and_b32 s28, s17, 3
    s_lshr_b32 s29, s17, 2
    s_lshr_b32 s42, s28, 1
    s_lshl_b32 s42, s42, 2
    s_add_u32 s42, s42, s3
    s_lshl_b32 s42, s42, 2
    s_lshl_b32 s44, 15, s42
    s_lshl_b32 s32, s16, 3
    s_lshl_b32 s42, s28, 1
    s_add_u32 s32, s32, s42
    s_lshr_b32 s42, s3, 1
    s_add_u32 s32, s32, s42
    s_xor_b32 s33, s32, 1
    s_mul_i32 s23, s32, {112*1024}
    s_mul_i32 s25, s33, {112*1024}
    s_mul_i32 s42, s3, {28*1024}
    s_add_u32 s42, s42, s20
    s_add_u32 s42, s42, {H_O}
    s_add_u32 s23, s23, s42
    s_add_u32 s25, s25, s42
    s_mul_i32 s34, s32, {28*1024}
    s_lshl_b32 s42, s29, 12
    s_add_u32 s34, s34, s42
    s_and_b32 s42, s3, 1
    s_lshl_b32 s42, s42, 11
    s_add_u32 s34, s34, s42
    s_add_u32 s42, s34, s20
    s_add_u32 s42, s42, {X1_O}""")
    A("""buffer_load_dwordx4 v[240:243], v6, s[8:11], s42 offen sc1
    buffer_load_dwordx4 v[244:247], v6, s[8:11], s42 offen offset:1024 sc1""")
    st(A, "dn_w")
    waitflags(A, vm, 1, 44)
    st(A, "dn_go")
    def hf(ks, t): b = HF + 8 * (ks % 24) + 4 * t; return f"v[{b}:{b+3}]"
    def wdf(ks, a):
        i = ks * 2 + a
        return f"a[{64+4*i}:{67+4*i}]" if ks < 24 else f"v[{208+4*(i-48)}:{211+4*(i-48)}]"
    def load(ks):
        vm.issue(f"buffer_load_dwordx4 {hf(ks,0)}, v6, s[8:11], s23 offen offset:{1024*(ks&3)}{SC1}", f"k{ks}")
        vm.issue(f"buffer_load_dwordx4 {hf(ks,1)}, v6, s[8:11], s25 offen offset:{1024*(ks&3)}{SC1}", f"k{ks}")
        if ks & 3 == 3: A("s_add_u32 s23, s23, 4096\n s_add_u32 s25, s25, 4096")
    PRE = E("DN_PRE", 4)
    for ks in range(PRE): load(ks)
    nl = PRE
    for ks in range(28):
        vm.wait(f"k{ks}")
        if ks in DN_ST: st(A, f"dn{ks}")
        for t in range(2):
            for a in range(2):
                lp = a + 2*t
                acc = f"a[{16*lp}:{16*lp+15}]"
                A(f"v_mfma_f32_32x32x16_bf16 {acc}, {wdf(ks,a)}, {hf(ks,t)}, {'0' if ks == 0 else acc}")
                if nl < 28 and (nl < 24 or nl - 24 < ks): load(nl); nl += 1
    assert nl == 28
    st(A, "dn_mm")
    for lp in range(1, 4):
        A(f"s_xor_b32 s42, s3, {lp}\n s_mul_i32 s42, s42, 12288\n v_add_u32 v{8+lp}, s42, v6")
    for p in range(8):
        A(f"v_lshlrev_b32 v{80+2*p}, 16, v{240+p}\n v_and_b32 v{81+2*p}, 0xffff0000, v{240+p}")
    for lp in range(1, 4):
        for rq in range(4):
            r = 16*lp + 4*rq
            A(f"ds_write_b128 v{8+lp}, a[{r}:{r+3}] offset:{(lp-1)*4096 + rq*1024}")
    A(f"""s_mul_i32 s42, s3, 12288
    v_add_u32 v12, s42, v6""")
    for r in range(16): A(f"v_accvgpr_read_b32 v{16+r}, a{r}")
    for r in range(0, 16, 2): A(f"v_pk_add_f32 v[{16+r}:{17+r}], v[{16+r}:{17+r}], v[{80+r}:{81+r}]")
    A("s_waitcnt lgkmcnt(0)\n s_barrier")
    for i in range(3):
        for rq in range(4):
            r = 32 + 16*i + 4*rq
            A(f"ds_read_b128 v[{r}:{r+3}], v12 offset:{i*4096 + rq*1024}")
    for i in range(3):
        A(f"s_waitcnt lgkmcnt({8-4*i})")
        for r in range(0, 16, 2): A(f"v_pk_add_f32 v[{16+r}:{17+r}], v[{16+r}:{17+r}], v[{32+16*i+r}:{33+16*i+r}]")
    for p in range(8): A(f"v_cvt_pk_bf16_f32 v{96+p}, v{16+2*p}, v{17+2*p}")
    A(f"""s_cmp_eq_u32 s39, 1
    s_cbranch_scc0 down_x2
    v_mul_u32_u24 v5, 896, v3
    v_lshl_add_u32 v5, v4, 4, v5
    s_mul_i32 s42, s32, {32*896}
    s_lshl_b32 s43, s29, 7
    s_add_u32 s42, s42, s43
    s_and_b32 s43, s3, 1
    s_lshl_b32 s43, s43, 6
    s_add_u32 s42, s42, s43
    buffer_store_dwordx4 v[96:99], v5, s[12:15], s42 offen
    buffer_store_dwordx4 v[100:103], v5, s[12:15], s42 offen offset:32""")
    if STAMPS:
        A("s_waitcnt vmcnt(0)")
        main_flush(A, 3)
    A("s_endpgm")
    A.label("down_x2")
    A.fence(2)
    A(f"s_add_u32 s42, s34, s20\n s_add_u32 s42, s42, {X2_O}")
    store2(A, vm, ["buffer_store_dwordx4 v[96:99], v6, s[8:11], s42 offen", "buffer_store_dwordx4 v[100:103], v6, s[8:11], s42 offen offset:1024"], "st")
    A(f"""v_pk_add_f32 v[32:33], v[16:17], v[18:19]
    v_pk_mul_f32 v[34:35], v[16:17], v[16:17]
    v_pk_add_f32 v[36:37], v[20:21], v[22:23]
    v_pk_mul_f32 v[38:39], v[18:19], v[18:19]""")
    for p in range(2, 8):
        c = 4 * (p & 1)
        if p >= 4: A(f"v_pk_add_f32 v[{32+c}:{33+c}], v[{32+c}:{33+c}], v[{16+2*p}:{17+2*p}]")
        A(f"v_pk_fma_f32 v[{34+c}:{35+c}], v[{16+2*p}:{17+2*p}], v[{16+2*p}:{17+2*p}], v[{34+c}:{35+c}]")
    A(f"""v_pk_add_f32 v[32:33], v[32:33], v[36:37]
    v_pk_add_f32 v[34:35], v[34:35], v[38:39]
    v_add_f32 v32, v32, v33
    v_add_f32 v33, v34, v35
    v_mov_b32 v34, v32
    v_mov_b32 v35, v33
    v_lshlrev_b32 v36, 7, v3
    s_lshl_b32 s42, s32, 12
    v_permlane32_swap_b32 v32, v34
    v_permlane32_swap_b32 v33, v35
    v_pk_add_f32 v[32:33], v[32:33], v[34:35]
    s_lshl_b32 s43, s29, 4
    s_add_u32 s42, s42, s43
    s_and_b32 s43, s3, 1
    s_lshl_b32 s43, s43, 3
    s_add_u32 s42, s42, s43
    s_add_u32 s42, s42, {ST2 + 0x40000}
    s_mov_b32 exec_hi, 0""")
    store2(A, vm, ["buffer_store_dwordx2 v[32:33], v36, s[8:11], s42 offen"], "st")
    A(f"""s_mov_b32 exec_hi, -1
    s_lshl_b32 s24, s28, 3
    s_add_u32 s24, s24, s29""")
    for i in range(25, 35): wq_load(A, vm, i)
    signal(A, vm, 2, "st", "s24")
    A("s_branch qkv_wait")
    A.label("down_skip")
    A.fence(4)
    A("s_cmp_eq_u32 s39, 1\n s_cbranch_scc1 main_end")
    A("s_barrier\n s_barrier" if False else "s_nop 0")
    for i in range(25, 35): wq_load(A, VM2(A), i)
    A.label("qkv_wait")
    A.fence(4)
    A(f"""s_lshr_b32 s42, s17, 3
    s_lshl_b32 s42, s42, 3
    s_lshl_b32 s44, 0x7f, s42
    s_add_u32 s21, s20, {X2_O}
    s_mov_b32 s20, {ABASE[1]}
    s_mov_b32 s32, {LBASE[1]}
    s_mov_b32 s24, {ST2 + 0x40000}""")
    st(A, "qkv_w")
    waitflags(A, vm, 2, 44)
    A("s_branch qkv_go")
    A.label("qkv_entry")
    A.fence(4)
    srd_fin(A)
    A(f"""s_lshl_b32 s27, s3, 10
    s_mov_b32 s24, {ST2}
    s_mov_b32 s32, {LBASE[0]}
    v_and_b32 v3, 31, v0
    v_bfe_u32 v4, v0, 5, 1""")
    A.label("qkv_go")
    A.fence(4)

def phase_qkv(A):
    vm = VM2(A)
    XF, AC, WB = 96, 16, 160
    st(A, "qkv_go")
    A(f"""s_mul_i32 s42, s18, {28*1024}
    s_add_u32 s42, s42, s26
    s_add_u32 s42, s42, s21
    s_add_u32 s43, s42, 4096
    s_lshl_b32 s25, s18, 12
    s_add_u32 s24, s24, s25
    v_lshlrev_b32 v5, 7, v3
    v_lshl_add_u32 v5, v4, 6, v5
    v_add_u32 v7, s27, v6
    v_add_u32 v7, {WQ_LDS}, v7
    v_add_u32 v8, 0x10000, v7""")
    for r in range(4): A(f"v_mov_b32 v{140+r}, 0")
    for ks in range(7):
        vm.issue(f"buffer_load_dwordx4 v[{XF+4*ks}:{XF+4*ks+3}], v6, s[8:11], s{42 + ks//4} offen offset:{1024*(ks%4)} sc1", f"x{ks}")
    for i in range(3): vm.issue(f"buffer_load_dwordx4 v[{128+4*i}:{131+4*i}], v5, s[8:11], s24 offen offset:{16*i} sc1", "stat")
    A("s_mov_b32 exec_hi, 0")
    vm.issue(f"buffer_load_dwordx4 v[140:143], v5, s[8:11], s24 offen offset:48 sc1", "stat")
    A("s_mov_b32 exec_hi, -1")
    A("s_cmp_eq_u32 s39, 2\n s_cbranch_scc0 qkv_havew")
    v2 = VM2(A)
    for i in range(35): wq_load(A, v2, i)
    A("s_waitcnt vmcnt(0)")
    A.label("qkv_havew")
    A.fence(2)
    def w(i): return f"a[{104+4*i}:{107+4*i}]" if i < 25 else f"a[{64+4*(i-25)}:{67+4*(i-25)}]"
    order = sorted(range(25), key=lambda i: (i % 7, i // 7))
    for n, i in enumerate(order):
        off = i * 4096
        A(f"ds_read_b128 {w(i)}, {'v7' if off < 65536 else 'v8'} offset:{off & 65535}")
        if n == 14: break
    rest = order[15:]
    pos = {i: n for n, i in enumerate(order)}
    def mm(kind):
        issued = 15; rs = list(rest)
        for ks in range(7):
            vm.wait(f"x{ks}")
            x = f"v[{XF+4*ks}:{XF+4*ks+3}]"
            for lt in ([4] if kind else []) + [0, 1, 2, 3]:
                i = lt * 7 + ks
                if i < 25: A(f"s_waitcnt lgkmcnt({min(15, issued - 1 - pos[i])})")
                acc = f"v[{AC+16*lt}:{AC+16*lt+15}]"
                c = "0" if ks == 0 else acc
                if lt == 4 and kind == 2: A(f"v_mfma_f32_32x32x16_bf16 {acc}, {x}, {w(i)}, {c}")
                else: A(f"v_mfma_f32_32x32x16_bf16 {acc}, {w(i)}, {x}, {c}")
                if rs:
                    j = rs.pop(0); off = j * 4096
                    A(f"ds_read_b128 {w(j)}, {'v7' if off < 65536 else 'v8'} offset:{off & 65535}"); issued += 1
    A("s_cmp_eq_u32 s19, 0\n s_cbranch_scc1 qkv_mmk\n s_cmp_eq_u32 s19, 1\n s_cbranch_scc1 qkv_mmv")
    mm(0)
    A("s_branch qkv_red")
    A.label("qkv_mmk"); A.reset_hz(); mm(1); A("s_branch qkv_red")
    A.label("qkv_mmv"); A.reset_hz(); mm(2)
    A.label("qkv_red")
    A.fence(4)
    st(A, "qkv_mm")
    XT = 49152
    for lp in range(1, 4):
        A(f"s_xor_b32 s42, s3, {lp}\n s_mul_i32 s42, s42, 12288\n v_add_u32 v{124+lp}, s42, v6")
    A.fence(4)
    for lp in range(1, 4):
        for rq in range(4):
            r = AC + 16*lp + 4*rq
            A(f"ds_write_b128 v{124+lp}, v[{r}:{r+3}] offset:{(lp-1)*4096 + rq*1024}")
    A(f"""s_cmp_ge_u32 s19, 2
    s_cbranch_scc1 qkv_nox
    s_cmp_eq_u32 s3, 0
    s_cbranch_scc1 qkv_nox
    s_lshl_b32 s42, s3, 12
    s_add_u32 s42, s42, {XT - 4096}
    v_add_u32 v124, s42, v6""")
    for rq in range(4):
        r = AC + 64 + 4*rq
        A(f"ds_write_b128 v124, v[{r}:{r+3}] offset:{rq*1024}")
    A.label("qkv_nox")
    A(f"""s_mul_i32 s42, s3, 12288
    v_add_u32 v12, s42, v6""")
    vm.wait("stat")
    for sz in (8, 4, 2):
        for i in range(0, sz, 2):
            A(f"v_pk_add_f32 v[{128+i}:{129+i}], v[{128+i}:{129+i}], v[{128+sz+i}:{129+sz+i}]")
    A(f"""v_mov_b32 v130, v128
    v_mov_b32 v131, v129
    s_lshl_b32 s42, s18, 15
    s_lshl_b32 s43, s19, 13
    v_permlane32_swap_b32 v128, v130
    v_permlane32_swap_b32 v129, v131
    v_pk_add_f32 v[128:129], v[128:129], v[130:131]
    v_mul_f32 v128, {f2u(1.0/448):#x}, v128
    v_mul_f32 v129, {f2u(1.0/448):#x}, v129
    v_fma_f32 v129, -v128, v128, v129
    v_max_f32 v129, 0, v129
    v_add_f32 v129, {f2u(1e-5):#x}, v129
    v_rsq_f32 v10, v129
    s_add_u32 s42, s42, s43
    s_lshl_b32 s43, s3, 11
    s_add_u32 s42, s42, s43
    s_add_u32 s42, s42, s20
    v_mov_b32 v11, v10
    s_waitcnt lgkmcnt(0)
    s_barrier""")
    for i in range(3):
        for rq in range(4):
            r = AC + 16*(i+1) + 4*rq
            A(f"ds_read_b128 v[{r}:{r+3}], v12 offset:{i*4096 + rq*1024}")
    for i in range(3):
        A(f"s_waitcnt lgkmcnt({8-4*i})")
        for r in range(0, 16, 2): A(f"v_pk_add_f32 v[{AC+r}:{AC+r+1}], v[{AC+r}:{AC+r+1}], v[{AC+16*(i+1)+r}:{AC+16*(i+1)+r+1}]")
    for r in range(0, 16, 2): A(f"v_pk_mul_f32 v[{AC+r}:{AC+r+1}], v[{AC+r}:{AC+r+1}], v[10:11]")
    for p in range(8): A(f"v_cvt_pk_bf16_f32 v{144+p}, v{AC+2*p}, v{AC+2*p+1}")
    def norm(base, d):
        A(f"v_mov_b32 v{d}, 0\n v_mov_b32 v{d+1}, 0")
        for p in range(8): A(f"v_dot2_f32_bf16 v{d+(p&1)}, v{base+p}, v{base+p}, v{d+(p&1)}")
        A(f"""v_add_f32 v{d}, v{d}, v{d+1}
        v_mov_b32 v{d+1}, v{d}
        v_permlane32_swap_b32 v{d}, v{d+1}
        v_add_f32 v{d}, v{d}, v{d+1}
        v_sqrt_f32 v{d}, v{d}
        v_mul_f32 v{d}, {f2u(1.01):#x}, v{d}""")
    A("buffer_store_dwordx4 v[144:147], v6, s[8:11], s42 offen")
    norm(144, 132)
    A(f"""s_mov_b32 exec_lo, 0
    v_cvt_pk_bf16_f32 v150, v132, 0
    s_mov_b32 exec_lo, -1
    buffer_store_dwordx4 v[148:151], v6, s[8:11], s42 offen offset:1024
    s_cmp_ge_u32 s19, 2
    s_cbranch_scc1 qkv_fin
    s_cmp_lg_u32 s3, 0
    s_cbranch_scc1 qkv_fin
    v_add_u32 v12, {XT}, v6""")
    EE = AC + 64
    for i in range(3):
        for rq in range(4):
            r = AC + 16*i + 4*rq
            A(f"ds_read_b128 v[{r}:{r+3}], v12 offset:{i*4096 + rq*1024}")
    A(f"""s_lshl_b32 s42, s18, 12
    s_add_u32 s42, s42, s32
    s_add_u32 s42, s42, {KV_O}""")
    for i in range(3):
        A(f"s_waitcnt lgkmcnt({8-4*i})")
        for r in range(0, 16, 2): A(f"v_pk_add_f32 v[{EE+r}:{EE+r+1}], v[{EE+r}:{EE+r+1}], v[{AC+16*i+r}:{AC+16*i+r+1}]")
    A("s_cmp_eq_u32 s19, 1\n s_cbranch_scc1 qkv_epi_v")
    for r in range(0, 16, 2): A(f"v_pk_mul_f32 v[{EE+r}:{EE+r+1}], v[{EE+r}:{EE+r+1}], v[10:11]")
    for p in range(8): A(f"v_cvt_pk_bf16_f32 v{152+p}, v{EE+2*p}, v{EE+2*p+1}")
    A("buffer_store_dwordx4 v[152:155], v6, s[8:11], s42 offen")
    norm(152, 20)
    A(f"""s_mov_b32 exec_lo, 0
    v_mov_b32 v158, 0x3f803f80
    v_mov_b32 v159, 0x00003f80
    s_mov_b32 exec_lo, -1
    buffer_store_dwordx4 v[156:159], v6, s[8:11], s42 offen offset:1024
    v_max_f32_dpp v20, v20, v20 row_shr:1 row_mask:0xf bank_mask:0xf
    v_max_f32_dpp v20, v20, v20 row_shr:2 row_mask:0xf bank_mask:0xf
    v_max_f32_dpp v20, v20, v20 row_shr:4 row_mask:0xf bank_mask:0xf
    v_max_f32_dpp v20, v20, v20 row_shr:8 row_mask:0xf bank_mask:0xf
    v_readlane_b32 s30, v20, 15
    v_readlane_b32 s31, v20, 31
    v_mov_b32 v21, s30
    v_max_f32 v21, s31, v21
    s_lshl_b32 s42, s18, 2
    s_add_u32 s42, s42, s32
    s_add_u32 s42, s42, {KN_O}
    v_mov_b32 v22, 0
    s_mov_b64 exec, 1
    buffer_store_dword v21, v22, s[8:11], s42 offen
    s_branch qkv_fin""")
    A.label("qkv_epi_v")
    A.fence(4)
    A(f"""v_lshlrev_b32 v20, 2, v3
    ds_write_b32 v20, v10
    v_lshlrev_b32 v21, 4, v4
    v_and_b32 v22, 27, v3
    v_cmp_eq_u32 vcc, 26, v22
    v_mov_b32 v23, 0
    v_mov_b32 v24, 1.0
    v_cndmask_b32 v23, v23, v24, vcc
    s_waitcnt lgkmcnt(0)""")
    for qq in range(4): A(f"ds_read_b128 v[{40+4*qq}:{43+4*qq}], v21 offset:{32*qq}")
    A("s_waitcnt lgkmcnt(0)")
    for r in range(16): A(f"v_fma_f32 v{EE+r}, v{EE+r}, v{40+r}, v23")
    for p in range(8): A(f"v_cvt_pk_bf16_f32 v{152+p}, v{EE+2*p}, v{EE+2*p+1}")
    A(f"""buffer_store_dwordx4 v[152:155], v6, s[8:11], s42 offen offset:2048
    buffer_store_dwordx4 v[156:159], v6, s[8:11], s42 offen offset:3072""")
    A.label("qkv_fin")
    if STAMPS:
        A.fence(4)
        A("s_waitcnt vmcnt(0)")
        main_flush(A, 3)

ALL = [k_prep, k_main]
LAUNCHES = ["prep_kernel", "qkv0_kernel", "main0_kernel", "main1_kernel"]
```

```python
S, D, H, DH, F = 2048, 448, 16, 28, 1792
KB = 1024
WS_BYTES = 268435456
X_BYTES = S * D * 2
WQKV = 0x000000
WO   = 0x080000
WGU  = 0x100000
WD   = 0x420000
LBASE = [0x600000, 0x1600000]
Q_O   = 0x000000
KV_O  = 0x200000
KN_O  = 0x240000
X1_O  = 0x280000
XN1_O = 0x480000
H_O   = 0x680000
X2_O  = 0xD80000
QSCALE = (28.0 ** -0.5) * 1.4426950408889634
def swap23(i): return (i & 3) | ((i & 4) << 1) | ((i & 8) >> 1) | (i & ~15)
X0   = 0x2600000
FL   = 0x2800000
FL_BYTES = 0x3000
ST1_O = 0x260000
ST2   = 0x2900000
XT_BASE = FL + 0x4000
import os
INPLACE = int(os.environ.get("INPLACE", "0"))
ABASE = list(LBASE)
if INPLACE:
    X2_O = X1_O
    X0 = LBASE[0] + X1_O
    ABASE = [LBASE[0], LBASE[0]]
```

```python
import struct, sys, os
from asm import Asm
from layout import *
import gen as G
from gen import f2u, kstart, srd, VM, STAMPS, KERNELS, finish, v_swap23
import gen2
from gen2 import st, SNAMES, k_prep, main_flush, uid, SPIN_LIMIT, BOUND_T

E = lambda k, d: int(os.environ.get(k, str(d)))
EL = lambda k, d: [int(x) for x in os.environ.get(k, d).split(",") if x]
ATT_ST, GU_ST, DN_ST = EL("ATT_ST", "16,32,48"), EL("GU_ST", "1"), EL("DN_ST", "")
SC1 = " sc1" if E("LD_SC1", 1) else ""
RING_SLOT = 28 * 1024
EXCH = 4 * RING_SLOT
LDS_TOTAL = 160 * 1024
ORS = 240
WQ_LDS = 61440

QR, OR_, SR, PR, KVR, XR, SP = 16, 48, 112, 144, 160, 224, 240
def q(j, s): return f"v[{QR+8*j+4*s}:{QR+8*j+4*s+3}]"
def sb(t): return SR + 16 * (t & 1)

def store2(A, vm, insts, tag, force=""):
    u = uid[0]; uid[0] += 1
    if force:
        for t in insts: A(t + " " + force)
        vm.ops += [tag] * len(insts)
        return
    A(f"s_cmp_eq_u32 s38, 0\n s_cbranch_scc1 st_slow{u}")
    for t in insts: A(t)
    A(f"s_branch st_done{u}")
    A.label(f"st_slow{u}")
    for t in insts: A(t + " sc1")
    A.label(f"st_done{u}")
    vm.ops += [tag] * len(insts)

def signal(A, vm, ph, tag, idx="s17"):
    u = uid[0]; uid[0] += 1
    vm.wait(tag)
    A(f"""s_barrier
    s_cmp_lg_u32 s3, 0
    s_cbranch_scc1 sig_done{u}
    s_add_u32 s40, s22, {ph * 8 * 128}
    s_lshl_b32 s41, {idx}, 2
    s_add_u32 s40, s40, s41
    v_mov_b32 v1, 1
    v_mov_b32 v2, 0
    s_mov_b64 exec, 1
    s_cmp_eq_u32 s38, 0
    s_cbranch_scc1 sig_slow{u}
    buffer_store_dword v1, v2, s[8:11], s40 offen
    s_branch sig_rest{u}""")
    A.label(f"sig_slow{u}")
    A("buffer_store_dword v1, v2, s[8:11], s40 offen sc1")
    A.label(f"sig_rest{u}")
    A("s_mov_b64 exec, -1")
    A.label(f"sig_done{u}")
    A.fence(1)

def waitflags(A, vm, ph, mask_sgpr):
    u = uid[0]; uid[0] += 1
    A(f"""s_add_u32 s40, s22, {ph * 8 * 128}
    v_lshrrev_b32 v2, 2, v6
    s_mov_b32 exec_lo, s{mask_sgpr}
    s_mov_b32 exec_hi, 0
    s_mov_b32 s41, {SPIN_LIMIT}""")
    A.label(f"poll{u}")
    A(f"""buffer_load_dword v1, v2, s[8:11], s40 offen sc1
    s_sub_u32 s41, s41, 1
    s_cmp_eq_u32 s41, 0
    s_cbranch_scc1 poll_out{u}
    s_waitcnt vmcnt(0)
    v_cmp_ne_u32 vcc, 1, v1
    s_cbranch_vccnz poll{u}""")
    A.label(f"poll_out{u}")
    A("s_waitcnt vmcnt(0)\n s_mov_b64 exec, -1")
    vm.ops = ["drained"]

class VM2(VM):
    def wait(self, *tags):
        idx = [i for i, t in enumerate(self.ops) if t in tags]
        if not idx: return
        n = len(self.ops) - 1 - max(idx)
        self.A(f"s_waitcnt vmcnt({min(n, 63)})")

def k_main(A):
    for name, mode in (("main0_kernel", 0), ("main1_kernel", 1)):
        kstart(A, name)
        A(f"""s_cmp_ge_u32 s2, 256
        s_cbranch_scc1 main_end
        s_load_dwordx2 s[6:7], s[0:1], 88
        s_load_dwordx2 s[4:5], s[0:1], 72
        s_mov_b32 s39, {mode}
        s_mov_b32 s20, {ABASE[mode & 1]}
        s_mov_b32 s28, {LBASE[mode & 1]}
        s_mov_b32 s21, {X0 if mode != 1 else LBASE[0] + X2_O}
        s_mov_b32 s22, {FL + (mode & 1) * 4 * 8 * 128}
        s_branch main_body""")
        KERNELS.append((name, 256, 256, LDS_TOTAL, 512, 256))
    A.label("main_body")
    A.reset_hz()
    st(A, "start")
    A(f"""v_lshrrev_b32 v1, 6, v0
    v_and_b32 v2, 63, v0
    v_lshlrev_b32 v6, 4, v2
    v_readfirstlane_b32 s3, v1
    s_and_b32 s16, s2, 7
    s_lshr_b32 s17, s2, 3
    s_lshl_b32 s18, s16, 3
    s_lshr_b32 s40, s17, 2
    s_add_u32 s18, s18, s40
    s_and_b32 s19, s17, 3
    s_lshl_b32 s40, s16, 7
    s_add_u32 s22, s22, s40
    s_mov_b32 s38, 0
    s_mov_b32 s10, {WS_BYTES}
    s_mov_b32 s11, 0x20000
    s_mov_b32 s14, {X_BYTES}
    s_mov_b32 s15, 0x20000
    s_mul_i32 s26, s3, {7*1024}""")
    vm = VM2(A)
    wd = WdPrefetch(A, vm)
    phase_att(A, vm, wd)
    phase_gu(A, vm, wd)
    phase_down(A, vm)
    phase_qkv(A)
    A.label("main_end")
    A("s_endpgm")
    att_fallback(A)

def srd_fin(A):
    A("""s_waitcnt lgkmcnt(0)
    s_mov_b32 s8, s6
    s_and_b32 s9, s7, 0xffff
    s_mov_b32 s12, s4
    s_and_b32 s13, s5, 0xffff""")

class WdPrefetch:
    def __init__(self, A, vm): self.A, self.vm, self.i, self.ar = A, vm, 0, 238
    def setup(self):
        self.A(f"""s_lshr_b32 s42, s17, 2
        s_min_u32 s42, s42, 6
        s_mul_i32 s35, s42, {112*2*1024}
        s_mul_i32 s43, s3, {28*2*1024}
        s_add_u32 s35, s35, s43
        s_add_u32 s35, s35, {WD}
        s_and_b32 s43, s3, 1
        s_lshl_b32 s43, s43, 10
        v_add_u32 v238, s43, v6
        v_xor_b32 v239, 1024, v238""")
    def dst(self, i): return f"a[{64+4*i}:{67+4*i}]" if i < 48 else f"v[{208+4*(i-48)}:{211+4*(i-48)}]"
    def one(self):
        i = self.i; self.i += 1
        ks, a = i >> 1, i & 1
        self.vm.issue(f"buffer_load_dwordx4 {self.dst(i)}, v{self.ar+a}, s[8:11], s35 offen offset:{2048*(ks&1)}", "wd")
        if i & 3 == 3: self.A("s_add_u32 s35, s35, 4096")

def dma_piece(A, vm, p, i):
    sl = (p % 5) * RING_SLOT
    if i == 0: A(f"s_add_u32 m0, s26, {sl}")
    if i == 4: A(f"s_add_u32 m0, s26, {sl + 4096}\n s_add_u32 s25, s25, 4096")
    vm.issue(f"buffer_load_dwordx4 v6, s[8:11], s25 offen offset:{1024*(i&3)} lds", f"w{p}")
    if i == 6: A(f"s_add_u32 s25, s25, {RING_SLOT - 4096}")

def phase_att(A, vm, wd):
    def o(j): return f"v[{OR_+16*j}:{OR_+16*j+15}]"
    def pb(t): return PR + 8 * (t & 1)
    def kv(kt, i): b = KVR + 16 * (kt & 3) + 4 * i; return f"v[{b}:{b+3}]"
    def cvt(dst, src): A(f"v_cvt_pk_bf16_f32 v{dst}, v{src}, v{src+1}")
    A(f"""v_bfe_u32 v3, v0, 3, 2
    v_bfe_u32 v4, v0, 5, 1
    v_and_b32 v5, 7, v0
    v_lshlrev_b32 v7, 11, v3
    v_lshl_add_u32 v7, v4, 9, v7
    v_lshl_add_u32 v7, v5, 4, v7
    v_lshrrev_b32 v8, 2, v6
    s_lshl_b32 s40, s18, 15
    s_lshl_b32 s41, s19, 7
    s_add_u32 s40, s40, s41
    s_add_u32 s40, s40, s20
    s_add_u32 s41, s28, {KN_O}
    s_lshl_b32 s23, s3, 16
    s_add_u32 s23, s23, s28
    s_add_u32 s23, s23, {KV_O}
    s_mov_b32 s33, s23""")
    for jl in range(4):
        A(f"s_xor_b32 s{28+jl}, s3, {jl}\n s_lshl_b32 s{28+jl}, s{28+jl}, 13\n s_add_u32 s{28+jl}, s40, s{28+jl}")
    for r in range(64): A(f"v_mov_b32 v{OR_+r}, 0")
    for r in range(8): A(f"v_mov_b32 v{pb(1)+r}, 0")
    for r in range(4): A(f"v_mov_b32 v{KVR+48+12+r}, 0")
    for r in range(4): A(f"v_mov_b32 v{sb(1)+12+r}, 0")
    srd_fin(A)
    def kvload(kt, i):
        vm.issue(f"buffer_load_dwordx4 {kv(kt, i)}, v6, s[8:11], s23 offen offset:{1024*i}", f"kv{kt}" if i < 2 else f"vv{kt}")
        if i == 3: A("s_add_u32 s23, s23, 4096")
    def qload(jl, s_):
        vm.issue(f"buffer_load_dwordx4 {q(jl, s_)}, v7, s[8:11], s{28+jl} offen offset:{1024*s_}", f"q{s_}")
    vm.issue("buffer_load_dword v9, v8, s[8:11], s41 offen", "kn")
    for jl in range(4): qload(jl, 1)
    qload(0, 0)
    for i in range(2): kvload(0, i)
    for jl in range(1, 4): qload(jl, 0)
    for i in range(2, 4): kvload(0, i)
    A(f"""s_getreg_b32 s37, hwreg(HW_REG_XCC_ID)
    s_and_b32 s37, s37, 15
    s_add_u32 s37, s37, 1
    s_and_b32 s43, s39, 1
    s_lshl_b32 s43, s43, 3
    s_add_u32 s43, s43, s16
    s_lshl_b32 s36, s43, 12
    s_add_u32 s36, s36, {XT_BASE}
    s_lshl_b32 s42, s17, 7
    s_add_u32 s42, s42, s36
    v_mov_b32 v1, s37
    v_mov_b32 v2, 0
    s_cmp_eq_u32 s3, 0
    s_cselect_b32 exec_lo, 1, 0
    s_mov_b32 exec_hi, 0""")
    vm.issue("buffer_store_dword v1, v2, s[8:11], s42 offen sc1", "xcc")
    A(f"""s_mov_b64 exec, -1
    s_mul_i32 s24, s3, {98*1024}
    s_add_u32 s24, s24, {WO}
    s_and_b32 s42, s17, 15
    s_mul_i32 s25, s42, {28*7*1024}
    s_add_u32 s25, s25, s26
    s_add_u32 s25, s25, {WGU}
    v_bfe_u32 v10, v0, 4, 2
    v_lshrrev_b32 v11, 1, v10
    v_lshlrev_b32 v11, 9, v11
    v_lshl_add_u32 v11, v5, 4, v11
    v_and_b32 v12, 1, v10
    v_lshl_add_u32 v11, v12, 3, v11
    s_mul_i32 s34, s18, {28*1024}
    s_add_u32 s34, s34, s26
    s_lshl_b32 s42, s19, 7
    s_add_u32 s34, s34, s42""")
    wd.setup()
    for i in range(4): kvload(1, i)
    st(A, "pro")
    vm.wait("kn")
    A("""v_max_f32_dpp v9, v9, v9 row_shr:1 row_mask:0xf bank_mask:0xf
    v_max_f32_dpp v9, v9, v9 row_shr:2 row_mask:0xf bank_mask:0xf
    v_max_f32_dpp v9, v9, v9 row_shr:4 row_mask:0xf bank_mask:0xf
    v_max_f32_dpp v9, v9, v9 row_shr:8 row_mask:0xf bank_mask:0xf
    v_readlane_b32 s28, v9, 15
    v_readlane_b32 s29, v9, 31
    v_readlane_b32 s30, v9, 47
    v_readlane_b32 s31, v9, 63
    v_mov_b32 v9, s28
    v_max_f32 v9, s29, v9
    v_max_f32 v9, s30, v9
    v_max_f32 v9, s31, v9""")
    vm.wait("q1")
    A("s_mov_b32 exec_lo, 0")
    for j in range(4): A(f"v_lshlrev_b32 v{12+j}, 16, v{QR+8*j+6}")
    for j in range(4): A(f"v_mul_f32 v{12+j}, v{12+j}, v9")
    A(f"""v_max3_f32 v{SP}, v12, v13, v14
    v_max_f32 v{SP}, v{SP}, v15
    v_mov_b32 v{SP+1}, {f2u(BOUND_T):#x}
    v_cmp_nle_f32 vcc, v{SP}, v{SP+1}""")
    for j in range(4): A(f"v_cvt_pk_bf16_f32 v{QR+8*j+6}, -v{12+j}, 0")
    A("s_mov_b32 exec_lo, -1\n s_cbranch_vccnz attn_fallback")
    A.label("attn_main")
    A.fence(2)
    st(A, "bnd")
    for i in range(4): kvload(2, i)
    vm.wait("kv0")
    A(f"v_mfma_f32_32x32x16_bf16 v[{sb(0)}:{sb(0)+15}], {kv(0,0)}, {q(0,0)}, 0")
    A(f"v_mfma_f32_32x32x16_bf16 v[{sb(0)}:{sb(0)+15}], {kv(0,1)}, {q(0,1)}, v[{sb(0)}:{sb(0)+15}]")
    vm.wait("vv0")
    wo_dst = {}; wo_next = [0]
    def woload(dst):
        idx = wo_next[0]; wo_next[0] += 1
        wo_dst[idx] = dst
        vm.issue(f"buffer_load_dwordx4 {dst}, v6, s[8:11], s24 offen offset:{1024*(idx & 3)}", f"wo{idx}")
        if idx & 3 == 3: A("s_add_u32 s24, s24, 4096")
    def xres(nt):
        if nt == 0: A("s_add_u32 s42, s34, s21")
        if nt == 4: A("s_add_u32 s42, s42, 4096")
        vm.issue(f"buffer_load_dwordx2 v[{XR+2*nt}:{XR+2*nt+1}], v11, s[8:11], s42 offen offset:{1024*(nt%4)}", "x")
    spare_dst = [f"a[{4*i}:{4*i+3}]" for i in range(64)] + [f"v[{SP+4*i}:{SP+4*i+3}]" for i in range(4)]
    extra = [lambda d=d: woload(d) for d in spare_dst]
    NDMA = E("ATT_DMA", 3)
    dm = [lambda p=p, i=i: dma_piece(A, vm, p, i) for p in range(NDMA) for i in range(7)] + [lambda nt=nt: xres(nt) for nt in range(7)]
    merged = []
    while extra or dm:
        merged += extra[:3]; extra = extra[3:]
        merged += dm[:1]; dm = dm[1:]
    extra = merged
    def pop():
        if extra: extra.pop(0)()
    def exps(base):
        for r in range(4): A(f"v_exp_f32 v{base+r}, v{base+r}")
    NT = 64
    START = E("ATT_XSTART", 4)
    HT = EL("ATT_HT", "")
    def htouch(k):
        if k == 0:
            A(f"""s_lshr_b32 s28, s17, 4
            s_lshl_b32 s28, s28, 2
            s_add_u32 s28, s28, s3
            s_lshl_b32 s29, s16, 3
            s_add_u32 s28, s28, s29
            s_mul_i32 s28, s28, {112*1024}
            s_and_b32 s29, s17, 15
            s_mul_i32 s29, s29, {7*1024}
            s_add_u32 s28, s28, s29
            s_add_u32 s28, s28, s20
            s_add_u32 s28, s28, {H_O}
            v_lshlrev_b32 v12, 7, v5""")
        if k == 4: A("s_add_u32 s28, s28, 4096")
        vm.issue(f"buffer_load_dword v13, v12, s[8:11], s28 offen offset:{1024*(k&3)}", "touch")
    for t in range(NT):
        kt, j = t >> 2, t & 3
        t1 = t + 1; kt1, j1 = t1 >> 2, t1 & 3
        tm = t - 1; ktm, jm = (tm >> 2), tm & 3
        S, Sn, Sp, P, Pp = sb(t), sb(t1), sb(tm), pb(t), pb(tm)
        if j == 3 and kt < 15: vm.wait(f"kv{kt+1}", f"vv{kt+1}")
        if t in ATT_ST: st(A, f"att{t}")
        cvt(Pp+6, Sp+12); cvt(Pp+7, Sp+14)
        if t1 < NT: A(f"v_mfma_f32_32x32x16_bf16 v[{Sn}:{Sn+15}], {kv(kt1,0)}, {q(j1,0)}, 0")
        if kt + 3 < 16: kvload(kt + 3, j)
        else: woload(kv(kt + 3, j))
        exps(S)
        cvt(P+0, S+0); cvt(P+1, S+2)
        if t1 < NT: A(f"v_mfma_f32_32x32x16_bf16 v[{Sn}:{Sn+15}], {kv(kt1,1)}, {q(j1,1)}, v[{Sn}:{Sn+15}]")
        if t in HT: htouch(HT.index(t))
        exps(S+4)
        cvt(P+2, S+4); cvt(P+3, S+6)
        A(f"v_mfma_f32_32x32x16_bf16 {o(jm)}, {kv(ktm,3)}, v[{Pp+4}:{Pp+7}], {o(jm)}")
        if t >= START:
            pop()
            if len(extra) > NT - 1 - t: pop()
        exps(S+8)
        cvt(P+4, S+8); cvt(P+5, S+10)
        A(f"v_mfma_f32_32x32x16_bf16 {o(j)}, {kv(kt,2)}, v[{P}:{P+3}], {o(j)}")
        exps(S+12)
    assert not extra
    t = NT - 1
    A("v_and_b32 v12, 31, v0\n v_lshlrev_b32 v12, 7, v12")
    vm.issue("buffer_load_dword v9, v12, s[8:11], s36 offen sc1", "tab")
    for i in range(8): woload(f"v[{QR+4*i}:{QR+4*i+3}]")
    cvt(pb(t)+6, sb(t)+12); cvt(pb(t)+7, sb(t)+14)
    A(f"v_mfma_f32_32x32x16_bf16 {o(3)}, {kv(15,3)}, v[{pb(t)+4}:{pb(t)+7}], {o(3)}")
    st(A, "loop")
    late = [lambda i=i: woload(f"v[{sb(t+1)+4*i}:{sb(t+1)+4*i+3}]") for i in range(4)]
    late += [lambda: woload(kv(15, 1)), lambda: woload(kv(15, 2))]
    late += [lambda i=i: woload(f"v[{sb(t)+4*i}:{sb(t)+4*i+3}]") for i in range(4)]
    late += [lambda p=p, i=i: dma_piece(A, vm, p, i) for p in range(NDMA, 4) for i in range(7)]
    for jl in range(1, 4):
        A(f"s_xor_b32 s42, s3, {jl}\n s_mul_i32 s42, s42, 12288\n s_add_u32 s42, s42, {EXCH}\n v_add_u32 v{11+jl}, s42, v6")
    for jl in range(1, 4):
        for rq in range(4):
            r = OR_ + 16*jl + 4*rq
            A(f"ds_write_b128 v{11+jl}, v[{r}:{r+3}] offset:{(jl-1)*4096 + rq*1024}")
            if late: late.pop(0)()
    assert wo_next[0] == 98
    A(f"""s_mul_i32 s42, s3, 12288
    s_add_u32 s42, s42, {EXCH}
    v_add_u32 v12, s42, v6
    v_mul_u32_u24 v13, {ORS}, v5
    v_mul_u32_u24 v14, 56, v3
    v_lshlrev_b32 v15, 5, v4
    v_add3_u32 v13, v13, v14, v15
    v_add_u32 v13, s42, v13
    v_mul_u32_u24 v14, {ORS}, v5
    v_lshl_add_u32 v14, v10, 4, v14
    v_add_u32 v14, {EXCH}, v14
    v_lshrrev_b32 v15, 1, v10
    v_mul_u32_u24 v15, {12288 - 224}, v15
    v_add_u32 v15, v15, v14""")
    vm.wait("tab")
    A(f"""s_mov_b32 exec_hi, 0
    v_cmp_ne_u32 vcc, s37, v9
    s_mov_b32 exec_hi, -1
    s_cmp_eq_u32 vcc_lo, 0
    s_cselect_b32 s38, 1, 0
    s_waitcnt lgkmcnt(0)
    s_barrier""")
    for i in range(3):
        for rq in range(4):
            r = OR_ + 16*(i+1) + 4*rq
            A(f"ds_read_b128 v[{r}:{r+3}], v12 offset:{i*4096 + rq*1024}")
    while late: late.pop(0)()
    for i in range(3):
        A(f"s_waitcnt lgkmcnt({8 - 4*i})")
        for r in range(0, 16, 2): A(f"v_pk_add_f32 v[{OR_+r}:{OR_+r+1}], v[{OR_+r}:{OR_+r+1}], v[{OR_+16*(i+1)+r}:{OR_+16*(i+1)+r+1}]")
    A(f"""v_mov_b32 v{OR_+16}, v{OR_+12}
    v_mov_b32 v{OR_+17}, v{OR_+12}
    v_permlane32_swap_b32 v{OR_+16}, v{OR_+17}
    v_rcp_f32 v{OR_+17}, v{OR_+17}""")
    for r in range(0, 16, 2): A(f"v_pk_mul_f32 v[{OR_+r}:{OR_+r+1}], v[{OR_+r}:{OR_+r+1}], v[{OR_+16}:{OR_+17}] op_sel:[0,1] op_sel_hi:[1,1]")
    for p in range(8): cvt(OR_+18+p, OR_+2*p)
    A(f"""ds_write2_b64 v13, v[{OR_+18}:{OR_+19}], v[{OR_+20}:{OR_+21}] offset0:0 offset1:1
    ds_write_b64 v13, v[{OR_+22}:{OR_+23}] offset:16
    s_mov_b32 exec_hi, 0
    ds_write_b64 v13, v[{OR_+24}:{OR_+25}] offset:24
    s_mov_b32 exec_hi, -1
    s_waitcnt lgkmcnt(0)
    s_barrier""")
    st(A, "exch")
    BR = OR_
    for ks in range(14):
        k0 = 32 * ks
        off = (k0 // 112) * 12288 + (k0 % 112) * 2
        A(f"ds_read_b128 v[{BR+4*ks}:{BR+4*ks+3}], {'v15' if ks in (3, 10) else 'v14'} offset:{off}")
    ACC = [104, 108, PR, PR+4, PR+8, PR+12, KVR+48]
    X1, PK = KVR, KVR + 28
    WDO = E("OPROJ_WD", 20)
    for ks in range(14):
        A(f"s_waitcnt lgkmcnt({13-ks})")
        for nt in range(7):
            idx = ks*7 + nt
            if idx in (68, 80, 88): vm.wait(f"wo{min(idx + 11, 97)}")
            acc = f"v[{ACC[nt]}:{ACC[nt]+3}]"
            A(f"v_mfma_f32_16x16x32_bf16 {acc}, {wo_dst[idx]}, v[{BR+4*ks}:{BR+4*ks+3}], {'0' if ks == 0 else acc}")
            if idx >= 18 and idx % 4 == 2 and wd.i < WDO and wd.i + 16 < idx: wd.one()
    st(A, "oproj")
    A("v_mov_b32 v248, v238\n v_mov_b32 v249, v239")
    wd.ar = 248
    X1, PK = 48, 76
    for nt in range(7):
        A(f"""v_lshlrev_b32 v{X1+4*nt}, 16, v{XR+2*nt}
        v_and_b32 v{X1+4*nt+1}, 0xffff0000, v{XR+2*nt}
        v_lshlrev_b32 v{X1+4*nt+2}, 16, v{XR+2*nt+1}
        v_and_b32 v{X1+4*nt+3}, 0xffff0000, v{XR+2*nt+1}""")
    for nt in range(7):
        for r in (0, 2): A(f"v_pk_add_f32 v[{X1+4*nt+r}:{X1+4*nt+r+1}], v[{X1+4*nt+r}:{X1+4*nt+r+1}], v[{ACC[nt]+r}:{ACC[nt]+r+1}]")
    for p in range(14): cvt(PK+p, X1+2*p)
    A(f"""s_add_u32 s42, s34, s20
    s_add_u32 s42, s42, {X1_O}
    s_add_u32 s43, s42, 4096
    s_mov_b32 exec_lo, 0x00ff00ff
    s_mov_b32 exec_hi, 0x00ff00ff""")
    store2(A, vm, [f"buffer_store_dwordx2 v[{PK+2*nt}:{PK+2*nt+1}], v11, s[8:11], s{42 + nt//4} offen offset:{1024*(nt%4)}" for nt in range(7)], "st")
    A("s_mov_b64 exec, -1")
    A(f"""v_pk_add_f32 v[92:93], v[{X1}:{X1+1}], v[{X1+2}:{X1+3}]
    v_pk_mul_f32 v[94:95], v[{X1}:{X1+1}], v[{X1}:{X1+1}]
    v_pk_add_f32 v[96:97], v[{X1+4}:{X1+5}], v[{X1+6}:{X1+7}]
    v_pk_mul_f32 v[98:99], v[{X1+2}:{X1+3}], v[{X1+2}:{X1+3}]""")
    for p in range(2, 14):
        c = 4 * (p & 1)
        if p >= 4: A(f"v_pk_add_f32 v[{92+c}:{93+c}], v[{92+c}:{93+c}], v[{X1+2*p}:{X1+2*p+1}]")
        A(f"v_pk_fma_f32 v[{94+c}:{95+c}], v[{X1+2*p}:{X1+2*p+1}], v[{X1+2*p}:{X1+2*p+1}], v[{94+c}:{95+c}]")
    A(f"""v_pk_add_f32 v[92:93], v[92:93], v[96:97]
    v_pk_add_f32 v[94:95], v[94:95], v[98:99]
    v_add_f32 v92, v92, v93
    v_add_f32 v93, v94, v95
    v_mov_b32 v94, v92
    v_mov_b32 v95, v93
    v_lshlrev_b32 v96, 5, v5
    s_lshl_b32 s42, s18, 10
    v_permlane32_swap_b32 v92, v94
    v_permlane32_swap_b32 v93, v95
    v_pk_add_f32 v[92:93], v[92:93], v[94:95]
    s_lshl_b32 s43, s19, 8
    s_add_u32 s42, s42, s43
    s_lshl_b32 s43, s3, 3
    v_mov_b32 v94, v92
    v_mov_b32 v95, v93
    s_add_u32 s42, s42, s43
    s_add_u32 s42, s42, s20
    v_permlane16_swap_b32 v92, v94
    v_permlane16_swap_b32 v93, v95
    v_pk_add_f32 v[92:93], v[92:93], v[94:95]
    s_add_u32 s42, s42, {ST1_O}
    s_mov_b64 exec, 0xff""")
    store2(A, vm, ["buffer_store_dwordx2 v[92:93], v96, s[8:11], s42 offen"], "st")
    A("s_mov_b64 exec, -1")
    for i in range(E("SIG0_WD", 4)): wd.one()
    signal(A, vm, 0, "st")
    for i in range(7): dma_piece(A, vm, 4, i)

def att_fallback(A):
    LDS_MX = EXCH
    A.label("attn_fallback")
    A.reset_hz()
    A.fence(8)
    FK = SP + 4
    A("s_mov_b32 exec_lo, 0")
    for j in range(4): A(f"v_mov_b32 v{QR+8*j+6}, 0")
    A("s_mov_b32 exec_lo, -1")
    for j in range(4): A(f"v_mov_b32 v{12+j}, 0xff800000")
    A("s_mov_b32 s44, 16")
    A.label("attn_fb_loop")
    A(f"""buffer_load_dwordx4 v[{FK}:{FK+3}], v6, s[8:11], s33 offen
    buffer_load_dwordx4 v[{FK+4}:{FK+7}], v6, s[8:11], s33 offen offset:1024
    s_add_u32 s33, s33, 4096
    s_waitcnt vmcnt(0)""")
    for j in range(4):
        S = sb(0)
        A(f"v_mfma_f32_32x32x16_bf16 v[{S}:{S+15}], v[{FK}:{FK+3}], {q(j,0)}, 0")
        A(f"v_mfma_f32_32x32x16_bf16 v[{S}:{S+15}], v[{FK+4}:{FK+7}], {q(j,1)}, v[{S}:{S+15}]")
        for r in range(0, 16, 2): A(f"v_max3_f32 v{12+j}, v{S+r}, v{S+r+1}, v{12+j}")
    A("""s_sub_u32 s44, s44, 1
    s_cmp_lg_u32 s44, 0
    s_cbranch_scc1 attn_fb_loop""")
    A.fence(8)
    for j in range(4): A(f"v_mov_b32 v{SP+j}, v{12+j}")
    for j in range(4): A(f"v_permlane32_swap_b32 v{12+j}, v{SP+j}")
    for j in range(4): A(f"v_max_f32 v{12+j}, v{12+j}, v{SP+j}")
    A(f"v_and_b32 v{SP}, 31, v0\n v_lshlrev_b32 v{SP}, 2, v{SP}\n v_add_u32 v{SP}, {LDS_MX}, v{SP}")
    for jl in range(4):
        A(f"""s_xor_b32 s42, s3, {jl}
        s_lshl_b32 s42, s42, 7
        v_add_u32 v{SP+4+jl}, s42, v{SP}
        s_lshl_b32 s42, s3, 9
        v_add_u32 v{SP+1}, s42, v{SP+4+jl}
        ds_write_b32 v{SP+1}, v{12+jl}""")
    A("s_waitcnt lgkmcnt(0)\n s_barrier")
    for jl in range(4):
        for w in range(4): A(f"ds_read_b32 v{SP+8+w}, v{SP+4+jl} offset:{512*w}")
        A(f"""s_waitcnt lgkmcnt(0)
        v_max3_f32 v{12+jl}, v{SP+8}, v{SP+9}, v{SP+10}
        v_max_f32 v{12+jl}, v{12+jl}, v{SP+11}""")
    A("s_mov_b32 exec_lo, 0")
    for j in range(4):
        m = 12 + j
        A(f"""v_sub_f32 v{m}, 0, v{m}
        v_and_b32 v{SP}, 0xffff0000, v{m}
        v_sub_f32 v{m}, v{m}, v{SP}
        v_and_b32 v{SP+1}, 0xffff0000, v{m}
        v_sub_f32 v{m}, v{m}, v{SP+1}
        v_lshrrev_b32 v{SP}, 16, v{SP}
        v_or_b32 v{QR+8*j+6}, v{SP}, v{SP+1}
        v_lshrrev_b32 v{QR+8*j+7}, 16, v{m}""")
    A("s_mov_b32 exec_lo, -1\n s_branch attn_main")
    A.label("code_end")

def wq_src(A, i):
    lt, ks = divmod(i, 7)
    if i == 0: A(f"s_add_u32 s45, s26, {WQKV}")
    if ks == 0:
        if lt < 4: A(f"s_xor_b32 s42, s3, {lt}\n s_lshl_b32 s43, s19, 2\n s_add_u32 s42, s42, s43")
        else: A("s_and_b32 s42, s19, 1\n s_add_u32 s42, s42, 16")
        A(f"s_mul_i32 s42, s42, {28*1024}\n s_add_u32 s30, s42, s45\n s_add_u32 s31, s30, 4096")
    return f"s{30 + ks//4} offen offset:{1024*(ks%4)}", 1024*(ks%4)
def wq_load(A, vm, i):
    src, io = wq_src(A, i)
    if i < 25:
        A(f"s_add_u32 m0, s27, {WQ_LDS + i*4096 - io}")
        vm.issue(f"buffer_load_dwordx4 v6, s[8:11], {src} lds", "wq")
    else:
        vm.issue(f"buffer_load_dwordx4 a[{64+4*(i-25)}:{67+4*(i-25)}], v6, s[8:11], {src}", "wq")

def phase_gu(A, vm, wd):
    XF, AC = 16, 128
    A(f"""s_lshr_b32 s42, s17, 4
    s_lshl_b32 s42, s42, 2
    s_add_u32 s42, s42, s3
    s_lshl_b32 s28, s16, 3
    s_add_u32 s28, s28, s42
    s_lshl_b32 s42, s42, 2
    s_lshl_b32 s44, 15, s42
    s_mul_i32 s23, s28, {28*1024}
    s_add_u32 s23, s23, s20
    s_add_u32 s23, s23, {X1_O}
    s_lshl_b32 s24, s28, 10
    s_add_u32 s24, s24, s20
    s_add_u32 s24, s24, {ST1_O}
    s_lshl_b32 s27, s3, 10
    v_add_u32 v7, 0x10000, v6
    v_add_u32 v8, 0x20000, v6
    v_and_b32 v3, 31, v0
    v_bfe_u32 v4, v0, 5, 1
    v_lshlrev_b32 v5, 5, v3
    v_lshl_add_u32 v5, v4, 4, v5""")
    def wf(ks, at): b = 28 * (ks & 1) + 4 * at; return f"a[{b}:{b+3}]"
    def rd(ks, at):
        p, kk = ks >> 2, ks & 3
        off = (p % 5) * RING_SLOT + kk * 7168 + at * 1024
        base = "v6" if off < 65536 else ("v7" if off < 131072 else "v8")
        A(f"ds_read_b128 {wf(ks, at)}, {base} offset:{off & 65535}")
    for at in range(7): rd(0, at)
    st(A, "gu_w")
    waitflags(A, vm, 0, 44)
    st(A, "gu_go")
    def xload(ks):
        vm.issue(f"buffer_load_dwordx4 v[{XF+4*ks}:{XF+4*ks+3}], v6, s[8:11], s23 offen offset:{1024*(ks&3)} sc1", f"x{ks}")
        if ks & 3 == 3: A("s_add_u32 s23, s23, 4096")
    XPRE = E("GU_XPRE", 6)
    for ks in range(XPRE): xload(ks)
    extra = [lambda ks=ks: xload(ks) for ks in range(XPRE, 28)]
    extra.append(lambda: vm.issue("buffer_load_dwordx4 v[12:15], v5, s[8:11], s24 offen sc1", "stat"))
    extra += [wd.one] * (48 - wd.i)
    PER = E("GU_PER", 3)
    def htouch():
        A(f"""s_mul_i32 s42, s28, {112*1024}
        s_and_b32 s43, s17, 15
        s_mul_i32 s43, s43, {7*1024}
        s_add_u32 s42, s42, s43
        s_add_u32 s42, s42, s20
        s_add_u32 s42, s42, {H_O}
        v_lshlrev_b32 v9, 3, v6
        v_min_u32 v9, {55*128}, v9""")
        vm.issue("buffer_load_dword v9, v9, s[8:11], s42 offen", "touch")
    for ks in range(28):
        p = ks >> 2
        nxt = ks + 1
        if nxt < 28 and (nxt & 3) == 0:
            if p + 1 >= 4:
                vm.wait(f"w{p+1}")
                A("s_barrier")
            elif p in (1, 2):
                A("s_barrier")
            if p in (1, 2): extra = [lambda i=i, p=p: dma_piece(A, vm, p + 4, i) for i in range(7)] + extra
            if p == E("H_TOUCH", 99): extra.insert(7, htouch)
            if p == 4: extra += [lambda i=i: wq_load(A, vm, i) for i in range(13)]
            if p == 5: extra += [lambda i=i: wq_load(A, vm, i) for i in range(13, 25)]
        vm.wait(f"x{ks}")
        if ks in GU_ST: st(A, f"gu{ks}")
        for at in range(7):
            A(f"s_waitcnt lgkmcnt(6)" if nxt < 28 else f"s_waitcnt lgkmcnt({6-at})")
            acc = f"v[{AC+16*at}:{AC+16*at+15}]"
            A(f"v_mfma_f32_32x32x16_bf16 {acc}, {wf(ks, at)}, v[{XF+4*ks}:{XF+4*ks+3}], {'0' if ks == 0 else acc}")
            if nxt < 28: rd(nxt, at)
            if at in ((1, 3, 5) if PER == 3 else (0, 2, 4, 6)) and extra: extra.pop(0)()
    st(A, "gu_mm")
    vm.wait("stat")
    A(f"""v_pk_add_f32 v[12:13], v[12:13], v[14:15]
    s_mul_i32 s42, s28, {112*1024}
    s_and_b32 s43, s17, 15
    v_mov_b32 v14, v12
    v_mov_b32 v15, v13
    s_mul_i32 s43, s43, {7*1024}
    s_add_u32 s42, s42, s43
    v_permlane32_swap_b32 v12, v14
    v_permlane32_swap_b32 v13, v15
    v_pk_add_f32 v[12:13], v[12:13], v[14:15]
    v_mul_f32 v12, {f2u(1.0/448):#x}, v12
    v_mul_f32 v13, {f2u(1.0/448):#x}, v13
    v_fma_f32 v13, -v12, v12, v13
    v_max_f32 v13, 0, v13
    v_add_f32 v13, {f2u(1e-5):#x}, v13
    v_rcp_f32 v10, v13
    s_add_u32 s42, s42, s20
    s_add_u32 s24, s42, {H_O}
    s_add_u32 s25, s24, 4096
    v_mov_b32 v11, v10""")
    for at in range(7):
        b = AC + 16 * at
        for r in range(0, 8, 2): A(f"v_pk_mul_f32 v[{b+r}:{b+r+1}], v[{b+r}:{b+r+1}], v[{b+8+r}:{b+9+r}]")
        for r in range(0, 8, 2): A(f"v_pk_mul_f32 v[{b+r}:{b+r+1}], v[{b+r}:{b+r+1}], v[10:11]")
        for p in range(4): A(f"v_cvt_pk_bf16_f32 v{16+4*at+p}, v{b+2*p}, v{b+2*p+1}")
    store2(A, vm, [f"buffer_store_dwordx4 v[{16+4*at}:{19+4*at}], v6, s[8:11], s{24 + at//4} offen offset:{1024*(at%4)}" for at in range(7)], "st", os.environ.get("H_FORCE", "sc1"))
    while extra: extra.pop(0)()
    for i in range(8): wd.one()
    signal(A, vm, 1, "st")

def phase_down(A, vm):
    HF = 16
    A(f"""s_cmp_ge_u32 s17, 28
    s_cbranch_scc1 down_skip
    s_and_b32 s28, s17, 3
    s_lshr_b32 s29, s17, 2
    s_lshr_b32 s42, s28, 1
    s_lshl_b32 s42, s42, 2
    s_add_u32 s42, s42, s3
    s_lshl_b32 s42, s42, 2
    s_lshl_b32 s44, 15, s42
    s_lshl_b32 s32, s16, 3
    s_lshl_b32 s42, s28, 1
    s_add_u32 s32, s32, s42
    s_lshr_b32 s42, s3, 1
    s_add_u32 s32, s32, s42
    s_xor_b32 s33, s32, 1
    s_mul_i32 s23, s32, {112*1024}
    s_mul_i32 s25, s33, {112*1024}
    s_mul_i32 s42, s3, {28*1024}
    s_add_u32 s42, s42, s20
    s_add_u32 s42, s42, {H_O}
    s_add_u32 s23, s23, s42
    s_add_u32 s25, s25, s42
    s_mul_i32 s34, s32, {28*1024}
    s_lshl_b32 s42, s29, 12
    s_add_u32 s34, s34, s42
    s_and_b32 s42, s3, 1
    s_lshl_b32 s42, s42, 11
    s_add_u32 s34, s34, s42
    s_add_u32 s42, s34, s20
    s_add_u32 s42, s42, {X1_O}""")
    A("""buffer_load_dwordx4 v[240:243], v6, s[8:11], s42 offen sc1
    buffer_load_dwordx4 v[244:247], v6, s[8:11], s42 offen offset:1024 sc1""")
    st(A, "dn_w")
    waitflags(A, vm, 1, 44)
    st(A, "dn_go")
    def hf(ks, t): b = HF + 8 * (ks % 24) + 4 * t; return f"v[{b}:{b+3}]"
    def wdf(ks, a):
        i = ks * 2 + a
        return f"a[{64+4*i}:{67+4*i}]" if ks < 24 else f"v[{208+4*(i-48)}:{211+4*(i-48)}]"
    def load(ks):
        vm.issue(f"buffer_load_dwordx4 {hf(ks,0)}, v6, s[8:11], s23 offen offset:{1024*(ks&3)}{SC1}", f"k{ks}")
        vm.issue(f"buffer_load_dwordx4 {hf(ks,1)}, v6, s[8:11], s25 offen offset:{1024*(ks&3)}{SC1}", f"k{ks}")
        if ks & 3 == 3: A("s_add_u32 s23, s23, 4096\n s_add_u32 s25, s25, 4096")
    PRE = E("DN_PRE", 4)
    for ks in range(PRE): load(ks)
    nl = PRE
    for ks in range(28):
        vm.wait(f"k{ks}")
        if ks in DN_ST: st(A, f"dn{ks}")
        for t in range(2):
            for a in range(2):
                lp = a + 2*t
                acc = f"a[{16*lp}:{16*lp+15}]"
                A(f"v_mfma_f32_32x32x16_bf16 {acc}, {wdf(ks,a)}, {hf(ks,t)}, {'0' if ks == 0 else acc}")
                if nl < 28 and (nl < 24 or nl - 24 < ks): load(nl); nl += 1
    assert nl == 28
    st(A, "dn_mm")
    for lp in range(1, 4):
        A(f"s_xor_b32 s42, s3, {lp}\n s_mul_i32 s42, s42, 12288\n v_add_u32 v{8+lp}, s42, v6")
    for p in range(8):
        A(f"v_lshlrev_b32 v{80+2*p}, 16, v{240+p}\n v_and_b32 v{81+2*p}, 0xffff0000, v{240+p}")
    for lp in range(1, 4):
        for rq in range(4):
            r = 16*lp + 4*rq
            A(f"ds_write_b128 v{8+lp}, a[{r}:{r+3}] offset:{(lp-1)*4096 + rq*1024}")
    A(f"""s_mul_i32 s42, s3, 12288
    v_add_u32 v12, s42, v6""")
    for r in range(16): A(f"v_accvgpr_read_b32 v{16+r}, a{r}")
    for r in range(0, 16, 2): A(f"v_pk_add_f32 v[{16+r}:{17+r}], v[{16+r}:{17+r}], v[{80+r}:{81+r}]")
    A("s_waitcnt lgkmcnt(0)\n s_barrier")
    for i in range(3):
        for rq in range(4):
            r = 32 + 16*i + 4*rq
            A(f"ds_read_b128 v[{r}:{r+3}], v12 offset:{i*4096 + rq*1024}")
    for i in range(3):
        A(f"s_waitcnt lgkmcnt({8-4*i})")
        for r in range(0, 16, 2): A(f"v_pk_add_f32 v[{16+r}:{17+r}], v[{16+r}:{17+r}], v[{32+16*i+r}:{33+16*i+r}]")
    for p in range(8): A(f"v_cvt_pk_bf16_f32 v{96+p}, v{16+2*p}, v{17+2*p}")
    A(f"""s_cmp_eq_u32 s39, 1
    s_cbranch_scc0 down_x2
    v_mul_u32_u24 v5, 896, v3
    v_lshl_add_u32 v5, v4, 4, v5
    s_mul_i32 s42, s32, {32*896}
    s_lshl_b32 s43, s29, 7
    s_add_u32 s42, s42, s43
    s_and_b32 s43, s3, 1
    s_lshl_b32 s43, s43, 6
    s_add_u32 s42, s42, s43
    buffer_store_dwordx4 v[96:99], v5, s[12:15], s42 offen
    buffer_store_dwordx4 v[100:103], v5, s[12:15], s42 offen offset:32""")
    if STAMPS:
        A("s_waitcnt vmcnt(0)")
        main_flush(A, 3)
    A("s_endpgm")
    A.label("down_x2")
    A.fence(2)
    A(f"s_add_u32 s42, s34, s20\n s_add_u32 s42, s42, {X2_O}")
    store2(A, vm, ["buffer_store_dwordx4 v[96:99], v6, s[8:11], s42 offen", "buffer_store_dwordx4 v[100:103], v6, s[8:11], s42 offen offset:1024"], "st")
    A(f"""v_pk_add_f32 v[32:33], v[16:17], v[18:19]
    v_pk_mul_f32 v[34:35], v[16:17], v[16:17]
    v_pk_add_f32 v[36:37], v[20:21], v[22:23]
    v_pk_mul_f32 v[38:39], v[18:19], v[18:19]""")
    for p in range(2, 8):
        c = 4 * (p & 1)
        if p >= 4: A(f"v_pk_add_f32 v[{32+c}:{33+c}], v[{32+c}:{33+c}], v[{16+2*p}:{17+2*p}]")
        A(f"v_pk_fma_f32 v[{34+c}:{35+c}], v[{16+2*p}:{17+2*p}], v[{16+2*p}:{17+2*p}], v[{34+c}:{35+c}]")
    A(f"""v_pk_add_f32 v[32:33], v[32:33], v[36:37]
    v_pk_add_f32 v[34:35], v[34:35], v[38:39]
    v_add_f32 v32, v32, v33
    v_add_f32 v33, v34, v35
    v_mov_b32 v34, v32
    v_mov_b32 v35, v33
    v_lshlrev_b32 v36, 7, v3
    s_lshl_b32 s42, s32, 12
    v_permlane32_swap_b32 v32, v34
    v_permlane32_swap_b32 v33, v35
    v_pk_add_f32 v[32:33], v[32:33], v[34:35]
    s_lshl_b32 s43, s29, 4
    s_add_u32 s42, s42, s43
    s_and_b32 s43, s3, 1
    s_lshl_b32 s43, s43, 3
    s_add_u32 s42, s42, s43
    s_add_u32 s42, s42, {ST2 + 0x40000}
    s_mov_b32 exec_hi, 0""")
    store2(A, vm, ["buffer_store_dwordx2 v[32:33], v36, s[8:11], s42 offen"], "st")
    A(f"""s_mov_b32 exec_hi, -1
    s_lshl_b32 s24, s28, 3
    s_add_u32 s24, s24, s29""")
    for i in range(25, 35): wq_load(A, vm, i)
    signal(A, vm, 2, "st", "s24")
    A("s_branch qkv_wait")
    A.label("down_skip")
    A.fence(4)
    A("s_cmp_eq_u32 s39, 1\n s_cbranch_scc1 main_end")
    A("s_barrier\n s_barrier" if False else "s_nop 0")
    for i in range(25, 35): wq_load(A, VM2(A), i)
    A.label("qkv_wait")
    A.fence(4)
    A(f"""s_lshr_b32 s42, s17, 3
    s_lshl_b32 s42, s42, 3
    s_lshl_b32 s44, 0x7f, s42
    s_add_u32 s21, s20, {X2_O}
    s_mov_b32 s20, {ABASE[1]}
    s_mov_b32 s32, {LBASE[1]}
    s_mov_b32 s24, {ST2 + 0x40000}""")
    st(A, "qkv_w")
    waitflags(A, vm, 2, 44)

def qkv_epilogue(A, vm, P, raw, bar=None):
    AC = 16
    FS = os.environ.get("QKV_FS", "")
    if FS: FS = " " + FS
    XT = 49152
    for lp in range(1, 4):
        A(f"s_xor_b32 s42, s3, {lp}\n s_mul_i32 s42, s42, 12288\n v_add_u32 v{124+lp}, s42, v6")
    A.fence(4)
    for lp in range(1, 4):
        for rq in range(4):
            r = AC + 16*lp + 4*rq
            A(f"ds_write_b128 v{124+lp}, v[{r}:{r+3}] offset:{(lp-1)*4096 + rq*1024}")
    A(f"""s_cmp_ge_u32 s19, 2
    s_cbranch_scc1 {P}_nox
    s_cmp_eq_u32 s3, 0
    s_cbranch_scc1 {P}_nox
    s_lshl_b32 s42, s3, 12
    s_add_u32 s42, s42, {XT - 4096}
    v_add_u32 v124, s42, v6""")
    for rq in range(4):
        r = AC + 64 + 4*rq
        A(f"ds_write_b128 v124, v[{r}:{r+3}] offset:{rq*1024}")
    A.label(P + "_nox")
    A(f"""s_mul_i32 s42, s3, 12288
    v_add_u32 v12, s42, v6""")
    if not raw:
        vm.wait("stat")
        for sz in (8, 4, 2):
            for i in range(0, sz, 2):
                A(f"v_pk_add_f32 v[{128+i}:{129+i}], v[{128+i}:{129+i}], v[{128+sz+i}:{129+sz+i}]")
        A(f"""v_mov_b32 v130, v128
        v_mov_b32 v131, v129
        s_lshl_b32 s42, s18, 15
        s_lshl_b32 s43, s19, 13
        v_permlane32_swap_b32 v128, v130
        v_permlane32_swap_b32 v129, v131
        v_pk_add_f32 v[128:129], v[128:129], v[130:131]
        v_mul_f32 v128, {f2u(1.0/448):#x}, v128
        v_mul_f32 v129, {f2u(1.0/448):#x}, v129
        v_fma_f32 v129, -v128, v128, v129
        v_max_f32 v129, 0, v129
        v_add_f32 v129, {f2u(1e-5):#x}, v129
        v_rsq_f32 v10, v129
        s_add_u32 s42, s42, s43
        s_lshl_b32 s43, s3, 11
        s_add_u32 s42, s42, s43
        s_add_u32 s42, s42, s20
        v_mov_b32 v11, v10
        s_waitcnt lgkmcnt(0)
        s_barrier""")
    else:
        A(f"""s_lshl_b32 s42, s18, 15
        s_lshl_b32 s43, s19, 13
        s_add_u32 s42, s42, s43
        s_lshl_b32 s43, s3, 11
        s_add_u32 s42, s42, s43
        s_add_u32 s42, s42, s20
        v_mov_b32 v10, {f2u(QSCALE):#x}
        v_mov_b32 v11, {f2u(QSCALE):#x}
        s_waitcnt lgkmcnt(0)""")
        bar(2)
    for i in range(3):
        for rq in range(4):
            r = AC + 16*(i+1) + 4*rq
            A(f"ds_read_b128 v[{r}:{r+3}], v12 offset:{i*4096 + rq*1024}")
    for i in range(3):
        A(f"s_waitcnt lgkmcnt({8-4*i})")
        for r in range(0, 16, 2): A(f"v_pk_add_f32 v[{AC+r}:{AC+r+1}], v[{AC+r}:{AC+r+1}], v[{AC+16*(i+1)+r}:{AC+16*(i+1)+r+1}]")
    for r in range(0, 16, 2): A(f"v_pk_mul_f32 v[{AC+r}:{AC+r+1}], v[{AC+r}:{AC+r+1}], v[10:11]")
    for p in range(8): A(f"v_cvt_pk_bf16_f32 v{144+p}, v{AC+2*p}, v{AC+2*p+1}")
    def norm(base, d):
        A(f"v_mov_b32 v{d}, 0\n v_mov_b32 v{d+1}, 0")
        for p in range(8): A(f"v_dot2_f32_bf16 v{d+(p&1)}, v{base+p}, v{base+p}, v{d+(p&1)}")
        A(f"""v_add_f32 v{d}, v{d}, v{d+1}
        v_mov_b32 v{d+1}, v{d}
        v_permlane32_swap_b32 v{d}, v{d+1}
        v_add_f32 v{d}, v{d}, v{d+1}
        v_sqrt_f32 v{d}, v{d}
        v_mul_f32 v{d}, {f2u(1.01):#x}, v{d}""")
    A("buffer_store_dwordx4 v[144:147], v6, s[8:11], s42 offen" + FS)
    if raw: A("s_mov_b32 exec_lo, 0\n v_mov_b32 v150, 0\n v_mov_b32 v151, 0\n s_mov_b32 exec_lo, -1")
    norm(144, 132)
    A(f"""s_mov_b32 exec_lo, 0
    v_cvt_pk_bf16_f32 v150, v132, 0
    s_mov_b32 exec_lo, -1
    buffer_store_dwordx4 v[148:151], v6, s[8:11], s42 offen offset:1024{FS}
    s_cmp_ge_u32 s19, 2
    s_cbranch_scc1 {P}_fin
    s_cmp_lg_u32 s3, 0
    s_cbranch_scc1 {P}_fin
    v_add_u32 v12, {XT}, v6""")
    EE = AC + 64
    for i in range(3):
        for rq in range(4):
            r = AC + 16*i + 4*rq
            A(f"ds_read_b128 v[{r}:{r+3}], v12 offset:{i*4096 + rq*1024}")
    A(f"""s_lshl_b32 s42, s18, 12
    s_add_u32 s42, s42, s32
    s_add_u32 s42, s42, {KV_O}""")
    for i in range(3):
        A(f"s_waitcnt lgkmcnt({8-4*i})")
        for r in range(0, 16, 2): A(f"v_pk_add_f32 v[{EE+r}:{EE+r+1}], v[{EE+r}:{EE+r+1}], v[{AC+16*i+r}:{AC+16*i+r+1}]")
    A(f"s_cmp_eq_u32 s19, 1\n s_cbranch_scc1 {P}_epi_v")
    if not raw:
        for r in range(0, 16, 2): A(f"v_pk_mul_f32 v[{EE+r}:{EE+r+1}], v[{EE+r}:{EE+r+1}], v[10:11]")
    for p in range(8): A(f"v_cvt_pk_bf16_f32 v{152+p}, v{EE+2*p}, v{EE+2*p+1}")
    A("buffer_store_dwordx4 v[152:155], v6, s[8:11], s42 offen" + FS)
    if raw: A("s_mov_b32 exec_lo, 0\n v_mov_b32 v158, 0\n v_mov_b32 v159, 0\n s_mov_b32 exec_lo, -1")
    norm(152, 20)
    A(f"""s_mov_b32 exec_lo, 0
    v_mov_b32 v158, 0x3f803f80
    v_mov_b32 v159, 0x00003f80
    s_mov_b32 exec_lo, -1
    buffer_store_dwordx4 v[156:159], v6, s[8:11], s42 offen offset:1024{FS}
    v_max_f32_dpp v20, v20, v20 row_shr:1 row_mask:0xf bank_mask:0xf
    v_max_f32_dpp v20, v20, v20 row_shr:2 row_mask:0xf bank_mask:0xf
    v_max_f32_dpp v20, v20, v20 row_shr:4 row_mask:0xf bank_mask:0xf
    v_max_f32_dpp v20, v20, v20 row_shr:8 row_mask:0xf bank_mask:0xf
    v_readlane_b32 s30, v20, 15
    v_readlane_b32 s31, v20, 31
    v_mov_b32 v21, s30
    v_max_f32 v21, s31, v21
    s_lshl_b32 s42, s18, 2
    s_add_u32 s42, s42, s32
    s_add_u32 s42, s42, {KN_O}
    v_mov_b32 v22, 0
    s_mov_b64 exec, 1
    buffer_store_dword v21, v22, s[8:11], s42 offen{FS}
    s_branch {P}_fin""")
    A.label(P + "_epi_v")
    A.fence(4)
    if not raw:
        A(f"""v_lshlrev_b32 v20, 2, v3
        ds_write_b32 v20, v10
        v_lshlrev_b32 v21, 4, v4
        v_cmp_eq_u32 vcc, 28, v3
        v_mov_b32 v23, 0
        v_mov_b32 v24, 1.0
        v_cndmask_b32 v23, v23, v24, vcc
        s_waitcnt lgkmcnt(0)""")
        for qq in range(4): A(f"ds_read_b128 v[{40+4*qq}:{43+4*qq}], v21 offset:{32*qq}")
        A("s_waitcnt lgkmcnt(0)")
        for r in range(16): A(f"v_fma_f32 v{EE+r}, v{EE+r}, v{40+r}, v23")
    else:
        A("""v_cmp_eq_u32 vcc, 28, v3
        v_mov_b32 v23, 0
        v_mov_b32 v24, 1.0
        v_cndmask_b32 v23, v23, v24, vcc
        v_cmp_le_u32 vcc, 28, v3""")
        for r in range(16): A(f"v_cndmask_b32 v{EE+r}, v{EE+r}, v23, vcc")
    for p in range(8): A(f"v_cvt_pk_bf16_f32 v{152+p}, v{EE+2*p}, v{EE+2*p+1}")
    A(f"""buffer_store_dwordx4 v[152:155], v6, s[8:11], s42 offen offset:2048{FS}
    buffer_store_dwordx4 v[156:159], v6, s[8:11], s42 offen offset:3072{FS}""")
    A.label(P + "_fin")
    if STAMPS:
        A.fence(4)
        A("s_waitcnt vmcnt(0)")
        main_flush(A, 3)

def phase_qkv(A):
    vm = VM2(A)
    XF, AC, WB = 96, 16, 160
    st(A, "qkv_go")
    A(f"""s_mul_i32 s42, s18, {28*1024}
    s_add_u32 s42, s42, s26
    s_add_u32 s42, s42, s21
    s_add_u32 s43, s42, 4096
    s_lshl_b32 s25, s18, 12
    s_add_u32 s24, s24, s25
    v_lshlrev_b32 v5, 7, v3
    v_lshl_add_u32 v5, v4, 6, v5
    v_add_u32 v7, s27, v6
    v_add_u32 v7, {WQ_LDS}, v7
    v_add_u32 v8, 0x10000, v7""")
    for r in range(4): A(f"v_mov_b32 v{140+r}, 0")
    for ks in range(7):
        vm.issue(f"buffer_load_dwordx4 v[{XF+4*ks}:{XF+4*ks+3}], v6, s[8:11], s{42 + ks//4} offen offset:{1024*(ks%4)} sc1", f"x{ks}")
    for i in range(3): vm.issue(f"buffer_load_dwordx4 v[{128+4*i}:{131+4*i}], v5, s[8:11], s24 offen offset:{16*i} sc1", "stat")
    A("s_mov_b32 exec_hi, 0")
    vm.issue(f"buffer_load_dwordx4 v[140:143], v5, s[8:11], s24 offen offset:48 sc1", "stat")
    A("s_mov_b32 exec_hi, -1")
    def w(i): return f"a[{104+4*i}:{107+4*i}]" if i < 25 else f"a[{64+4*(i-25)}:{67+4*(i-25)}]"
    order = sorted(range(25), key=lambda i: (i % 7, i // 7))
    for n, i in enumerate(order):
        off = i * 4096
        A(f"ds_read_b128 {w(i)}, {'v7' if off < 65536 else 'v8'} offset:{off & 65535}")
        if n == 14: break
    rest = order[15:]
    pos = {i: n for n, i in enumerate(order)}
    def mm(kind):
        issued = 15; rs = list(rest)
        for ks in range(7):
            vm.wait(f"x{ks}")
            x = f"v[{XF+4*ks}:{XF+4*ks+3}]"
            for lt in ([4] if kind else []) + [0, 1, 2, 3]:
                i = lt * 7 + ks
                if i < 25: A(f"s_waitcnt lgkmcnt({min(15, issued - 1 - pos[i])})")
                acc = f"v[{AC+16*lt}:{AC+16*lt+15}]"
                c = "0" if ks == 0 else acc
                if lt == 4 and kind == 2: A(f"v_mfma_f32_32x32x16_bf16 {acc}, {x}, {w(i)}, {c}")
                else: A(f"v_mfma_f32_32x32x16_bf16 {acc}, {w(i)}, {x}, {c}")
                if rs:
                    j = rs.pop(0); off = j * 4096
                    A(f"ds_read_b128 {w(j)}, {'v7' if off < 65536 else 'v8'} offset:{off & 65535}"); issued += 1
    A("s_cmp_eq_u32 s19, 0\n s_cbranch_scc1 qkv_mmk\n s_cmp_eq_u32 s19, 1\n s_cbranch_scc1 qkv_mmv")
    mm(0)
    A("s_branch qkv_red")
    A.label("qkv_mmk"); A.reset_hz(); mm(1); A("s_branch qkv_red")
    A.label("qkv_mmv"); A.reset_hz(); mm(2)
    A.label("qkv_red")
    A.fence(4)
    st(A, "qkv_mm")
    qkv_epilogue(A, vm, "qkv", False)


PQ_KV = 4 * 28 * 1024
PQ_ST = PQ_KV + 4 * 7 * 1024
PQ_PREP = PQ_ST + 1024
PQ_SYNC = PQ_PREP + 1024
PQ_LDS = PQ_SYNC + 64
PFS = os.environ.get("PREP_FS", "")
if PFS: PFS = " " + PFS
def lbar(A, k, n=4):
    u = uid[0]; uid[0] += 1
    A(f"""v_mov_b32 v1, 1
    v_mov_b32 v2, {PQ_SYNC + 4*k}
    s_mov_b64 exec, 1
    ds_add_u32 v2, v1""")
    A.label(f"lbar{u}")
    A(f"""ds_read_b32 v1, v2
    s_waitcnt lgkmcnt(0)
    v_readfirstlane_b32 s40, v1
    s_cmp_lt_u32 s40, {n}
    s_cbranch_scc1 lbar{u}
    s_mov_b64 exec, -1""")
def pflush(A):
    if not STAMPS: return
    A("""s_mov_b32 s8, s28
    s_mov_b32 s9, s29
    s_mov_b32 s10, s30
    s_mov_b32 s11, 0x20000
    s_mov_b32 s39, 2
    s_waitcnt vmcnt(0)""")
    main_flush(A, 3)

def prep_roles(A):
    LD, B1, B2, AC, SM = 16, 72, 76, 80, 192
    A(f"""v_and_b32 v3, 31, v0
    v_bfe_u32 v4, v0, 5, 1
    v_lshlrev_b32 v6, 4, v2
    v_and_b32 v5, 19, v3
    v_and_b32 v7, 4, v3
    v_lshl_or_b32 v5, v7, 1, v5
    v_and_b32 v7, 8, v3
    v_lshrrev_b32 v7, 1, v7
    v_or_b32 v5, v5, v7
    v_mov_b32 v8, v5
    v_mov_b32 v11, v6
    s_mov_b32 s28, s18
    s_and_b32 s29, s19, 0xffff
    s_mov_b32 s30, {WS_BYTES}
    s_mov_b32 s31, 0x20000
    s_mov_b32 s23, 0x20000
    s_mov_b32 s27, 0x20000
    s_and_b32 s32, s2, 7
    s_lshr_b32 s33, s2, 5
    s_lshl_b32 s33, s33, 1
    s_bfe_u32 s34, s2, 0x10003
    s_add_u32 s33, s33, s34
    s_mov_b32 s41, 1.0
    s_mov_b32 s42, 32
    s_mov_b32 s43, 1
    s_bitcmp1_b32 s2, 4
    s_cbranch_scc1 pr_wgu
    s_lshl_b32 s33, s33, 3
    s_add_u32 s32, s32, s33
    s_mov_b32 s33, 896
    s_mov_b32 s26, {D*D*2}
    s_cmp_lt_u32 s32, 18
    s_cbranch_scc1 pr_qkv
    s_mov_b32 s43, 0
    s_cmp_lt_u32 s32, 32
    s_cbranch_scc1 pr_wo
    s_cmp_ge_u32 s32, 88
    s_cbranch_scc1 pr_flags""")
    A(f"""s_sub_u32 s32, s32, 32
    s_lshl_b32 s32, s32, 1
    s_add_u32 s32, s32, s3
    s_mul_i32 s38, s32, 4682
    s_lshr_b32 s38, s38, 16
    s_mul_i32 s39, s38, 14
    s_sub_u32 s39, s32, s39
    s_mov_b32 s24, s16
    s_and_b32 s25, s17, 0xffff
    s_mov_b32 s26, {F*D*2}
    s_mul_i32 s34, s38, {224*896}
    s_lshl_b32 s35, s39, 6
    s_add_u32 s34, s34, s35
    s_lshr_b32 s35, s39, 1
    s_mul_i32 s35, s35, {112*2*1024}
    s_and_b32 s39, s39, 1
    s_lshl_b32 s39, s39, 10
    s_add_u32 s35, s35, s39
    s_mul_i32 s38, s38, {14*2048}
    s_add_u32 s35, s35, s38
    s_add_u32 s35, s35, {WD}
    s_mov_b32 s36, 4096
    s_mov_b32 s37, 2048
    s_branch pr_same""")
    A.label("pr_wo")
    A(f"""s_sub_u32 s32, s32, 18
    s_mov_b32 s24, s10
    s_and_b32 s25, s11, 0xffff
    s_mul_i32 s34, s3, {224*896}
    s_lshl_b32 s35, s32, 6
    s_add_u32 s34, s34, s35
    v_mov_b32 v8, v3
    s_lshl_b32 s35, s32, 1
    v_lshrrev_b32 v9, 4, v3
    v_add_u32 v9, s35, v9
    v_mul_u32_u24 v10, 9363, v9
    v_lshrrev_b32 v10, 16, v10
    v_mul_u32_u24 v10, 91, v10
    v_add_u32 v9, v9, v10
    v_lshlrev_b32 v9, 10, v9
    v_and_b32 v10, 15, v3
    v_lshl_add_u32 v10, v4, 4, v10
    v_lshl_add_u32 v11, v10, 4, v9
    s_mul_i32 s35, s3, {7*7168}
    s_add_u32 s35, s35, {WO}
    s_mov_b32 s36, 7168
    s_mov_b32 s37, 512
    s_branch pr_same""")
    A.label("pr_qkv")
    A(f"""s_mul_i32 s35, s32, {28*1024}
    s_mul_i32 s38, s3, {14*1024}
    s_add_u32 s35, s35, s38
    s_add_u32 s35, s35, {WQKV}
    s_mov_b32 s36, 2048
    s_mov_b32 s37, 1024
    s_mov_b32 s24, s4
    s_and_b32 s25, s5, 0xffff
    s_mul_i32 s34, s32, 56
    s_mov_b32 s41, {f2u(QSCALE):#x}
    s_cmp_lt_u32 s32, 16
    s_cbranch_scc1 pr_q
    s_mov_b32 s41, 1.0
    s_mov_b32 s33, 56
    s_mov_b32 s34, 0
    s_mov_b32 s26, {D*DH*2}
    s_mov_b32 s24, s6
    s_and_b32 s25, s7, 0xffff
    s_cmp_eq_u32 s32, 16
    s_cbranch_scc1 pr_q
    s_mov_b32 s24, s8
    s_and_b32 s25, s9, 0xffff
    v_and_b32 v8, 3, v3
    v_lshrrev_b32 v9, 3, v3
    v_lshl_add_u32 v8, v9, 2, v8
    v_bfe_u32 v9, v3, 2, 1
    v_lshl_add_u32 v8, v9, 4, v8""")
    A.label("pr_q")
    A(f"""s_mul_i32 s38, s33, 224
    s_mul_i32 s38, s38, s3
    s_add_u32 s34, s34, s38
    v_cmp_gt_u32 vcc, 28, v8
    v_mov_b32 v9, 64
    v_cndmask_b32 v8, v9, v8, vcc""")
    A.label("pr_same")
    A(f"""s_mov_b32 s20, s24
    s_mov_b32 s21, s25
    s_mov_b32 s22, s26
    s_branch pr_go""")
    A.label("pr_wgu")
    A(f"""s_cmp_ge_u32 s33, 14
    s_cbranch_scc1 pr_code
    s_mul_i32 s32, s32, 14
    s_add_u32 s32, s32, s33
    s_mul_i32 s38, s32, 9363
    s_lshr_b32 s38, s38, 16
    s_mul_i32 s35, s38, {27*7*1024}
    s_lshl_b32 s38, s32, 10
    s_add_u32 s35, s35, s38
    s_mul_i32 s38, s3, {14*7168}
    s_add_u32 s35, s35, s38
    s_add_u32 s35, s35, {WGU}
    s_mov_b32 s36, {2*7168}
    s_mov_b32 s37, 7168
    s_mov_b32 s24, s12
    s_and_b32 s25, s13, 0xffff
    s_mov_b32 s26, {F*D*2}
    s_mov_b32 s20, s14
    s_and_b32 s21, s15, 0xffff
    s_mov_b32 s22, {F*D*2}
    s_mov_b32 s33, 3584
    s_mul_i32 s34, s3, {224*3584}
    s_lshl_b32 s38, s32, 5
    s_add_u32 s34, s34, s38
    s_mov_b32 s42, 0""")
    A.label("pr_go")
    A.fence(2)
    A(f"""v_mul_lo_u32 v9, v5, s33
    v_lshl_add_u32 v9, v4, 4, v9
    v_add_u32 v10, s42, v9
    s_lshl_b32 s33, s33, 5""")
    for u in range(7):
        A(f"""buffer_load_dwordx4 v[{LD+8*u}:{LD+8*u+3}], v9, s[24:27], s34 offen
        buffer_load_dwordx4 v[{LD+8*u+4}:{LD+8*u+7}], v10, s[20:23], s34 offen""")
        if u < 6: A("s_add_u32 s34, s34, s33")
    A(f"""v_and_b32 v12, 1, v8
    v_lshlrev_b32 v12, 4, v12
    v_mov_b32 v13, 0x3f80
    v_lshlrev_b32 v12, v12, v13
    v_lshrrev_b32 v13, 1, v8
    v_lshlrev_b32 v14, 2, v4
    v_sub_u32 v13, v13, v14
    s_add_u32 s37, s37, s35""")
    for p in range(4):
        A(f"v_cmp_eq_u32 vcc, {p}, v13\n v_cndmask_b32 v{B1+p}, 0, v12, vcc\n v_cmp_eq_u32 vcc, {8+p}, v13\n v_cndmask_b32 v{B2+p}, 0, v12, vcc")
    def tr(u, dst, c):
        A(f"v_mfma_f32_32x32x16_bf16 v[{dst}:{dst+15}], v[{LD+8*u}:{LD+8*u+3}], v[{B1}:{B1+3}], {c}")
        A(f"v_mfma_f32_32x32x16_bf16 v[{dst}:{dst+15}], v[{LD+8*u+4}:{LD+8*u+7}], v[{B2}:{B2+3}], v[{dst}:{dst+15}]")
    def out(u, fma):
        b = AC + 16 * u; o = LD + 8 * u
        if fma:
            for r in range(0, 16, 2): A(f"v_pk_fma_f32 v[{b+r}:{b+r+1}], v[{b+r}:{b+r+1}], v[12:13], v[14:15]")
        for q_ in range(8): A(f"v_cvt_pk_bf16_f32 v{o+q_}, v{b+2*q_}, v{b+2*q_+1}")
        A(f"""buffer_store_dwordx4 v[{o}:{o+3}], v11, s[28:31], s35 offen{PFS}
        buffer_store_dwordx4 v[{o+4}:{o+7}], v11, s[28:31], s37 offen{PFS}""")
        if u < 6: A("s_add_u32 s35, s35, s36\n s_add_u32 s37, s37, s36")
    A("s_cmp_eq_u32 s43, 1\n s_cbranch_scc1 pr_center")
    for u in range(8):
        if u < 7:
            A(f"s_waitcnt vmcnt({12 - 2*u + 2*max(0, u-1)})")
            tr(u, AC + 16*u, "0")
        if u: out(u - 1, False)
    pflush(A)
    A("s_endpgm")
    A.label("pr_center")
    A.reset_hz()
    for u in range(7):
        A(f"s_waitcnt vmcnt({12 - 2*u})")
        tr(u, SM, "0" if u == 0 else f"v[{SM}:{SM+15}]")
        if u < 6: tr(u, AC + 16*u, "0")
    tr(6, AC + 96, "0")
    for sz in (8, 4, 2):
        for i in range(0, sz, 2): A(f"v_pk_add_f32 v[{SM+i}:{SM+i+1}], v[{SM+i}:{SM+i+1}], v[{SM+sz+i}:{SM+sz+i+1}]")
    A(f"""v_add_f32 v{SM}, v{SM}, v{SM+1}
    v_lshlrev_b32 v14, 2, v3
    v_add_u32 v14, {PQ_PREP}, v14
    v_lshl_add_u32 v15, v4, 7, v14
    s_lshl_b32 s38, s3, 8
    v_add_u32 v15, s38, v15
    ds_write_b32 v15, v{SM}""")
    lbar(A, 3, 2)
    A(f"""ds_read2_b32 v[{SM}:{SM+1}], v14 offset0:0 offset1:32
    ds_read2_b32 v[{SM+2}:{SM+3}], v14 offset0:64 offset1:96
    v_mov_b32 v12, s41
    v_mov_b32 v13, s41
    s_waitcnt lgkmcnt(0)
    v_pk_add_f32 v[{SM}:{SM+1}], v[{SM}:{SM+1}], v[{SM+2}:{SM+3}]
    v_add_f32 v14, v{SM}, v{SM+1}
    v_mul_f32 v14, {f2u(-1.0/448):#x}, v14
    v_mul_f32 v14, s41, v14
    v_mov_b32 v15, v14""")
    for u in range(7): out(u, True)
    pflush(A)
    A("s_endpgm")
    A.label("pr_flags")
    A(f"""s_sub_u32 s32, s32, 88
    s_lshl_b32 s32, s32, 1
    s_add_u32 s32, s32, s3
    s_lshl_b32 s32, s32, 10
    s_add_u32 s32, s32, {FL}
    v_mov_b32 v12, 0
    v_mov_b32 v13, 0
    v_mov_b32 v14, 0
    v_mov_b32 v15, 0
    buffer_store_dwordx4 v[12:15], v6, s[28:31], s32 offen
    s_endpgm""")
    A.label("pr_code")
    A.raw("""    s_getpc_b64 s[46:47]
cpf_pc:
    s_add_u32 s46, s46, main0_kernel - cpf_pc
    s_addc_u32 s47, s47, 0""")
    A(f"""s_sub_u32 s33, s33, 14
    s_lshl_b32 s33, s33, 1
    s_add_u32 s33, s33, s3
    s_lshl_b32 s33, s33, 13
    v_lshlrev_b32 v10, 7, v2
    v_add_u32 v10, s33, v10
    v_add_u32 v11, 0x8000, v10""")
    A.raw("""    v_min_u32 v10, code_end - main0_kernel - 4, v10
    v_min_u32 v11, code_end - main0_kernel - 4, v11""")
    A(f"""global_load_dword v16, v10, s[46:47]
    global_load_dword v17, v11, s[46:47]""")
    A.label("pq_end")
    A("s_endpgm")

def k_pq(A):
    name = "pq_kernel"
    kstart(A, name)
    A("s_cmp_ge_u32 s2, 256\n s_cbranch_scc1 pq_end")
    st(A, "start")
    A(f"""s_load_dwordx8 s[4:11], s[0:1], 8
    s_load_dwordx2 s[44:45], s[0:1], 0
    s_load_dwordx2 s[18:19], s[0:1], 88
    s_load_dwordx4 s[12:15], s[0:1], 48
    s_load_dwordx2 s[16:17], s[0:1], 64
    v_lshrrev_b32 v1, 6, v0
    v_and_b32 v2, 63, v0
    v_readfirstlane_b32 s3, v1
    v_mov_b32 v12, 0
    v_mov_b32 v13, 0
    v_mov_b32 v14, 0
    v_mov_b32 v15, 0
    v_mov_b32 v11, {PQ_SYNC}
    ds_write_b128 v11, v[12:15]
    s_cmp_lt_u32 s3, 4
    s_cbranch_scc1 pq_qkv
    s_sub_u32 s3, s3, 4
    s_waitcnt lgkmcnt(0)
    s_barrier""")
    if E("PQ_NOPREP", 0): A("s_endpgm")
    prep_roles(A)
    A.label("pq_qkv")
    A.reset_hz()
    XR_, XN, WB, UP, AC = 96, 124, 152, 200, 16
    A(f"""v_lshlrev_b32 v6, 4, v2
    v_and_b32 v3, 15, v0
    v_bfe_u32 v4, v0, 4, 2
    s_and_b32 s33, s2, 7
    s_lshr_b32 s34, s2, 3
    s_lshl_b32 s33, s33, 3
    s_lshr_b32 s35, s34, 2
    s_add_u32 s33, s33, s35
    s_and_b32 s34, s34, 3
    v_and_b32 v5, 31, v0
    v_mul_u32_u24 v7, 896, v5
    v_bfe_u32 v8, v0, 5, 1
    v_lshl_add_u32 v7, v8, 4, v7
    s_mul_i32 s36, s33, {32*896}
    s_mul_i32 s37, s3, 224
    s_add_u32 s36, s36, s37
    v_lshlrev_b32 v9, 2, v4
    v_sub_u32 v9, v3, v9
    v_and_b32 v9, 15, v9
    v_cmp_gt_u32 vcc, 14, v9
    v_lshlrev_b32 v9, 4, v9
    v_mul_u32_u24 v10, 896, v4
    v_add_u32 v9, v9, v10
    v_mov_b32 v13, 0x7fffff00
    v_cndmask_b32 v124, v13, v9, vcc
    s_mul_i32 s37, s3, {112*896}
    s_mul_i32 s38, s34, 224
    s_add_u32 s37, s37, s38
    s_mul_i32 s38, s3, {28*1024}
    s_mul_i32 s39, s3, {7*1024}
    s_add_u32 s39, s39, {PQ_KV}
    s_mul_i32 s35, s3, {112*56}
    s_sub_u32 s35, s35, s39
    s_mov_b32 s22, {X_BYTES}
    s_mov_b32 s23, 0x20000
    s_mov_b32 s26, {D*D*2}
    s_mov_b32 s27, 0x20000
    s_mov_b32 s30, {D*DH*2}
    s_mov_b32 s31, 0x20000
    v_bfe_u32 v9, v0, 2, 2
    v_bfe_u32 v10, v0, 1, 1
    v_and_b32 v11, 1, v0
    v_bfe_u32 v12, v0, 4, 1
    v_lshlrev_b32 v13, 3, v10
    v_lshl_add_u32 v14, v11, 4, v13
    v_lshl_add_u32 v14, v12, 5, v14
    v_lshl_add_u32 v15, v11, 5, v13
    v_lshl_add_u32 v15, v12, 4, v15
    v_lshl_add_u32 v13, v8, 3, v9
    s_cmp_eq_u32 s34, 0
    s_cselect_b64 vcc, -1, 0
    v_cndmask_b32 v15, v15, v14, vcc
    v_mul_u32_u24 v10, 56, v13
    v_add3_u32 v15, v15, v10, s39
    v_lshl_add_u32 v14, v9, 6, v14
    v_lshlrev_b32 v13, 8, v13
    v_add_u32 v13, s38, v13""")
    for lt in range(4):
        A(f"""s_xor_b32 s42, s3, {lt}
        s_mul_i32 s42, s42, 56
        v_add_u32 v{9+lt}, s42, v14
        v_and_b32 v{9+lt}, 255, v{9+lt}
        v_add_u32 v{9+lt}, v{9+lt}, v13""")
    A(f"""v_mov_b32 v3, v5
    v_mov_b32 v4, v8
    v_lshlrev_b32 v13, 3, v5
    v_add_u32 v13, {PQ_ST}, v13
    s_lshl_b32 s42, s3, 8
    v_add_u32 v14, s42, v13
    s_waitcnt lgkmcnt(0)
    s_mov_b32 s20, s44
    s_and_b32 s21, s45, 0xffff
    s_mov_b32 s24, s4
    s_and_b32 s25, s5, 0xffff""")
    st(A, "pq_ka")
    for u in range(7): A(f"buffer_load_dwordx4 v[{XR_+4*u}:{XR_+4*u+3}], v7, s[20:23], s36 offen offset:{32*u}")
    A(f"""s_cmp_eq_u32 s34, 0
    s_cselect_b32 s28, s6, s8
    s_cselect_b32 s29, s7, s9
    s_and_b32 s29, s29, 0xffff
    s_mov_b32 s8, s18
    s_and_b32 s9, s19, 0xffff
    s_mov_b32 s10, {WS_BYTES}
    s_mov_b32 s11, 0x20000
    s_mov_b32 s18, s33
    s_mov_b32 s19, s34
    s_mov_b32 s20, {ABASE[0]}
    s_mov_b32 s32, {LBASE[0]}
    s_barrier
    s_cmp_eq_u32 s34, 0
    s_cbranch_scc1 pq_v1
    s_cmp_eq_u32 s34, 1
    s_cbranch_scc1 pq_v2""")
    def wb(ks, lt): return WB + 20 * (ks & 1) + 4 * lt
    def rdw(ks, lt):
        b = wb(ks, lt)
        if lt < 4: A(f"ds_read_b64_tr_b16 v[{b}:{b+1}], v{9+lt} offset:{4096*ks}\n ds_read_b64_tr_b16 v[{b+2}:{b+3}], v{9+lt} offset:{4096*ks+1024}")
        else: A(f"ds_read_b64_tr_b16 v[{b}:{b+1}], v15 offset:{896*ks}\n ds_read_b64_tr_b16 v[{b+2}:{b+3}], v15 offset:{896*ks+224}")
    def variant(kind):
        vm = VM2(A); vm.ops = ["x"] * 7
        NTL = 5 if kind else 4
        dm = []
        def dq(n):
            A(f"s_add_u32 m0, s38, {1024*n}")
            vm.issue(f"buffer_load_dwordx4 v124, s[24:27], s37 offen lds", f"w{n>>2}")
            A(f"s_add_u32 s37, s37, {4*896}")
        def dkv(n):
            A(f"s_add_u32 m0, s39, {1024*n}\n s_add_u32 s42, m0, s35")
            if n == 6: A("s_mov_b64 exec, 0xff")
            vm.issue(f"buffer_load_dwordx4 v6, s[28:31], s42 offen lds", f"w{n}")
            if n == 6: A("s_mov_b64 exec, -1")
        for ks in range(7):
            if kind: dm.append(lambda ks=ks: dkv(ks))
            dm += [lambda n=n: dq(n) for n in range(4*ks, 4*ks+4)]
        for i in range(E("PQ_PRE", 3) * NTL): dm.pop(0)()
        st(A, "pq_iss")
        vm.wait("x")
        st(A, "pq_x")
        for i in range(28):
            A(f"v_lshlrev_b32 v{UP+2*i}, 16, v{XR_+i}\n v_and_b32 v{UP+2*i+1}, 0xffff0000, v{XR_+i}")
            c = 4 * (i & 1)
            if i < 2: A(f"v_pk_mul_f32 v[{194+c}:{195+c}], v[{UP+2*i}:{UP+2*i+1}], v[{UP+2*i}:{UP+2*i+1}]")
            else: A(f"v_pk_fma_f32 v[{194+c}:{195+c}], v[{UP+2*i}:{UP+2*i+1}], v[{UP+2*i}:{UP+2*i+1}], v[{194+c}:{195+c}]")
            if i in (2, 3): A(f"v_pk_add_f32 v[{192+c}:{193+c}], v[{UP+2*i}:{UP+2*i+1}], v[{UP+2*i-4}:{UP+2*i-3}]")
            if i > 3: A(f"v_pk_add_f32 v[{192+c}:{193+c}], v[{192+c}:{193+c}], v[{UP+2*i}:{UP+2*i+1}]")
            if dm and i % E("PQ_EV", 2) == 1: dm.pop(0)()
        A(f"""v_pk_add_f32 v[192:193], v[192:193], v[196:197]
        v_pk_add_f32 v[194:195], v[194:195], v[198:199]
        v_add_f32 v192, v192, v193
        v_add_f32 v193, v194, v195
        v_mov_b32 v194, v192
        v_mov_b32 v195, v193
        v_permlane32_swap_b32 v192, v194
        v_permlane32_swap_b32 v193, v195
        v_pk_add_f32 v[192:193], v[192:193], v[194:195]
        ds_write_b64 v14, v[192:193]""")
        while dm: dm.pop(0)()
        lbar(A, 0)
        A(f"""ds_read2_b64 v[192:195], v13 offset0:0 offset1:32
        ds_read2_b64 v[196:199], v13 offset0:64 offset1:96""")
        vm.wait("w0")
        for lt in range(NTL): rdw(0, lt)
        A(f"""s_waitcnt lgkmcnt({2*NTL})
        v_pk_add_f32 v[192:193], v[192:193], v[194:195]
        v_pk_add_f32 v[196:197], v[196:197], v[198:199]
        v_pk_add_f32 v[192:193], v[192:193], v[196:197]
        v_mul_f32 v192, {f2u(1.0/448):#x}, v192
        v_mul_f32 v193, {f2u(1.0/448):#x}, v193
        v_fma_f32 v193, -v192, v192, v193
        v_max_f32 v193, 0, v193
        v_add_f32 v193, {f2u(1e-5):#x}, v193
        v_rsq_f32 v194, v193
        v_mul_f32 v196, -v192, v194
        v_mov_b32 v195, v194
        v_mov_b32 v197, v196""")
        def nrm(ks):
            for i in range(4*ks, 4*ks+4): A(f"v_pk_fma_f32 v[{UP+2*i}:{UP+2*i+1}], v[{UP+2*i}:{UP+2*i+1}], v[194:195], v[196:197]")
            for i in range(4*ks, 4*ks+4): A(f"v_cvt_pk_bf16_f32 v{XN+i}, v{UP+2*i}, v{UP+2*i+1}")
        nrm(0)
        st(A, "pq_ln")
        for ks in range(7):
            x = f"v[{XN+4*ks}:{XN+4*ks+3}]"
            if ks < 6: vm.wait(f"w{ks+1}")
            for n, lt in enumerate(range(NTL)):
                A(f"s_waitcnt lgkmcnt({2*NTL-2 if ks < 6 else 2*NTL - 2 - 2*lt})")
                b = wb(ks, lt); w = f"v[{b}:{b+3}]"
                acc = f"v[{AC+16*lt}:{AC+16*lt+15}]"
                c = "0" if ks == 0 else acc
                if lt == 4 and kind == 2: A(f"v_mfma_f32_32x32x16_bf16 {acc}, {x}, {w}, {c}")
                else: A(f"v_mfma_f32_32x32x16_bf16 {acc}, {w}, {x}, {c}")
                if ks < 6: rdw(ks + 1, lt)
                if ks < 6 and n == 0: nrm(ks + 1)
    variant(0)
    A(f"""s_cmp_lg_u32 s19, 3
    s_cbranch_scc1 pq_red
    s_mul_i32 s42, s18, {28*1024}
    s_mul_i32 s43, s3, {7*1024}
    s_add_u32 s42, s42, s43
    s_add_u32 s42, s42, {X0}
    s_add_u32 s43, s42, 4096""")
    for u in range(7): A(f"buffer_store_dwordx4 v[{XR_+4*u}:{XR_+4*u+3}], v6, s[8:11], s{42 + u//4} offen offset:{1024*(u%4)}" + PFS)
    A("s_branch pq_red")
    A.label("pq_v1"); A.reset_hz(); variant(1); A("s_branch pq_red")
    A.label("pq_v2"); A.reset_hz(); variant(2)
    A.label("pq_red")
    A.fence(2)
    A("s_mov_b32 s38, 0\n s_mov_b32 s39, 2")
    st(A, "qkv_mm")
    lbar(A, 1)
    qkv_epilogue(A, VM2(A), "pq", True, lambda k: lbar(A, k))
    A("s_endpgm")
    KERNELS.append((name, 256, 384, PQ_LDS, 256, 256))

ALL = [k_pq, k_main]
LAUNCHES = ["pq_kernel", "main0_kernel", "main1_kernel"]
```

```python
import sys, os
os.environ.setdefault("INPLACE", "1")
sys.path.insert(0, "gen")
import gen4
from asm import Asm
A = Asm()
launches = sys.argv[2].split(",") if len(sys.argv) > 2 else None
for f in gen4.ALL: f(A)
if launches is None: launches = gen4.LAUNCHES
open(sys.argv[1], "w").write(gen4.finish(A, launches))
print("nops inserted:", A.nops, "lines:", len(A.lines))
open(sys.argv[1][:-2] + ".names", "w").write(",".join(gen4.SNAMES))
```

```python
import struct, sys, os
from asm import Asm
from layout import *
import gen as G
from gen import f2u, kstart, srd, VM, STAMPS, KERNELS, finish, v_swap23
import gen2
from gen2 import st, SNAMES, k_prep, main_flush, uid, SPIN_LIMIT, BOUND_T

E = lambda k, d: int(os.environ.get(k, str(d)))
EL = lambda k, d: [int(x) for x in os.environ.get(k, d).split(",") if x]
ATT_ST, GU_ST, DN_ST = EL("ATT_ST", "16,32,48"), EL("GU_ST", "1"), EL("DN_ST", "")
_st = st
def st(A, n):
    if E("PQ_ST", 0) and not (n.startswith("p") or n in ("start", "qkv_mm")): return
    if n in os.environ.get("ST_SKIP", "").split(","): return
    _st(A, n)
SC1 = " sc1" if E("LD_SC1", 1) else ""
RING_SLOT = 28 * 1024
EXCH = 4 * RING_SLOT
LDS_TOTAL = 160 * 1024
ORS = 240
WQ_LDS = 61440

PARTS = EL("PARTS", "3,2,2")
POFF = [sum(PARTS[:i]) for i in range(len(PARTS))]
QALIAS = PARTS[-1] == 2 and E("QALIAS", 1)
HSTEP = [(p, i, a) for p in range(len(PARTS)) for i in range(4) for a in range(PARTS[p])]
FL2 = FL + 0x14000
ST2N = FL + 0x28000
ST1N = FL + 0x68000
WO_KS, WO_NT = 7168, 1024
def hbase(p): return Q_O if (QALIAS and p == len(PARTS) - 1) else H_O + POFF[p] * 64 * 16 * 1024
QR, OR_, SR, PR, KVR, XR, SP = 16, 48, 112, 144, 160, 224, 240
def q(j, s): return f"v[{QR+8*j+4*s}:{QR+8*j+4*s+3}]"
def sb(t): return SR + 16 * (t & 1)

def store2(A, vm, insts, tag, force=""):
    u = uid[0]; uid[0] += 1
    if force:
        for t in insts: A(t + " " + force)
        vm.ops += [tag] * len(insts)
        return
    A(f"s_cmp_eq_u32 s38, 0\n s_cbranch_scc1 st_slow{u}")
    for t in insts: A(t)
    A(f"s_branch st_done{u}")
    A.label(f"st_slow{u}")
    for t in insts: A(t + " sc1")
    A.label(f"st_done{u}")
    vm.ops += [tag] * len(insts)

def signal(A, vm, ph, tag, idx="s17"):
    u = uid[0]; uid[0] += 1
    vm.wait(tag)
    A(f"""s_barrier
    s_cmp_lg_u32 s3, 0
    s_cbranch_scc1 sig_done{u}
    s_add_u32 s40, s22, {ph * 8 * 128}
    s_lshl_b32 s41, {idx}, 2
    s_add_u32 s40, s40, s41
    v_mov_b32 v1, 1
    v_mov_b32 v2, 0
    s_mov_b64 exec, 1
    s_cmp_eq_u32 s38, 0
    s_cbranch_scc1 sig_slow{u}
    buffer_store_dword v1, v2, s[8:11], s40 offen
    s_branch sig_rest{u}""")
    A.label(f"sig_slow{u}")
    A("buffer_store_dword v1, v2, s[8:11], s40 offen sc1")
    A.label(f"sig_rest{u}")
    A("s_mov_b64 exec, -1")
    A.label(f"sig_done{u}")
    A.fence(1)

def waitflags(A, vm, ph, mask_sgpr):
    u = uid[0]; uid[0] += 1
    A(f"""s_add_u32 s40, s22, {ph * 8 * 128}
    v_lshrrev_b32 v2, 2, v6
    s_mov_b32 exec_lo, s{mask_sgpr}
    s_mov_b32 exec_hi, 0
    s_mov_b32 s41, {SPIN_LIMIT}""")
    A.label(f"poll{u}")
    A(f"""buffer_load_dword v1, v2, s[8:11], s40 offen sc1
    s_sub_u32 s41, s41, 1
    s_cmp_eq_u32 s41, 0
    s_cbranch_scc1 poll_out{u}
    s_waitcnt vmcnt(0)
    v_cmp_ne_u32 vcc, 1, v1
    s_cbranch_vccnz poll{u}""")
    A.label(f"poll_out{u}")
    A("s_waitcnt vmcnt(0)\n s_mov_b64 exec, -1")
    vm.ops = ["drained"]

class VM2(VM):
    def wait(self, *tags):
        idx = [i for i, t in enumerate(self.ops) if t in tags]
        if not idx: return
        n = len(self.ops) - 1 - max(idx)
        self.A(f"s_waitcnt vmcnt({min(n, 63)})")

def k_main(A):
    for name, mode in (("main0_kernel", 0), ("main1_kernel", 1)):
        kstart(A, name)
        A(f"""s_cmp_ge_u32 s2, 256
        s_cbranch_scc1 main_end
        s_load_dwordx2 s[6:7], s[0:1], 88
        s_load_dwordx2 s[4:5], s[0:1], 72
        s_mov_b32 s39, {mode}
        s_mov_b32 s20, {ABASE[mode & 1]}
        s_mov_b32 s28, {LBASE[mode & 1]}
        s_mov_b32 s21, {X0 if mode != 1 else LBASE[0] + X2_O}
        s_mov_b32 s22, {FL + (mode & 1) * 4 * 8 * 128}
        s_branch main_body""")
        KERNELS.append((name, 256, 256, LDS_TOTAL, 512, 256))
    A.label("main_body")
    A.reset_hz()
    st(A, "start")
    A(f"""v_lshrrev_b32 v1, 6, v0
    v_and_b32 v2, 63, v0
    v_lshlrev_b32 v6, 4, v2
    v_readfirstlane_b32 s3, v1
    s_and_b32 s16, s2, 7
    s_lshr_b32 s17, s2, 3
    s_lshl_b32 s18, s16, 3
    s_lshr_b32 s40, s17, 2
    s_add_u32 s18, s18, s40
    s_and_b32 s19, s17, 3
    s_lshl_b32 s40, s16, 7
    s_add_u32 s22, s22, s40
    s_mov_b32 s38, 0
    s_mov_b32 s10, {WS_BYTES}
    s_mov_b32 s11, 0x20000
    s_mov_b32 s14, {X_BYTES}
    s_mov_b32 s15, 0x20000
    s_mul_i32 s26, s3, {7*1024}""")
    vm = VM2(A)
    wd = WdPrefetch(A, vm)
    phase_att(A, vm, wd)
    phase_ffn(A, vm, wd)
    phase_qkv(A)
    A.label("main_end")
    A("s_endpgm")
    for f in COLD: f()
    att_fallback(A)

COLD = []
FFN_STATE = {}
def srd_fin(A):
    A("""s_waitcnt lgkmcnt(0)
    s_mov_b32 s8, s6
    s_and_b32 s9, s7, 0xffff
    s_mov_b32 s12, s4
    s_and_b32 s13, s5, 0xffff
    s_mov_b32 s4, s8
    s_mov_b32 s5, s9
    s_cmp_eq_u32 s39, 0
    s_cselect_b32 s6, s10, 0
    s_mov_b32 s7, 0x20000""")

class WdPrefetch:
    def __init__(self, A, vm): self.A, self.vm, self.i, self.ar = A, vm, 0, 238
    def setup(self):
        self.A(f"""s_lshr_b32 s42, s17, 2
        s_min_u32 s42, s42, 6
        s_mul_i32 s35, s42, {112*2*1024}
        s_mul_i32 s43, s3, {28*2*1024}
        s_add_u32 s35, s35, s43
        s_add_u32 s35, s35, {WD}
        s_and_b32 s43, s3, 1
        s_lshl_b32 s43, s43, 10
        v_add_u32 v238, s43, v6
        v_xor_b32 v239, 1024, v238""")
    def dst(self, i): return f"a[{64+4*i}:{67+4*i}]" if i < 48 else f"v[{208+4*(i-48)}:{211+4*(i-48)}]"
    def one(self):
        i = self.i; self.i += 1
        n, a = i >> 1, i & 1
        p, fi, ta = HSTEP[n]
        if a == 0: self.A(f"s_add_u32 s33, s35, {2048 * (fi * 7 + POFF[p] + ta)}")
        self.vm.issue(f"buffer_load_dwordx4 {self.dst(i)}, v{self.ar+a}, s[8:11], s33 offen", "wd")

def dma_piece(A, vm, p, i, always=False):
    sl = (p % 5) * RING_SLOT
    if i == 0 or (always and i < 4): A(f"s_add_u32 m0, s26, {sl}")
    if i == 4: A(f"s_add_u32 s25, s25, 4096")
    if i == 4 or (always and i > 4): A(f"s_add_u32 m0, s26, {sl + 4096}")
    vm.issue(f"buffer_load_dwordx4 v6, s[8:11], s25 offen offset:{1024*(i&3)} lds", f"w{p}")
    if i == 6: A(f"s_add_u32 s25, s25, {RING_SLOT - 4096}")

def phase_att(A, vm, wd):
    def o(j): return f"v[{OR_+16*j}:{OR_+16*j+15}]"
    def pb(t): return PR + 8 * (t & 1)
    def kv(kt, i): b = KVR + 16 * (kt & 3) + 4 * i; return f"v[{b}:{b+3}]"
    def cvt(dst, src): A(f"v_cvt_pk_bf16_f32 v{dst}, v{src}, v{src+1}")
    A(f"""v_bfe_u32 v3, v0, 3, 2
    v_bfe_u32 v4, v0, 5, 1
    v_and_b32 v5, 7, v0
    v_lshlrev_b32 v7, 11, v3
    v_lshl_add_u32 v7, v4, 9, v7
    v_lshl_add_u32 v7, v5, 4, v7
    v_lshrrev_b32 v8, 2, v6
    s_lshl_b32 s40, s18, 15
    s_lshl_b32 s41, s19, 7
    s_add_u32 s40, s40, s41
    s_add_u32 s40, s40, s20
    s_add_u32 s41, s28, {KN_O}
    s_lshl_b32 s23, s3, 16
    s_add_u32 s23, s23, s28
    s_add_u32 s23, s23, {KV_O}
    s_mov_b32 s33, s23""")
    for jl in range(4):
        A(f"s_xor_b32 s{28+jl}, s3, {jl}\n s_lshl_b32 s{28+jl}, s{28+jl}, 13\n s_add_u32 s{28+jl}, s40, s{28+jl}")
    for r in range(64): A(f"v_mov_b32 v{OR_+r}, 0")
    for r in range(8): A(f"v_mov_b32 v{pb(1)+r}, 0")
    for r in range(4): A(f"v_mov_b32 v{KVR+48+12+r}, 0")
    for r in range(4): A(f"v_mov_b32 v{sb(1)+12+r}, 0")
    srd_fin(A)
    def kvload(kt, i):
        vm.issue(f"buffer_load_dwordx4 {kv(kt, i)}, v6, s[8:11], s23 offen offset:{1024*i}", f"kv{kt}" if i < 2 else f"vv{kt}")
        if i == 3: A("s_add_u32 s23, s23, 4096")
    def qload(jl, s_):
        vm.issue(f"buffer_load_dwordx4 {q(jl, s_)}, v7, s[8:11], s{28+jl} offen offset:{1024*s_}", f"q{s_}")
    vm.issue("buffer_load_dword v9, v8, s[8:11], s41 offen", "kn")
    for jl in range(4): qload(jl, 1)
    qload(0, 0)
    for i in range(2): kvload(0, i)
    for jl in range(1, 4): qload(jl, 0)
    for i in range(2, 4): kvload(0, i)
    A(f"""s_getreg_b32 s37, hwreg(HW_REG_XCC_ID)
    s_and_b32 s37, s37, 15
    s_add_u32 s37, s37, 1
    s_and_b32 s43, s39, 1
    s_lshl_b32 s43, s43, 3
    s_add_u32 s43, s43, s16
    s_lshl_b32 s36, s43, 12
    s_add_u32 s36, s36, {XT_BASE}
    s_lshl_b32 s42, s17, 7
    s_add_u32 s42, s42, s36
    v_mov_b32 v1, s37
    v_mov_b32 v2, 0
    s_cmp_eq_u32 s3, 0
    s_cselect_b32 exec_lo, 1, 0
    s_mov_b32 exec_hi, 0""")
    vm.issue("buffer_store_dword v1, v2, s[8:11], s42 offen sc1", "xcc")
    A(f"""s_mov_b64 exec, -1
    s_mul_i32 s24, s3, {98*1024}
    s_add_u32 s24, s24, {WO}
    s_and_b32 s42, s17, 15
    s_mul_i32 s25, s42, {28*7*1024}
    s_add_u32 s25, s25, s26
    s_add_u32 s25, s25, {WGU}
    v_bfe_u32 v10, v0, 4, 2
    v_lshrrev_b32 v11, 1, v10
    v_lshlrev_b32 v11, 9, v11
    v_lshl_add_u32 v11, v5, 4, v11
    v_and_b32 v12, 1, v10
    v_lshl_add_u32 v11, v12, 3, v11
    s_mul_i32 s34, s18, {28*1024}
    s_add_u32 s34, s34, s26
    s_lshl_b32 s42, s19, 7
    s_add_u32 s34, s34, s42""")
    wd.setup()
    for i in range(4): kvload(1, i)
    st(A, "pro")
    vm.wait("kn")
    A("""v_max_f32_dpp v9, v9, v9 row_shr:1 row_mask:0xf bank_mask:0xf
    v_max_f32_dpp v9, v9, v9 row_shr:2 row_mask:0xf bank_mask:0xf
    v_max_f32_dpp v9, v9, v9 row_shr:4 row_mask:0xf bank_mask:0xf
    v_max_f32_dpp v9, v9, v9 row_shr:8 row_mask:0xf bank_mask:0xf
    v_readlane_b32 s28, v9, 15
    v_readlane_b32 s29, v9, 31
    v_readlane_b32 s30, v9, 47
    v_readlane_b32 s31, v9, 63
    v_mov_b32 v9, s28
    v_max_f32 v9, s29, v9
    v_max_f32 v9, s30, v9
    v_max_f32 v9, s31, v9""")
    vm.wait("q1")
    A("s_mov_b32 exec_lo, 0")
    for j in range(4): A(f"v_lshlrev_b32 v{12+j}, 16, v{QR+8*j+6}")
    for j in range(4): A(f"v_mul_f32 v{12+j}, v{12+j}, v9")
    A(f"""v_max3_f32 v{SP}, v12, v13, v14
    v_max_f32 v{SP}, v{SP}, v15
    v_mov_b32 v{SP+1}, {f2u(BOUND_T):#x}
    v_cmp_nle_f32 vcc, v{SP}, v{SP+1}""")
    for j in range(4): A(f"v_cvt_pk_bf16_f32 v{QR+8*j+6}, -v{12+j}, 0")
    A("s_mov_b32 exec_lo, -1\n s_cbranch_vccnz attn_fallback")
    A.label("attn_main")
    A.fence(2)
    st(A, "bnd")
    for i in range(4): kvload(2, i)
    vm.wait("kv0")
    A(f"v_mfma_f32_32x32x16_bf16 v[{sb(0)}:{sb(0)+15}], {kv(0,0)}, {q(0,0)}, 0")
    A(f"v_mfma_f32_32x32x16_bf16 v[{sb(0)}:{sb(0)+15}], {kv(0,1)}, {q(0,1)}, v[{sb(0)}:{sb(0)+15}]")
    vm.wait("vv0")
    wo_dst = {}; wo_next = [0]
    def woload(dst):
        idx = wo_next[0]; wo_next[0] += 1
        wo_dst[idx] = dst
        vm.issue(f"buffer_load_dwordx4 {dst}, v6, s[8:11], s24 offen offset:{1024*(idx & 3)}", f"wo{idx}")
        if idx & 3 == 3: A("s_add_u32 s24, s24, 4096")
    def xres(nt):
        if nt == 0: A("s_add_u32 s42, s34, s21")
        if nt == 4: A("s_add_u32 s42, s42, 4096")
        vm.issue(f"buffer_load_dwordx2 v[{XR+2*nt}:{XR+2*nt+1}], v11, s[8:11], s42 offen offset:{1024*(nt%4)}", "x")
    spare_dst = [f"a[{4*i}:{4*i+3}]" for i in range(64)] + [f"v[{SP+4*i}:{SP+4*i+3}]" for i in range(4)]
    extra = [lambda d=d: woload(d) for d in spare_dst]
    NDMA = E("ATT_DMA", 4)
    dm = [lambda p=p, i=i: dma_piece(A, vm, p, i) for p in range(NDMA) for i in range(7)] + [lambda nt=nt: xres(nt) for nt in range(7)]
    merged = []
    while extra or dm:
        merged += extra[:3]; extra = extra[3:]
        merged += dm[:1]; dm = dm[1:]
    extra = merged
    def pop():
        if extra: extra.pop(0)()
    def exps(base):
        for r in range(4): A(f"v_exp_f32 v{base+r}, v{base+r}")
    NT = 64
    START = E("ATT_XSTART", 4)
    TW = [(29, k) for k in range(E("ATT_TWD", 0))] + [(28, k) for k in range(E("ATT_TGU", 0))]
    if E("ATT_TORD", 0): TW = TW[::-1]
    T0, T1 = E("ATT_T0", 6), E("ATT_T1", 46)
    HT = [T0 + (i * (T1 - T0)) // max(1, len(TW)) for i in range(len(TW))]
    cnt_t = {28: 0, 29: 0}
    def htouch(i):
        if i == 0:
            A(f"""s_and_b32 s28, s17, 15
            s_mul_i32 s28, s28, {196*1024}
            s_lshr_b32 s29, s17, 4
            s_lshl_b32 s29, s29, 2
            s_add_u32 s29, s29, s3
            s_mul_i32 s29, s29, {84*128}
            s_add_u32 s28, s28, s29
            s_add_u32 s28, s28, {WGU + 112*1024}
            s_and_b32 s29, s17, 3
            s_mul_i32 s29, s29, {112*128}
            s_add_u32 s29, s29, s35
            v_lshlrev_b32 v12, 7, v5""")
        r = TW[i][0]; k = cnt_t[r]; cnt_t[r] += 1
        vm.issue(f"buffer_load_dword v13, v12, s[8:11], s{r} offen offset:{1024*(k&3)}", "touch")
        if k & 3 == 3: A(f"s_add_u32 s{r}, s{r}, 4096")
    for t in range(NT):
        kt, j = t >> 2, t & 3
        t1 = t + 1; kt1, j1 = t1 >> 2, t1 & 3
        tm = t - 1; ktm, jm = (tm >> 2), tm & 3
        S, Sn, Sp, P, Pp = sb(t), sb(t1), sb(tm), pb(t), pb(tm)
        if j == 3 and kt < 15: vm.wait(f"kv{kt+1}", f"vv{kt+1}")
        if t in ATT_ST: st(A, f"att{t}")
        cvt(Pp+6, Sp+12); cvt(Pp+7, Sp+14)
        if t1 < NT: A(f"v_mfma_f32_32x32x16_bf16 v[{Sn}:{Sn+15}], {kv(kt1,0)}, {q(j1,0)}, 0")
        if kt + 3 < 16: kvload(kt + 3, j)
        else: woload(kv(kt + 3, j))
        exps(S)
        cvt(P+0, S+0); cvt(P+1, S+2)
        if t1 < NT: A(f"v_mfma_f32_32x32x16_bf16 v[{Sn}:{Sn+15}], {kv(kt1,1)}, {q(j1,1)}, v[{Sn}:{Sn+15}]")
        for i_ in range(len(HT)):
            if HT[i_] == t: htouch(i_)
        exps(S+4)
        cvt(P+2, S+4); cvt(P+3, S+6)
        A(f"v_mfma_f32_32x32x16_bf16 {o(jm)}, {kv(ktm,3)}, v[{Pp+4}:{Pp+7}], {o(jm)}")
        if t >= START:
            pop()
            if len(extra) > NT - 1 - t: pop()
        exps(S+8)
        cvt(P+4, S+8); cvt(P+5, S+10)
        A(f"v_mfma_f32_32x32x16_bf16 {o(j)}, {kv(kt,2)}, v[{P}:{P+3}], {o(j)}")
        exps(S+12)
    assert not extra
    t = NT - 1
    A("v_and_b32 v12, 31, v0\n v_lshlrev_b32 v12, 7, v12")
    vm.issue("buffer_load_dword v9, v12, s[8:11], s36 offen sc1", "tab")
    for i in range(8): woload(f"v[{QR+4*i}:{QR+4*i+3}]")
    cvt(pb(t)+6, sb(t)+12); cvt(pb(t)+7, sb(t)+14)
    A(f"v_mfma_f32_32x32x16_bf16 {o(3)}, {kv(15,3)}, v[{pb(t)+4}:{pb(t)+7}], {o(3)}")
    st(A, "loop")
    late = [lambda i=i: woload(f"v[{sb(t+1)+4*i}:{sb(t+1)+4*i+3}]") for i in range(4)]
    late += [lambda: woload(kv(15, 1)), lambda: woload(kv(15, 2))]
    late += [lambda i=i: woload(f"v[{sb(t)+4*i}:{sb(t)+4*i+3}]") for i in range(4)]
    late += [lambda p=p, i=i: dma_piece(A, vm, p, i) for p in range(NDMA, 4) for i in range(7)]
    for jl in range(1, 4):
        A(f"s_xor_b32 s42, s3, {jl}\n s_mul_i32 s42, s42, 12288\n s_add_u32 s42, s42, {EXCH}\n v_add_u32 v{11+jl}, s42, v6")
    for jl in range(1, 4):
        for rq in range(4):
            r = OR_ + 16*jl + 4*rq
            A(f"ds_write_b128 v{11+jl}, v[{r}:{r+3}] offset:{(jl-1)*4096 + rq*1024}")
            if late: late.pop(0)()
    assert wo_next[0] == 98
    A(f"""s_mul_i32 s42, s3, 12288
    s_add_u32 s42, s42, {EXCH}
    v_add_u32 v12, s42, v6
    v_mul_u32_u24 v13, {ORS}, v5
    v_mul_u32_u24 v14, 56, v3
    v_lshlrev_b32 v15, 5, v4
    v_add3_u32 v13, v13, v14, v15
    v_add_u32 v13, s42, v13
    v_mul_u32_u24 v14, {ORS}, v5
    v_lshl_add_u32 v14, v10, 4, v14
    v_add_u32 v14, {EXCH}, v14
    v_lshrrev_b32 v15, 1, v10
    v_mul_u32_u24 v15, {12288 - 224}, v15
    v_add_u32 v15, v15, v14""")
    vm.wait("tab")
    A(f"""s_mov_b32 exec_hi, 0
    v_cmp_ne_u32 vcc, s37, v9
    s_mov_b32 exec_hi, -1
    s_cmp_eq_u32 vcc_lo, 0
    s_cselect_b32 s38, 1, 0
    s_waitcnt lgkmcnt(0)
    s_barrier""")
    for i in range(3):
        for rq in range(4):
            r = OR_ + 16*(i+1) + 4*rq
            A(f"ds_read_b128 v[{r}:{r+3}], v12 offset:{i*4096 + rq*1024}")
    while late: late.pop(0)()
    for i in range(3):
        A(f"s_waitcnt lgkmcnt({8 - 4*i})")
        for r in range(0, 16, 2): A(f"v_pk_add_f32 v[{OR_+r}:{OR_+r+1}], v[{OR_+r}:{OR_+r+1}], v[{OR_+16*(i+1)+r}:{OR_+16*(i+1)+r+1}]")
    A(f"""v_mov_b32 v{OR_+16}, v{OR_+12}
    v_mov_b32 v{OR_+17}, v{OR_+12}
    v_permlane32_swap_b32 v{OR_+16}, v{OR_+17}
    v_rcp_f32 v{OR_+17}, v{OR_+17}""")
    for r in range(0, 16, 2): A(f"v_pk_mul_f32 v[{OR_+r}:{OR_+r+1}], v[{OR_+r}:{OR_+r+1}], v[{OR_+16}:{OR_+17}] op_sel:[0,1] op_sel_hi:[1,1]")
    for p in range(8): cvt(OR_+18+p, OR_+2*p)
    A(f"""ds_write2_b64 v13, v[{OR_+18}:{OR_+19}], v[{OR_+20}:{OR_+21}] offset0:0 offset1:1
    ds_write_b64 v13, v[{OR_+22}:{OR_+23}] offset:16
    s_mov_b32 exec_hi, 0
    ds_write_b64 v13, v[{OR_+24}:{OR_+25}] offset:24
    s_mov_b32 exec_hi, -1
    s_waitcnt lgkmcnt(0)
    s_barrier""")
    st(A, "exch")
    BR = OR_
    for ks in range(14):
        k0 = 32 * ks
        off = (k0 // 112) * 12288 + (k0 % 112) * 2
        A(f"ds_read_b128 v[{BR+4*ks}:{BR+4*ks+3}], {'v15' if ks in (3, 10) else 'v14'} offset:{off}")
    ACC = [104, 108, PR, PR+4, PR+8, PR+12, KVR+48]
    X1, PK = KVR, KVR + 28
    WDO = E("OPROJ_WD", 20)
    P4O = E("P4_OPROJ", 36)
    for ks in range(14):
        A(f"s_waitcnt lgkmcnt({13-ks})")
        for nt in range(7):
            idx = ks*7 + nt
            if idx in (68, 80, 88): vm.wait(f"wo{min(idx + 11, 97)}")
            acc = f"v[{ACC[nt]}:{ACC[nt]+3}]"
            A(f"v_mfma_f32_16x16x32_bf16 {acc}, {wo_dst[idx]}, v[{BR+4*ks}:{BR+4*ks+3}], {'0' if ks == 0 else acc}")
            if P4O and idx == P4O: A("s_barrier")
            if P4O and idx > P4O and (idx - P4O) % E("P4_EV", 8) == 1 and vm.ops.count("w4") < 7: dma_piece(A, vm, 4, vm.ops.count("w4"))
            elif idx >= 18 and idx % E("OPROJ_EV", 4) == 2 % E("OPROJ_EV", 4) and wd.i < WDO and wd.i + 16 < idx: wd.one()
    st(A, "oproj")
    A("v_mov_b32 v248, v238\n v_mov_b32 v249, v239")
    wd.ar = 248
    X1, PK = 48, 76
    for nt in range(7):
        A(f"""v_lshlrev_b32 v{X1+4*nt}, 16, v{XR+2*nt}
        v_and_b32 v{X1+4*nt+1}, 0xffff0000, v{XR+2*nt}
        v_lshlrev_b32 v{X1+4*nt+2}, 16, v{XR+2*nt+1}
        v_and_b32 v{X1+4*nt+3}, 0xffff0000, v{XR+2*nt+1}""")
    for nt in range(7):
        for r in (0, 2): A(f"v_pk_add_f32 v[{X1+4*nt+r}:{X1+4*nt+r+1}], v[{X1+4*nt+r}:{X1+4*nt+r+1}], v[{ACC[nt]+r}:{ACC[nt]+r+1}]")
    for p in range(14): cvt(PK+p, X1+2*p)
    A(f"""s_add_u32 s42, s34, s20
    s_add_u32 s42, s42, {X1_O}
    s_add_u32 s43, s42, 4096
    s_mov_b32 exec_lo, 0x00ff00ff
    s_mov_b32 exec_hi, 0x00ff00ff""")
    store2(A, vm, [f"buffer_store_dwordx2 v[{PK+2*nt}:{PK+2*nt+1}], v11, s[8:11], s{42 + nt//4} offen offset:{1024*(nt%4)}" for nt in range(7)], "st")
    A("s_mov_b64 exec, -1")
    A(f"""v_pk_add_f32 v[92:93], v[{X1}:{X1+1}], v[{X1+2}:{X1+3}]
    v_pk_mul_f32 v[94:95], v[{X1}:{X1+1}], v[{X1}:{X1+1}]
    v_pk_add_f32 v[96:97], v[{X1+4}:{X1+5}], v[{X1+6}:{X1+7}]
    v_pk_mul_f32 v[98:99], v[{X1+2}:{X1+3}], v[{X1+2}:{X1+3}]""")
    for p in range(2, 14):
        c = 4 * (p & 1)
        if p >= 4: A(f"v_pk_add_f32 v[{92+c}:{93+c}], v[{92+c}:{93+c}], v[{X1+2*p}:{X1+2*p+1}]")
        A(f"v_pk_fma_f32 v[{94+c}:{95+c}], v[{X1+2*p}:{X1+2*p+1}], v[{X1+2*p}:{X1+2*p+1}], v[{94+c}:{95+c}]")
    A(f"""v_pk_add_f32 v[92:93], v[92:93], v[96:97]
    v_pk_add_f32 v[94:95], v[94:95], v[98:99]
    v_add_f32 v92, v92, v93
    v_add_f32 v93, v94, v95
    v_mov_b32 v94, v92
    v_mov_b32 v95, v93
    v_lshlrev_b32 v96, 5, v5
    s_lshl_b32 s42, s18, 10
    v_permlane32_swap_b32 v92, v94
    v_permlane32_swap_b32 v93, v95
    v_pk_add_f32 v[92:93], v[92:93], v[94:95]
    s_lshl_b32 s43, s19, 8
    s_add_u32 s42, s42, s43
    s_lshl_b32 s43, s3, 3
    v_mov_b32 v94, v92
    v_mov_b32 v95, v93
    s_add_u32 s42, s42, s43
    v_permlane16_swap_b32 v92, v94
    v_permlane16_swap_b32 v93, v95
    v_pk_add_f32 v[92:93], v[92:93], v[94:95]
    s_add_u32 s42, s42, {ST1N}
    s_mov_b64 exec, 0xff""")
    store2(A, vm, ["buffer_store_dwordx2 v[92:93], v96, s[8:11], s42 offen"], "st")
    A("s_mov_b64 exec, -1")
    for i in range(E("SIG0_WD", 0)): wd.one()
    signal(A, vm, 0, "st")
    if not E("P4_LATE", 0):
        for i in range(vm.ops.count("w4"), 7): dma_piece(A, vm, 4, i)

def att_fallback(A):
    LDS_MX = EXCH
    A.label("attn_fallback")
    A.reset_hz()
    A.fence(8)
    FK = SP + 4
    A("s_mov_b32 exec_lo, 0")
    for j in range(4): A(f"v_mov_b32 v{QR+8*j+6}, 0")
    A("s_mov_b32 exec_lo, -1")
    for j in range(4): A(f"v_mov_b32 v{12+j}, 0xff800000")
    A("s_mov_b32 s44, 16")
    A.label("attn_fb_loop")
    A(f"""buffer_load_dwordx4 v[{FK}:{FK+3}], v6, s[8:11], s33 offen
    buffer_load_dwordx4 v[{FK+4}:{FK+7}], v6, s[8:11], s33 offen offset:1024
    s_add_u32 s33, s33, 4096
    s_waitcnt vmcnt(0)""")
    for j in range(4):
        S = sb(0)
        A(f"v_mfma_f32_32x32x16_bf16 v[{S}:{S+15}], v[{FK}:{FK+3}], {q(j,0)}, 0")
        A(f"v_mfma_f32_32x32x16_bf16 v[{S}:{S+15}], v[{FK+4}:{FK+7}], {q(j,1)}, v[{S}:{S+15}]")
        for r in range(0, 16, 2): A(f"v_max3_f32 v{12+j}, v{S+r}, v{S+r+1}, v{12+j}")
    A("""s_sub_u32 s44, s44, 1
    s_cmp_lg_u32 s44, 0
    s_cbranch_scc1 attn_fb_loop""")
    A.fence(8)
    for j in range(4): A(f"v_mov_b32 v{SP+j}, v{12+j}")
    for j in range(4): A(f"v_permlane32_swap_b32 v{12+j}, v{SP+j}")
    for j in range(4): A(f"v_max_f32 v{12+j}, v{12+j}, v{SP+j}")
    A(f"v_and_b32 v{SP}, 31, v0\n v_lshlrev_b32 v{SP}, 2, v{SP}\n v_add_u32 v{SP}, {LDS_MX}, v{SP}")
    for jl in range(4):
        A(f"""s_xor_b32 s42, s3, {jl}
        s_lshl_b32 s42, s42, 7
        v_add_u32 v{SP+4+jl}, s42, v{SP}
        s_lshl_b32 s42, s3, 9
        v_add_u32 v{SP+1}, s42, v{SP+4+jl}
        ds_write_b32 v{SP+1}, v{12+jl}""")
    A("s_waitcnt lgkmcnt(0)\n s_barrier")
    for jl in range(4):
        for w in range(4): A(f"ds_read_b32 v{SP+8+w}, v{SP+4+jl} offset:{512*w}")
        A(f"""s_waitcnt lgkmcnt(0)
        v_max3_f32 v{12+jl}, v{SP+8}, v{SP+9}, v{SP+10}
        v_max_f32 v{12+jl}, v{12+jl}, v{SP+11}""")
    A("s_mov_b32 exec_lo, 0")
    for j in range(4):
        m = 12 + j
        A(f"""v_sub_f32 v{m}, 0, v{m}
        v_and_b32 v{SP}, 0xffff0000, v{m}
        v_sub_f32 v{m}, v{m}, v{SP}
        v_and_b32 v{SP+1}, 0xffff0000, v{m}
        v_sub_f32 v{m}, v{m}, v{SP+1}
        v_lshrrev_b32 v{SP}, 16, v{SP}
        v_or_b32 v{QR+8*j+6}, v{SP}, v{SP+1}
        v_lshrrev_b32 v{QR+8*j+7}, 16, v{m}""")
    A("s_mov_b32 exec_lo, -1\n s_branch attn_main")
    A.label("code_end")

def wq_src(A, i):
    lt, ks = divmod(i, 7)
    if i == 0: A(f"s_add_u32 s45, s26, {WQKV}")
    if ks == 0:
        if lt < 4: A(f"s_xor_b32 s42, s3, {lt}\n s_lshl_b32 s43, s19, 2\n s_add_u32 s42, s42, s43")
        else: A("s_and_b32 s42, s19, 1\n s_add_u32 s42, s42, 16")
        A(f"s_mul_i32 s42, s42, {28*1024}\n s_add_u32 s30, s42, s45\n s_add_u32 s31, s30, 4096")
    return f"s{30 + ks//4} offen offset:{1024*(ks%4)}", 1024*(ks%4)
def wq_load(A, vm, i):
    src, io = wq_src(A, i)
    vm.issue(f"buffer_load_dwordx4 a[{64+4*i}:{67+4*i}], v6, s[4:7], {src}", "wq")

def phase_ffn(A, vm, wd):
    XF, HF, NP_ = 16, 16, len(PARTS)
    assert NP_ == 3
    ACB = [128, 128 + 16 * PARTS[0], 128]
    assert max(ACB[p] + 16 * PARTS[p] for p in range(NP_)) <= 208 and PARTS[2] <= PARTS[0]
    A(f"""s_lshr_b32 s42, s17, 4
    s_lshl_b32 s42, s42, 2
    s_add_u32 s42, s42, s3
    s_lshl_b32 s28, s16, 3
    s_add_u32 s28, s28, s42
    s_lshl_b32 s42, s42, 2
    s_lshl_b32 s44, 15, s42
    s_mul_i32 s23, s28, {28*1024}
    s_add_u32 s23, s23, s20
    s_add_u32 s23, s23, {X1_O}
    s_lshl_b32 s24, s28, 10
    s_add_u32 s24, s24, {ST1N}
    s_lshl_b32 s27, s3, 10
    v_add_u32 v7, 0x10000, v6
    v_add_u32 v8, 0x20000, v6
    v_and_b32 v3, 31, v0
    v_bfe_u32 v4, v0, 5, 1
    v_lshlrev_b32 v5, 5, v3
    v_lshl_add_u32 v5, v4, 4, v5""")
    FR = [(p, ks, a) for p in range(NP_) for ks in range(28) for a in range(PARTS[p])]
    def wf(f): b = 4 * (f & 7); return f"a[{b}:{b+3}]"
    def rd(f):
        off = ((f // 28) % 5) * RING_SLOT + (f % 28) * 1024
        base = "v6" if off < 65536 else ("v7" if off < 131072 else "v8")
        A(f"ds_read_b128 {wf(f)}, {base} offset:{off & 65535}")
    for f in range(7): rd(f)
    A(f"""s_and_b32 s37, s17, 3
    s_lshr_b32 s29, s17, 2
    s_lshl_b32 s32, s16, 3
    s_lshl_b32 s42, s37, 1
    s_add_u32 s32, s32, s42
    s_lshr_b32 s42, s3, 1
    s_add_u32 s32, s32, s42
    s_mul_i32 s34, s32, {28*1024}
    s_min_u32 s42, s29, 6
    s_lshl_b32 s42, s42, 12
    s_add_u32 s34, s34, s42
    s_and_b32 s42, s3, 1
    s_lshl_b32 s42, s42, 11
    s_add_u32 s34, s34, s42
    s_mul_i32 s36, s39, {24*512}
    s_lshl_b32 s42, s16, 9
    s_add_u32 s36, s36, s42
    s_add_u32 s36, s36, {FL2}
    v_bfe_u32 v250, v0, 1, 2
    v_and_b32 v251, 1, v0
    v_lshlrev_b32 v250, 4, v250
    v_lshl_add_u32 v250, v251, 2, v250
    s_lshr_b32 s42, s37, 1
    s_lshl_b32 s42, s42, 2
    s_add_u32 s42, s42, s3
    s_lshl_b32 s42, s42, 6
    s_and_b32 s43, s37, 1
    s_lshl_b32 s43, s43, 3
    s_add_u32 s42, s42, s43
    v_add_u32 v250, s42, v250
    s_lshl_b32 s42, s17, 4
    s_lshl_b32 s43, s3, 2
    s_add_u32 s42, s42, s43
    v_mov_b32 v251, s42
    v_mov_b32 v252, 1""")
    st(A, "gu_w")
    waitflags(A, vm, 0, 44)
    st(A, "gu_go")
    def xload(ks):
        vm.issue(f"buffer_load_dwordx4 v[{XF+4*ks}:{XF+4*ks+3}], v6, s[8:11], s23 offen offset:{1024*(ks&3)} sc1", f"x{ks}")
        if ks & 3 == 3: A("s_add_u32 s23, s23, 4096")
    def resid():
        A(f"s_add_u32 s42, s34, s20\n s_add_u32 s42, s42, {X1_O}")
        vm.issue("buffer_load_dwordx4 v[240:243], v6, s[8:11], s42 offen sc1", "res")
        vm.issue("buffer_load_dwordx4 v[244:247], v6, s[8:11], s42 offen offset:1024 sc1", "res")
    XPRE = E("GU_XPRE", 8)
    for ks in range(XPRE): xload(ks)
    mem = [lambda ks=ks: xload(ks) for ks in range(XPRE, 28)]
    mem.append(lambda: vm.issue("buffer_load_dwordx4 v[12:15], v5, s[8:11], s24 offen sc1", "stat"))
    mem.append(resid)
    wdq = [wd.one] * (56 - wd.i)
    valu = []
    at = {}
    def put(f, fn): at.setdefault(f, []).append(fn)
    def stats():
        assert "stat" in vm.ops
        vm.wait("stat")
        A(f"""v_pk_add_f32 v[12:13], v[12:13], v[14:15]
        v_mov_b32 v14, v12
        v_mov_b32 v15, v13
        v_permlane32_swap_b32 v12, v14
        v_permlane32_swap_b32 v13, v15
        v_pk_add_f32 v[12:13], v[12:13], v[14:15]
        v_mul_f32 v12, {f2u(1.0/448):#x}, v12
        v_mul_f32 v13, {f2u(1.0/448):#x}, v13
        v_fma_f32 v13, -v12, v12, v13
        v_max_f32 v13, 0, v13
        v_add_f32 v13, {f2u(1e-5):#x}, v13
        v_rcp_f32 v10, v13
        v_mov_b32 v11, v10""")
    def hdst(p):
        A(f"""s_mul_i32 s24, s28, {16*PARTS[p]*1024}
        s_and_b32 s43, s17, 15
        s_mul_i32 s43, s43, {PARTS[p]*1024}
        s_add_u32 s24, s24, s43
        s_add_u32 s24, s24, s20
        s_add_u32 s24, s24, {hbase(p)}""")
    def hstore(p, a):
        b = ACB[p] + 16 * a
        ins = f"buffer_store_dwordx4 v[{b+8}:{b+11}], v6, s[8:11], s24 offen offset:{1024*a}"
        store2(A, vm, [ins], f"hs{p}", "" if (QALIAS and p == NP_ - 1) else "sc1")
    def epi(p, a, pk):
        b = ACB[p] + 16 * a
        L = []
        if pk:
            L += [f"v_pk_mul_f32 v[{b+r}:{b+r+1}], v[{b+r}:{b+r+1}], v[{b+8+r}:{b+9+r}]" for r in range(0, 8, 2)]
            L += [f"v_pk_mul_f32 v[{b+r}:{b+r+1}], v[{b+r}:{b+r+1}], v[10:11]" for r in range(0, 8, 2)]
        else:
            L += [f"v_mul_f32 v{b+r}, v{b+r}, v{b+8+r}" for r in range(8)]
            L += [f"v_mul_f32 v{b+r}, v{b+r}, v10" for r in range(8)]
        L += [f"v_cvt_pk_bf16_f32 v{b+8+q_}, v{b+2*q_}, v{b+2*q_+1}" for q_ in range(4)]
        return [lambda t=t: A(t) for t in L]
    def flag(p):
        u = uid[0]; uid[0] += 1
        vm.wait(f"hs{p}")
        A(f"""s_add_u32 s42, s36, {p*4096}
        s_mov_b64 exec, 1
        s_cmp_eq_u32 s38, 0
        s_cbranch_scc1 fl_slow{u}
        buffer_store_dword v252, v251, s[8:11], s42 offen""")
        A.label(f"fl_done{u}")
        A("s_mov_b64 exec, -1")
        vm.ops.append("flag")
        def cold():
            A.label(f"fl_slow{u}")
            A(f"buffer_store_dword v252, v251, s[8:11], s42 offen sc1\n s_branch fl_done{u}")
        COLD.append(cold)
    def poll(p):
        A(f"s_add_u32 s42, s36, {p*4096}")
        vm.issue("buffer_load_dword v9, v250, s[8:11], s42 offen sc1", f"poll{p}")
    def check(p):
        u = uid[0]; uid[0] += 1
        vm.wait(f"poll{p}")
        A(f"v_cmp_ne_u32 vcc, 1, v9\n s_cbranch_vccnz ck_slow{u}")
        A.label(f"ck_done{u}")
        def cold():
            A.label(f"ck_slow{u}")
            A(f"s_add_u32 s42, s36, {p*4096}\n s_mov_b32 s41, {SPIN_LIMIT}")
            A.label(f"ck_loop{u}")
            A(f"""buffer_load_dword v9, v250, s[8:11], s42 offen sc1
            s_sub_u32 s41, s41, 1
            s_cmp_eq_u32 s41, 0
            s_cbranch_scc1 ck_done{u}
            s_waitcnt vmcnt(0)
            v_cmp_ne_u32 vcc, 1, v9
            s_cbranch_vccnz ck_loop{u}
            s_branch ck_done{u}""")
        COLD.append(cold)
        if STAMPS: st(A, f"ck{p}")
    def hf(n, t): b = HF + 8 * (n % 24) + 4 * t; return f"v[{b}:{b+3}]"
    def hload(n):
        p = HSTEP[n][0]; j = n - 4 * POFF[p]
        if j == 0:
            A(f"""s_mul_i32 s23, s32, {16*PARTS[p]*1024}
            s_xor_b32 s42, s32, 1
            s_mul_i32 s25, s42, {16*PARTS[p]*1024}
            s_mul_i32 s42, s3, {4*PARTS[p]*1024}
            s_add_u32 s42, s42, s20
            s_add_u32 s42, s42, {hbase(p)}
            s_add_u32 s23, s23, s42
            s_add_u32 s25, s25, s42""")
        vm.issue(f"buffer_load_dwordx4 {hf(n,0)}, v6, s[8:11], s23 offen offset:{1024*(j&3)}{SC1}", f"k{n}")
        vm.issue(f"buffer_load_dwordx4 {hf(n,1)}, v6, s[8:11], s25 offen offset:{1024*(j&3)}{SC1}", f"k{n}")
        if j & 3 == 3: A("s_add_u32 s23, s23, 4096\n s_add_u32 s25, s25, 4096")
    PE = [28 * (POFF[p] + PARTS[p]) for p in range(NP_)]
    put(PE[0] - 12, stats)
    SD = EL("FF_SD", "1,1")
    FD = EL("FF_FD", "40,36,18")
    PD = EL("FF_PD", "12,12,14")
    CD = EL("FF_CD", "38,14,14")
    chk = {}; late_flags = []
    EPG = E("FF_EPG", 4)
    def plan(p, last_store):
        fs_ = last_store + FD[p]
        put(fs_, lambda: flag(p)); put(fs_ + PD[p], lambda: poll(p))
        if fs_ >= 196: late_flags.append(p)
        c = fs_ + PD[p] + CD[p]
        c = min(c, 196 + 16 * POFF[p] - 1) if p else min(c, 195)
        assert c > fs_ + PD[p], (p, c)
        put(c, lambda: check(p)); chk[p] = c
    for p in range(NP_ - 1):
        f = PE[p] + SD[p]
        put(f, lambda p=p: hdst(p))
        for a in range(PARTS[p]):
            ops = epi(p, a, False)
            while ops:
                for o in ops[:EPG]: put(f, o)
                ops = ops[EPG:]; f += 1
            put(f, lambda p=p, a=a: hstore(p, a))
        plan(p, f)
    plan(NP_ - 1, 195)
    nl = [0]
    def try_h(f, mx):
        for _ in range(mx):
            n = nl[0]
            if n >= 28 or f < chk[HSTEP[n][0]]: return
            if f < 196:
                if 2 * n + 1 >= FR[f][1] or FR[f][0] != NP_ - 1: return
            elif n >= 24 and n - 24 >= (f - 196) // 4: return
            if n > max(0, (f - 196) // 4) + E("H_AHEAD", 5): return
            hload(n); nl[0] += 1
    PER, PERX, PERD = E("GU_PER", 3), E("GU_PERX", 2), E("GU_PERD", 4)
    dq = []; last_d = [-99]
    WD0 = E("GU_WD0", 60)
    for f, (p, ks, a) in enumerate(FR):
        nf = f + 7
        if nf < 196 and nf % 28 == 0 and nf // 28 >= 4:
            assert nf // 28 == 4 or vm.ops.count(f"w{nf//28}") == 7
            vm.wait(f"w{nf//28}"); A("s_barrier")
        if f in (28, 56):
            A("s_barrier")
            dq += [lambda i=i, pc=f//28+4: dma_piece(A, vm, pc, i, True) for i in range(7)]
        if p == 0 and a == 0: vm.wait(f"x{ks}")
        if f in GU_ST: st(A, f"gu{f}")
        A(f"s_waitcnt lgkmcnt({min(6, 195 - f)})")
        acc = f"v[{ACB[p]+16*a}:{ACB[p]+16*a+15}]"
        A(f"v_mfma_f32_32x32x16_bf16 {acc}, {wf(f)}, v[{XF+4*ks}:{XF+4*ks+3}], {'0' if ks == 0 else acc}")
        if nf < 196: rd(nf)
        if dq and f - last_d[0] >= PERD: dq.pop(0)(); last_d[0] = f
        elif mem and f % PERX == 0: mem.pop(0)()
        elif not mem and wdq and f >= WD0 and f % PER == 0: wdq.pop(0)()
        for fn in at.pop(f, []): fn()
        try_h(f, 1)
    assert not mem and not dq and not wdq, (len(mem), len(dq), len(wdq))
    st(A, "gu_mm")
    hdst(NP_ - 1)
    for a in range(PARTS[-1]):
        for o in epi(NP_ - 1, a, True): o()
        hstore(NP_ - 1, a)
    A("s_cmp_ge_u32 s17, 28\n s_cbranch_scc1 down_skip")
    st(A, "dn_go")
    vm.wait("wd")
    def wdf(n, a): return wd.dst(2 * n + a)
    wq = [lambda i=i: wq_load(A, vm, i) for i in range(35)]
    for n in range(28):
        try_h(196 + 4 * n - 1, 3 if n == 0 else 0)
        assert nl[0] > n, f"h step {n} not loaded"
        vm.wait(f"k{n}")
        if n in DN_ST: st(A, f"dn{n}")
        if n == E("DN_BAR", 10): A("s_barrier")
        for t in range(2):
            for a in range(2):
                f = 196 + 4 * n + 2 * t + a
                lp = a + 2*t
                acc = f"a[{16*lp}:{16*lp+15}]"
                A(f"v_mfma_f32_32x32x16_bf16 {acc}, {wdf(n,a)}, {hf(n,t)}, {'0' if n == 0 else acc}")
                for fn in at.pop(f, []): fn()
                try_h(f, 1)
                if nl[0] >= 28 and wq and f % E('WQ_PER', 2) == 0 and (35 - len(wq)) // 2 < n: wq.pop(0)()
    assert not at, at.keys()
    st(A, "dn_mm")
    for lp in range(1, 4):
        A(f"s_xor_b32 s42, s3, {lp}\n s_mul_i32 s42, s42, 12288\n v_add_u32 v{8+lp}, s42, v6")
    for p in range(8):
        A(f"v_lshlrev_b32 v{80+2*p}, 16, v{240+p}\n v_and_b32 v{81+2*p}, 0xffff0000, v{240+p}")
    for lp in range(1, 4):
        for rq in range(4):
            r = 16*lp + 4*rq
            A(f"ds_write_b128 v{8+lp}, a[{r}:{r+3}] offset:{(lp-1)*4096 + rq*1024}")
            for _ in range(E("WQ_EX", 1)):
                if wq: wq.pop(0)()
    A(f"""s_mul_i32 s42, s3, 12288
    v_add_u32 v12, s42, v6""")
    for r in range(16): A(f"v_accvgpr_read_b32 v{16+r}, a{r}")
    for r in range(0, 16, 2): A(f"v_pk_add_f32 v[{16+r}:{17+r}], v[{16+r}:{17+r}], v[{80+r}:{81+r}]")
    A("s_waitcnt lgkmcnt(0)\n s_barrier")
    for i in range(3):
        for rq in range(4):
            r = 32 + 16*i + 4*rq
            A(f"ds_read_b128 v[{r}:{r+3}], v12 offset:{i*4096 + rq*1024}")
    for _ in range(E("WQ_EX2", 0)):
        if wq: wq.pop(0)()
    for i in range(3):
        A(f"s_waitcnt lgkmcnt({8-4*i})")
        for r in range(0, 16, 2): A(f"v_pk_add_f32 v[{16+r}:{17+r}], v[{16+r}:{17+r}], v[{32+16*i+r}:{33+16*i+r}]")
    for p in range(8): A(f"v_cvt_pk_bf16_f32 v{96+p}, v{16+2*p}, v{17+2*p}")
    A(f"""s_cmp_eq_u32 s39, 1
    s_cbranch_scc0 down_x2
    v_mul_u32_u24 v5, 896, v3
    v_lshl_add_u32 v5, v4, 4, v5
    s_mul_i32 s42, s32, {32*896}
    s_lshl_b32 s43, s29, 7
    s_add_u32 s42, s42, s43
    s_and_b32 s43, s3, 1
    s_lshl_b32 s43, s43, 6
    s_add_u32 s42, s42, s43
    buffer_store_dwordx4 v[96:99], v5, s[12:15], s42 offen
    buffer_store_dwordx4 v[100:103], v5, s[12:15], s42 offen offset:32""")
    if STAMPS:
        A("s_waitcnt vmcnt(0)")
        main_flush(A, 3)
    A("s_endpgm")
    A.label("down_x2")
    A.fence(2)
    A(f"s_add_u32 s42, s34, s20\n s_add_u32 s42, s42, {X2_O}")
    store2(A, vm, ["buffer_store_dwordx4 v[96:99], v6, s[8:11], s42 offen", "buffer_store_dwordx4 v[100:103], v6, s[8:11], s42 offen offset:1024"], "st")
    A(f"""v_pk_add_f32 v[32:33], v[16:17], v[18:19]
    v_pk_mul_f32 v[34:35], v[16:17], v[16:17]
    v_pk_add_f32 v[36:37], v[20:21], v[22:23]
    v_pk_mul_f32 v[38:39], v[18:19], v[18:19]""")
    for p in range(2, 8):
        c = 4 * (p & 1)
        if p >= 4: A(f"v_pk_add_f32 v[{32+c}:{33+c}], v[{32+c}:{33+c}], v[{16+2*p}:{17+2*p}]")
        A(f"v_pk_fma_f32 v[{34+c}:{35+c}], v[{16+2*p}:{17+2*p}], v[{16+2*p}:{17+2*p}], v[{34+c}:{35+c}]")
    A(f"""v_pk_add_f32 v[32:33], v[32:33], v[36:37]
    v_pk_add_f32 v[34:35], v[34:35], v[38:39]
    v_add_f32 v32, v32, v33
    v_add_f32 v33, v34, v35
    v_mov_b32 v34, v32
    v_mov_b32 v35, v33
    v_lshlrev_b32 v36, 4, v3
    s_lshl_b32 s42, s32, 12
    v_permlane32_swap_b32 v32, v34
    v_permlane32_swap_b32 v33, v35
    v_pk_add_f32 v[32:33], v[32:33], v[34:35]
    s_lshl_b32 s43, s29, 9
    s_add_u32 s42, s42, s43
    s_and_b32 s43, s3, 1
    s_lshl_b32 s43, s43, 3
    s_add_u32 s42, s42, s43
    s_add_u32 s42, s42, {ST2N}
    s_mov_b32 exec_hi, 0""")
    store2(A, vm, ["buffer_store_dwordx2 v[32:33], v36, s[8:11], s42 offen"], "st")
    A(f"""s_mov_b32 exec_hi, -1
    s_lshl_b32 s24, s37, 3
    s_add_u32 s24, s24, s29""")
    while wq: wq.pop(0)()
    signal(A, vm, 2, "st", "s24")
    A("s_branch qkv_wait")
    A.label("down_skip")
    A.fence(4)
    A("s_waitcnt vmcnt(0)")
    vm.ops = ["drained"]
    for p in late_flags: flag(p)
    A("s_cmp_eq_u32 s39, 1\n s_cbranch_scc1 main_end")
    for i in range(35): wq_load(A, VM2(A), i)
    A.label("qkv_wait")
    A.fence(4)
    A(f"""s_lshr_b32 s42, s17, 3
    s_lshl_b32 s42, s42, 3
    s_lshl_b32 s44, 0x7f, s42
    s_add_u32 s21, s20, {X2_O}
    s_mov_b32 s20, {ABASE[1]}
    s_mov_b32 s32, {LBASE[1]}
    s_lshl_b32 s24, s18, 12
    s_add_u32 s24, s24, {ST2N}
    s_mul_i32 s28, s18, {28*1024}
    s_add_u32 s28, s28, s26
    s_add_u32 s28, s28, s21
    s_add_u32 s29, s28, 4096""")
    st(A, "qkv_w")
    waitflags(A, vm, 2, 44)

def qkv_epilogue(A, vm, P, raw, bar=None):
    AC = 16
    FS = os.environ.get("QKV_FS", "")
    if FS: FS = " " + FS
    XT = 49152
    for lp in range(1, 4):
        A(f"s_xor_b32 s42, s3, {lp}\n s_mul_i32 s42, s42, 12288\n v_add_u32 v{124+lp}, s42, v6")
    A.fence(4)
    for lp in range(1, 4):
        for rq in range(4):
            r = AC + 16*lp + 4*rq
            A(f"ds_write_b128 v{124+lp}, v[{r}:{r+3}] offset:{(lp-1)*4096 + rq*1024}")
    A(f"""s_cmp_ge_u32 s19, 2
    s_cbranch_scc1 {P}_nox
    s_cmp_eq_u32 s3, 0
    s_cbranch_scc1 {P}_nox
    s_lshl_b32 s42, s3, 12
    s_add_u32 s42, s42, {XT - 4096}
    v_add_u32 v124, s42, v6""")
    for rq in range(4):
        r = AC + 64 + 4*rq
        A(f"ds_write_b128 v124, v[{r}:{r+3}] offset:{rq*1024}")
    A.label(P + "_nox")
    A(f"""s_mul_i32 s42, s3, 12288
    v_add_u32 v12, s42, v6""")
    if not raw:
        vm.wait("stat")
        for sz in (8, 4, 2):
            for i in range(0, sz, 2):
                A(f"v_pk_add_f32 v[{128+i}:{129+i}], v[{128+i}:{129+i}], v[{128+sz+i}:{129+sz+i}]")
        A(f"""v_mov_b32 v130, v128
        v_mov_b32 v131, v129
        s_lshl_b32 s42, s18, 15
        s_lshl_b32 s43, s19, 13
        v_permlane32_swap_b32 v128, v130
        v_permlane32_swap_b32 v129, v131
        v_pk_add_f32 v[128:129], v[128:129], v[130:131]
        v_mul_f32 v128, {f2u(1.0/448):#x}, v128
        v_mul_f32 v129, {f2u(1.0/448):#x}, v129
        v_fma_f32 v129, -v128, v128, v129
        v_max_f32 v129, 0, v129
        v_add_f32 v129, {f2u(1e-5):#x}, v129
        v_rsq_f32 v10, v129
        s_add_u32 s42, s42, s43
        s_lshl_b32 s43, s3, 11
        s_add_u32 s42, s42, s43
        s_add_u32 s42, s42, s20
        v_mov_b32 v11, v10
        s_waitcnt lgkmcnt(0)
        s_barrier""")
    else:
        A(f"""s_lshl_b32 s42, s18, 15
        s_lshl_b32 s43, s19, 13
        s_add_u32 s42, s42, s43
        s_lshl_b32 s43, s3, 11
        s_add_u32 s42, s42, s43
        s_add_u32 s42, s42, s20
        v_mov_b32 v10, {f2u(QSCALE):#x}
        v_mov_b32 v11, {f2u(QSCALE):#x}
        s_waitcnt lgkmcnt(0)""")
        bar(2)
    for i in range(3):
        for rq in range(4):
            r = AC + 16*(i+1) + 4*rq
            A(f"ds_read_b128 v[{r}:{r+3}], v12 offset:{i*4096 + rq*1024}")
    for i in range(3):
        A(f"s_waitcnt lgkmcnt({8-4*i})")
        for r in range(0, 16, 2): A(f"v_pk_add_f32 v[{AC+r}:{AC+r+1}], v[{AC+r}:{AC+r+1}], v[{AC+16*(i+1)+r}:{AC+16*(i+1)+r+1}]")
    for r in range(0, 16, 2): A(f"v_pk_mul_f32 v[{AC+r}:{AC+r+1}], v[{AC+r}:{AC+r+1}], v[10:11]")
    for p in range(8): A(f"v_cvt_pk_bf16_f32 v{144+p}, v{AC+2*p}, v{AC+2*p+1}")
    def norm(base, d):
        A(f"v_mov_b32 v{d}, 0\n v_mov_b32 v{d+1}, 0")
        for p in range(8): A(f"v_dot2_f32_bf16 v{d+(p&1)}, v{base+p}, v{base+p}, v{d+(p&1)}")
        A(f"""v_add_f32 v{d}, v{d}, v{d+1}
        v_mov_b32 v{d+1}, v{d}
        v_permlane32_swap_b32 v{d}, v{d+1}
        v_add_f32 v{d}, v{d}, v{d+1}
        v_sqrt_f32 v{d}, v{d}
        v_mul_f32 v{d}, {f2u(1.01):#x}, v{d}""")
    A("buffer_store_dwordx4 v[144:147], v6, s[8:11], s42 offen" + FS)
    if raw: A("s_mov_b32 exec_lo, 0\n v_mov_b32 v150, 0\n v_mov_b32 v151, 0\n s_mov_b32 exec_lo, -1")
    norm(144, 132)
    A(f"""s_mov_b32 exec_lo, 0
    v_cvt_pk_bf16_f32 v150, v132, 0
    s_mov_b32 exec_lo, -1
    buffer_store_dwordx4 v[148:151], v6, s[8:11], s42 offen offset:1024{FS}
    s_cmp_ge_u32 s19, 2
    s_cbranch_scc1 {P}_fin
    s_cmp_lg_u32 s3, 0
    s_cbranch_scc1 {P}_fin
    v_add_u32 v12, {XT}, v6""")
    EE = AC + 64
    for i in range(3):
        for rq in range(4):
            r = AC + 16*i + 4*rq
            A(f"ds_read_b128 v[{r}:{r+3}], v12 offset:{i*4096 + rq*1024}")
    A(f"""s_lshl_b32 s42, s18, 12
    s_add_u32 s42, s42, s32
    s_add_u32 s42, s42, {KV_O}""")
    for i in range(3):
        A(f"s_waitcnt lgkmcnt({8-4*i})")
        for r in range(0, 16, 2): A(f"v_pk_add_f32 v[{EE+r}:{EE+r+1}], v[{EE+r}:{EE+r+1}], v[{AC+16*i+r}:{AC+16*i+r+1}]")
    A(f"s_cmp_eq_u32 s19, 1\n s_cbranch_scc1 {P}_epi_v")
    if not raw:
        for r in range(0, 16, 2): A(f"v_pk_mul_f32 v[{EE+r}:{EE+r+1}], v[{EE+r}:{EE+r+1}], v[10:11]")
    for p in range(8): A(f"v_cvt_pk_bf16_f32 v{152+p}, v{EE+2*p}, v{EE+2*p+1}")
    A("buffer_store_dwordx4 v[152:155], v6, s[8:11], s42 offen" + FS)
    if raw: A("s_mov_b32 exec_lo, 0\n v_mov_b32 v158, 0\n v_mov_b32 v159, 0\n s_mov_b32 exec_lo, -1")
    norm(152, 20)
    A(f"""s_mov_b32 exec_lo, 0
    v_mov_b32 v158, 0x3f803f80
    v_mov_b32 v159, 0x00003f80
    s_mov_b32 exec_lo, -1
    buffer_store_dwordx4 v[156:159], v6, s[8:11], s42 offen offset:1024{FS}
    v_max_f32_dpp v20, v20, v20 row_shr:1 row_mask:0xf bank_mask:0xf
    v_max_f32_dpp v20, v20, v20 row_shr:2 row_mask:0xf bank_mask:0xf
    v_max_f32_dpp v20, v20, v20 row_shr:4 row_mask:0xf bank_mask:0xf
    v_max_f32_dpp v20, v20, v20 row_shr:8 row_mask:0xf bank_mask:0xf
    v_readlane_b32 s30, v20, 15
    v_readlane_b32 s31, v20, 31
    v_mov_b32 v21, s30
    v_max_f32 v21, s31, v21
    s_lshl_b32 s42, s18, 2
    s_add_u32 s42, s42, s32
    s_add_u32 s42, s42, {KN_O}
    v_mov_b32 v22, 0
    s_mov_b64 exec, 1
    buffer_store_dword v21, v22, s[8:11], s42 offen{FS}
    s_branch {P}_fin""")
    A.label(P + "_epi_v")
    A.fence(4)
    if not raw:
        A(f"""v_lshlrev_b32 v20, 2, v3
        ds_write_b32 v20, v10
        v_lshlrev_b32 v21, 4, v4
        v_cmp_eq_u32 vcc, 28, v3
        v_mov_b32 v23, 0
        v_mov_b32 v24, 1.0
        v_cndmask_b32 v23, v23, v24, vcc
        s_waitcnt lgkmcnt(0)""")
        for qq in range(4): A(f"ds_read_b128 v[{40+4*qq}:{43+4*qq}], v21 offset:{32*qq}")
        A("s_waitcnt lgkmcnt(0)")
        for r in range(16): A(f"v_fma_f32 v{EE+r}, v{EE+r}, v{40+r}, v23")
    else:
        A("""v_cmp_eq_u32 vcc, 28, v3
        v_mov_b32 v23, 0
        v_mov_b32 v24, 1.0
        v_cndmask_b32 v23, v23, v24, vcc
        v_cmp_le_u32 vcc, 28, v3""")
        for r in range(16): A(f"v_cndmask_b32 v{EE+r}, v{EE+r}, v23, vcc")
    for p in range(8): A(f"v_cvt_pk_bf16_f32 v{152+p}, v{EE+2*p}, v{EE+2*p+1}")
    A(f"""buffer_store_dwordx4 v[152:155], v6, s[8:11], s42 offen offset:2048{FS}
    buffer_store_dwordx4 v[156:159], v6, s[8:11], s42 offen offset:3072{FS}""")
    A.label(P + "_fin")
    if STAMPS:
        A.fence(4)
        A("s_waitcnt vmcnt(0)")
        main_flush(A, 3)

def phase_qkv(A):
    vm = VM2(A)
    XF, AC = 96, 16
    st(A, "qkv_go")
    for ks in range(7):
        vm.issue(f"buffer_load_dwordx4 v[{XF+4*ks}:{XF+4*ks+3}], v6, s[8:11], s{28 + ks//4} offen offset:{1024*(ks%4)} sc1", f"x{ks}")
    for i in range(4): vm.issue(f"buffer_load_dwordx4 v[{128+4*i}:{131+4*i}], v6, s[8:11], s24 offen offset:{1024*i} sc1", "stat")
    def w(i): return f"a[{64+4*i}:{67+4*i}]"
    def mm(kind):
        for ks in range(7):
            vm.wait(f"x{ks}")
            x = f"v[{XF+4*ks}:{XF+4*ks+3}]"
            for lt in ([4] if kind else []) + [0, 1, 2, 3]:
                i = lt * 7 + ks
                acc = f"v[{AC+16*lt}:{AC+16*lt+15}]"
                c = "0" if ks == 0 else acc
                if lt == 4 and kind == 2: A(f"v_mfma_f32_32x32x16_bf16 {acc}, {x}, {w(i)}, {c}")
                else: A(f"v_mfma_f32_32x32x16_bf16 {acc}, {w(i)}, {x}, {c}")
    A("s_cmp_eq_u32 s19, 0\n s_cbranch_scc1 qkv_mmk\n s_cmp_eq_u32 s19, 1\n s_cbranch_scc1 qkv_mmv")
    mm(0)
    A("s_branch qkv_red")
    A.label("qkv_mmk"); A.reset_hz(); mm(1); A("s_branch qkv_red")
    A.label("qkv_mmv"); A.reset_hz(); mm(2)
    A.label("qkv_red")
    A.fence(4)
    st(A, "qkv_mm")
    qkv_epilogue(A, vm, "qkv", False)


PQ_KV = 4 * 28 * 1024
PQ_ST = PQ_KV + 4 * 7 * 1024
PQ_PREP = PQ_ST + 1024
PQ_SYNC = PQ_PREP + 1024
PQ_LDS = PQ_SYNC + 64
NTP = " nt" if E("NT_P", 1) else ""
NTX = " nt" if E("NT_X", 1) else ""
NTW = " nt" if E("NT_W", 0) else ""
PFS = os.environ.get("PREP_FS", "")
if PFS: PFS = " " + PFS
def stq(A, n):
    if E('PQ_ST', 0): st(A, n)
def lbar(A, k, n=4):
    u = uid[0]; uid[0] += 1
    A(f"""v_mov_b32 v1, 1
    v_mov_b32 v2, {PQ_SYNC + 4*k}
    s_mov_b64 exec, 1
    ds_add_u32 v2, v1""")
    A.label(f"lbar{u}")
    A(f"""ds_read_b32 v1, v2
    s_waitcnt lgkmcnt(0)
    v_readfirstlane_b32 s40, v1
    s_cmp_lt_u32 s40, {n}
    s_cbranch_scc1 lbar{u}
    s_mov_b64 exec, -1""")
def pflush(A):
    if not STAMPS: return
    A("""s_mov_b32 s8, s28
    s_mov_b32 s9, s29
    s_mov_b32 s10, s30
    s_mov_b32 s11, 0x20000
    s_mov_b32 s39, 2
    s_waitcnt vmcnt(0)""")
    main_flush(A, 3)

def prep_roles(A):
    LD, BB, AC, SM = 16, 72, 80, 192
    PS = E("PR_ST", 0)
    if not E("PR_TOUCH", 0): A("s_branch pr_notouch")
    A(f"""s_and_b32 s32, s2, 7
    s_lshr_b32 s33, s2, 3
    s_cmp_eq_u32 s3, 0
    s_cselect_b32 s24, s12, s14
    s_cselect_b32 s25, s13, s15
    s_cselect_b32 s20, s16, s10
    s_cselect_b32 s21, s17, s11
    s_mov_b32 s22, {F*D*2}
    s_cselect_b32 s36, 3, 0
    s_and_b32 s25, s25, 0xffff
    s_mov_b32 s26, {F*D*2}
    s_mov_b32 s27, 0x20000
    s_mul_i32 s34, s33, {14*3584}
    s_mul_i32 s35, s32, 448
    s_and_b32 s35, s35, 0xff80
    s_add_u32 s34, s34, s35
    v_lshrrev_b32 v9, 2, v2
    v_min_u32 v9, 13, v9
    v_mul_u32_u24 v11, 3584, v9
    v_and_b32 v10, 3, v2
    v_lshl_add_u32 v11, v10, 7, v11
    buffer_load_dword v250, v11, s[24:27], s34 offen{NTP}
    s_and_b32 s21, s21, 0xffff
    s_mov_b32 s23, 0x20000
    s_lshr_b32 s34, s32, 1
    s_mul_i32 s34, s34, {448*896}
    s_and_b32 s35, s32, 1
    s_mul_i32 s35, s35, 384
    s_add_u32 s34, s34, s35
    s_lshl_b32 s35, s32, 7
    s_min_u32 s35, s35, 768
    s_cmp_eq_u32 s3, 0
    s_cselect_b32 s34, s34, s35
    s_cselect_b32 s22, s22, {D*D*2}
    s_mul_i32 s35, s33, {14*896}
    s_add_u32 s34, s34, s35
    v_and_b32 v10, s36, v10
    v_mul_u32_u24 v11, 896, v9
    v_lshl_add_u32 v11, v10, 7, v11
    buffer_load_dword v251, v11, s[20:23], s34 offen{NTP}
    pr_notouch:
    v_and_b32 v3, 15, v0
    v_bfe_u32 v4, v0, 4, 2
    v_lshlrev_b32 v6, 4, v2
    v_and_b32 v8, 3, v3
    v_and_b32 v7, 12, v3
    v_lshl_add_u32 v5, v7, 1, v8
    v_and_b32 v7, 4, v3
    v_lshl_or_b32 v8, v7, 1, v8
    v_and_b32 v7, 8, v3
    v_lshrrev_b32 v7, 1, v7
    v_or_b32 v8, v8, v7
    v_add_u32 v9, 16, v8
    v_and_b32 v7, 1, v4
    v_lshlrev_b32 v7, 9, v7
    v_lshl_add_u32 v7, v3, 4, v7
    v_lshrrev_b32 v10, 1, v4
    s_mov_b32 s28, s18
    s_and_b32 s29, s19, 0xffff
    s_mov_b32 s30, {WS_BYTES}
    s_mov_b32 s31, 0x20000
    s_mov_b32 s27, 0x20000
    s_and_b32 s32, s2, 7
    s_lshr_b32 s33, s2, 5
    s_lshl_b32 s33, s33, 1
    s_bfe_u32 s34, s2, 0x10003
    s_add_u32 s38, s33, s34
    s_mov_b32 s41, 1.0
    s_mov_b32 s43, 1
    s_bitcmp1_b32 s2, 4
    s_cbranch_scc1 pr_wgu
    s_lshl_b32 s33, s38, 3
    s_add_u32 s39, s32, s33
    s_mov_b32 s33, 896
    s_mov_b32 s26, {D*D*2}
    s_cmp_lt_u32 s39, 18
    s_cbranch_scc1 pr_qkv
    s_mov_b32 s43, 0
    s_cmp_lt_u32 s38, 3
    s_cbranch_scc1 pq_end
    s_cmp_lt_u32 s38, 5
    s_cbranch_scc1 pr_wo
    s_cmp_ge_u32 s38, 12
    s_cbranch_scc1 pr_flags""")
    A(f"""s_mul_i32 s32, s32, 7
    s_add_u32 s32, s32, s38
    s_sub_u32 s32, s32, 5
    s_mul_i32 s38, s32, 4682
    s_lshr_b32 s38, s38, 16
    s_mul_i32 s39, s38, 14
    s_sub_u32 s39, s32, s39
    s_lshl_b32 s38, s38, 1
    s_add_u32 s38, s38, s3
    s_mov_b32 s24, s16
    s_and_b32 s25, s17, 0xffff
    s_mov_b32 s26, {F*D*2}
    s_mul_i32 s34, s38, {224*896}
    s_lshl_b32 s35, s39, 6
    s_add_u32 s34, s34, s35
    s_lshr_b32 s35, s39, 1
    s_mul_i32 s35, s35, {112*2*1024}
    s_and_b32 s39, s39, 1
    s_lshl_b32 s39, s39, 10
    s_add_u32 s35, s35, s39
    s_mul_i32 s38, s38, {14*2048}
    s_add_u32 s35, s35, s38
    s_add_u32 s35, s35, {WD}
    s_mov_b32 s20, 2048
    s_branch pr_std""")
    A.label("pr_wo")
    A(f"""s_cmp_eq_u32 s32, 7
    s_cbranch_scc1 pq_end
    s_lshl_b32 s32, s32, 1
    s_add_u32 s32, s32, s38
    s_sub_u32 s32, s32, 3
    s_mov_b32 s24, s10
    s_and_b32 s25, s11, 0xffff
    s_mul_i32 s34, s3, {224*896}
    s_lshl_b32 s35, s32, 6
    s_add_u32 s34, s34, s35
    v_mov_b32 v8, v3
    v_add_u32 v9, 16, v3
    s_mul_i32 s39, s3, {WO_KS*7}
    s_add_u32 s39, s39, {WO}""")
    for c, r in ((0, 35), (1, 37)):
        A(f"""s_lshl_b32 s{r}, s32, 1
        s_add_u32 s{r}, s{r}, {c}
        s_mul_i32 s38, s{r}, 9363
        s_lshr_b32 s38, s38, 16
        s_mul_i32 s38, s38, {98*1024 - 7*WO_NT}
        s_mul_i32 s{r}, s{r}, {WO_NT}
        s_add_u32 s{r}, s{r}, s38
        s_add_u32 s{r}, s{r}, s39""")
    A(f"""v_mov_b32 v11, v6
    v_mov_b32 v12, v6
    s_mov_b32 s36, {WO_KS}
    s_mov_b32 s42, {WO_KS}
    s_branch pr_go""")
    A.label("pr_qkv")
    A(f"""s_mul_i32 s35, s39, {28*1024}
    s_mul_i32 s38, s3, {14*1024}
    s_add_u32 s35, s35, s38
    s_add_u32 s35, s35, {WQKV}
    s_mov_b32 s20, 1024
    s_mov_b32 s24, s4
    s_and_b32 s25, s5, 0xffff
    s_mul_i32 s34, s39, 56
    s_mov_b32 s41, {f2u(QSCALE):#x}
    s_cmp_lt_u32 s39, 16
    s_cbranch_scc1 pr_q
    s_mov_b32 s41, 1.0
    s_mov_b32 s33, 56
    s_mov_b32 s34, 0
    s_mov_b32 s26, {D*DH*2}
    s_mov_b32 s24, s6
    s_and_b32 s25, s7, 0xffff
    s_cmp_eq_u32 s39, 16
    s_cbranch_scc1 pr_q
    s_mov_b32 s24, s8
    s_and_b32 s25, s9, 0xffff
    v_and_b32 v8, 3, v3
    v_lshrrev_b32 v9, 3, v3
    v_lshl_add_u32 v8, v9, 2, v8
    v_bfe_u32 v9, v3, 2, 1
    v_lshl_add_u32 v8, v9, 4, v8
    v_add_u32 v9, 8, v8""")
    A.label("pr_q")
    A(f"""s_mul_i32 s38, s33, 224
    s_mul_i32 s38, s38, s3
    s_add_u32 s34, s34, s38
    v_cmp_gt_u32 vcc, 28, v9
    v_mov_b32 v11, 64
    v_cndmask_b32 v9, v11, v9, vcc""")
    A.label("pr_std")
    A(f"""s_add_u32 s37, s35, 256
    s_mov_b32 s21, s20
    s_branch pr_fin""")
    A.label("pr_wgu")
    A(f"""s_cmp_ge_u32 s38, 14
    s_cbranch_scc1 pr_code
    s_and_b32 s39, s38, 1
    s_cselect_b32 s24, s14, s12
    s_cselect_b32 s25, s15, s13
    s_and_b32 s25, s25, 0xffff
    s_mov_b32 s26, {F*D*2}
    s_mov_b32 s33, 3584
    s_mul_i32 s32, s32, 14
    s_and_b32 s38, s38, 14
    s_add_u32 s32, s32, s38
    s_mul_i32 s34, s3, {224*3584}
    s_lshl_b32 s38, s32, 5
    s_add_u32 s34, s34, s38
    s_lshl_b32 s39, s39, 8
    s_add_u32 s39, s39, {WGU}""")
    for c, r, k in ((0, 35, 20), (1, 37, 21)):
        A(f"""s_add_u32 s40, s32, {c}
        s_mul_i32 s38, s40, 9363
        s_lshr_b32 s38, s38, 16
        s_mul_i32 s{r}, s38, {28*7*1024}
        s_mul_i32 s38, s38, 7
        s_sub_u32 s38, s40, s38
        s_mov_b32 s{k}, {PARTS[0]*1024}
        s_mov_b32 s40, 0""")
        for q_ in range(1, len(PARTS)):
            A(f"""s_cmp_ge_u32 s38, {POFF[q_]}
            s_cselect_b32 s{k}, {PARTS[q_]*1024}, s{k}
            s_cselect_b32 s40, {POFF[q_]*27*1024}, s40""")
        A(f"""s_add_u32 s{r}, s{r}, s40
        s_lshl_b32 s38, s38, 10
        s_add_u32 s{r}, s{r}, s38
        s_mul_i32 s38, s{k}, 14
        s_mul_i32 s38, s38, s3
        s_add_u32 s{r}, s{r}, s38
        s_add_u32 s{r}, s{r}, s39""")
    A.label("pr_fin")
    A(f"""v_mad_u32_u24 v11, v10, s20, v7
    v_mad_u32_u24 v12, v10, s21, v7
    s_lshl_b32 s36, s20, 1
    s_lshl_b32 s42, s21, 1""")
    A.label("pr_go")
    A.fence(2)
    if PS: st(A, "pr_go")
    A(f"""v_mul_lo_u32 v5, v5, s33
    v_lshl_add_u32 v5, v4, 4, v5
    s_lshl_b32 s38, s33, 2
    v_add_u32 v7, s38, v5
    s_lshl_b32 s33, s33, 5
    s_waitcnt vmcnt(0)""")
    if E("PR_LATE", 1):
        A(f"v_mov_b32 v13, {PQ_SYNC + 16}")
        A.label("pr_hold")
        A("""ds_read_b32 v14, v13
        s_waitcnt lgkmcnt(0)
        v_readfirstlane_b32 s40, v14
        s_cmp_lt_u32 s40, 4
        s_cbranch_scc1 pr_hold""")
    if PS: st(A, "pr_t")
    for u in range(7):
        A(f"""buffer_load_dwordx4 v[{LD+8*u}:{LD+8*u+3}], v5, s[24:27], s34 offen{NTP}
        buffer_load_dwordx4 v[{LD+8*u+4}:{LD+8*u+7}], v7, s[24:27], s34 offen{NTP}""")
        if u < 6: A("s_add_u32 s34, s34, s33")
    if PS: st(A, "pr_iss")
    A("v_mov_b32 v15, 0x3f80\n v_lshlrev_b32 v14, 2, v4")
    for c in range(2):
        A(f"""v_and_b32 v13, 1, v{8+c}
        v_lshlrev_b32 v13, 4, v13
        v_lshlrev_b32 v13, v13, v15
        v_lshrrev_b32 v10, 1, v{8+c}
        v_sub_u32 v10, v10, v14""")
        for q_ in range(4): A(f"v_cmp_eq_u32 vcc, {q_}, v10\n v_cndmask_b32 v{BB+4*c+q_}, 0, v13, vcc")
    def mf(dst, u, y, c, cc):
        A(f"v_mfma_f32_16x16x32_bf16 v[{dst}:{dst+3}], v[{LD+8*u+4*y}:{LD+8*u+4*y+3}], v[{BB+4*c}:{BB+4*c+3}], {cc}")
    def tr(u):
        for c in range(2):
            for y in range(2): mf(AC + 16*u + 8*c + 4*y, u, y, c, "0")
    def out(u, fma):
        o = LD + 8 * u
        for c in range(2):
            b = AC + 16 * u + 8 * c
            if fma:
                for r in range(0, 8, 2): A(f"v_pk_fma_f32 v[{b+r}:{b+r+1}], v[{b+r}:{b+r+1}], v[8:9], v[{SM+8+2*c}:{SM+9+2*c}]")
            for q_ in range(4): A(f"v_cvt_pk_bf16_f32 v{o+4*c+q_}, v{b+2*q_}, v{b+2*q_+1}")
            A(f"buffer_store_dwordx4 v[{o+4*c}:{o+4*c+3}], v{11+c}, s[28:31], s{35+2*c} offen{PFS}")
        if u < 6: A("s_add_u32 s35, s35, s36\n s_add_u32 s37, s37, s42")
    A("s_cmp_eq_u32 s43, 1\n s_cbranch_scc1 pr_center")
    for u in range(8):
        if u < 7:
            A(f"s_waitcnt vmcnt({12 - 2*u + 2*max(0, u-1)})")
            if PS and u in (0, 6): st(A, f"pr_l{u}")
            tr(u)
        if u: out(u - 1, False)
    if PS: st(A, "pr_st")
    pflush(A)
    A("s_endpgm")
    A.label("pr_center")
    A.reset_hz()
    for u in range(7):
        A(f"s_waitcnt vmcnt({12 - 2*u})")
        if PS and u in (0, 6): st(A, f"pr_l{u}")
        for y in range(2):
            for c in range(2): mf(SM + 4*c, u, y, c, "0" if u + y == 0 else f"v[{SM+4*c}:{SM+4*c+3}]")
        if u < 6: tr(u)
    tr(6)
    A(f"""v_lshlrev_b32 v14, 3, v3
    v_add_u32 v14, {PQ_PREP}, v14
    v_lshl_add_u32 v15, v4, 7, v14
    s_lshl_b32 s38, s3, 9
    v_add_u32 v15, s38, v15
    v_pk_add_f32 v[{SM}:{SM+1}], v[{SM}:{SM+1}], v[{SM+2}:{SM+3}]
    v_pk_add_f32 v[{SM+4}:{SM+5}], v[{SM+4}:{SM+5}], v[{SM+6}:{SM+7}]
    v_add_f32 v{SM}, v{SM}, v{SM+1}
    v_add_f32 v{SM+1}, v{SM+4}, v{SM+5}
    ds_write_b64 v15, v[{SM}:{SM+1}]""")
    lbar(A, 3, 2)
    for i in range(4): A(f"ds_read2_b64 v[{SM+16+4*i}:{SM+19+4*i}], v14 offset0:{32*i} offset1:{32*i+16}")
    A(f"""v_mov_b32 v8, s41
    v_mov_b32 v9, s41
    v_mul_f32 v10, {f2u(-1.0/448):#x}, v8
    s_waitcnt lgkmcnt(0)""")
    for sz in (8, 4, 2):
        for i in range(0, sz, 2): A(f"v_pk_add_f32 v[{SM+16+i}:{SM+17+i}], v[{SM+16+i}:{SM+17+i}], v[{SM+16+sz+i}:{SM+17+sz+i}]")
    A(f"""v_mul_f32 v{SM+8}, v10, v{SM+16}
    v_mul_f32 v{SM+9}, v10, v{SM+16}
    v_mul_f32 v{SM+10}, v10, v{SM+17}
    v_mul_f32 v{SM+11}, v10, v{SM+17}""")
    for u in range(7): out(u, True)
    if PS: st(A, "pr_st")
    pflush(A)
    A("s_endpgm")
    A.label("pr_flags")
    A(f"""s_sub_u32 s32, s39, 96
    s_lshl_b32 s32, s32, 1
    s_add_u32 s32, s32, s3
    s_lshl_b32 s32, s32, 13
    s_add_u32 s32, s32, {FL}
    s_add_u32 s33, s32, 4096
    v_mov_b32 v16, 0
    v_mov_b32 v17, 0
    v_mov_b32 v18, 0
    v_mov_b32 v19, 0
    buffer_store_dwordx4 v[16:19], v6, s[28:31], s32 offen
    buffer_store_dwordx4 v[16:19], v6, s[28:31], s32 offen offset:1024
    buffer_store_dwordx4 v[16:19], v6, s[28:31], s32 offen offset:2048
    buffer_store_dwordx4 v[16:19], v6, s[28:31], s32 offen offset:3072
    buffer_store_dwordx4 v[16:19], v6, s[28:31], s33 offen
    buffer_store_dwordx4 v[16:19], v6, s[28:31], s33 offen offset:1024
    buffer_store_dwordx4 v[16:19], v6, s[28:31], s33 offen offset:2048
    buffer_store_dwordx4 v[16:19], v6, s[28:31], s33 offen offset:3072
    s_endpgm""")
    A.label("pr_code")
    A.raw("""    s_getpc_b64 s[46:47]
cpf_pc:
    s_add_u32 s46, s46, main0_kernel - cpf_pc
    s_addc_u32 s47, s47, 0""")
    A(f"""s_sub_u32 s33, s38, 14
    s_lshl_b32 s33, s33, 1
    s_add_u32 s33, s33, s3
    s_lshl_b32 s33, s33, 13
    v_lshlrev_b32 v10, 7, v2
    v_add_u32 v10, s33, v10
    v_add_u32 v11, 0x8000, v10""")
    A.raw("""    v_min_u32 v10, code_end - main0_kernel - 4, v10
    v_min_u32 v11, code_end - main0_kernel - 4, v11""")
    A(f"""global_load_dword v16, v10, s[46:47]
    global_load_dword v17, v11, s[46:47]""")
    A.label("pq_end")
    A("s_endpgm")

def k_pq(A):
    name = "pq_kernel"
    kstart(A, name)
    A("s_cmp_ge_u32 s2, 256\n s_cbranch_scc1 pq_end")
    st(A, "start")
    A(f"""s_load_dwordx8 s[4:11], s[0:1], 8
    s_load_dwordx2 s[44:45], s[0:1], 0
    s_load_dwordx2 s[18:19], s[0:1], 88
    s_load_dwordx4 s[12:15], s[0:1], 48
    s_load_dwordx2 s[16:17], s[0:1], 64
    v_lshrrev_b32 v1, 6, v0
    v_and_b32 v2, 63, v0""")
    if E("PQ_CT", 1):
        A.raw("""    s_getpc_b64 s[40:41]
pq_pc:
    v_lshlrev_b32 v11, 7, v0
    v_min_u32 v11, main0_kernel - pq_pc - 4, v11
    global_load_dword v255, v11, s[40:41]""")
    A(f"""v_readfirstlane_b32 s3, v1
    v_mov_b32 v12, 0
    v_mov_b32 v13, 0
    v_mov_b32 v14, 0
    v_mov_b32 v15, 0
    v_mov_b32 v11, {PQ_SYNC}
    ds_write_b128 v11, v[12:15]
    ds_write_b128 v11, v[12:15] offset:16
    s_cmp_lt_u32 s3, 4
    s_cbranch_scc1 pq_qkv
    s_sub_u32 s3, s3, 4
    s_waitcnt lgkmcnt(0)
    s_barrier""")
    if E("PQ_NOPREP", 0): A("s_endpgm")
    prep_roles(A)
    A.label("pq_qkv")
    A.reset_hz()
    XR_, XN, WB, UP, AC = 96, 124, 152, 200, 16
    ROTX = ["s_mov_b32 s41, 0", "s_mov_b32 s41, s2", "s_and_b32 s41, s2, 7", "s_lshr_b32 s41, s2, 3", "s_lshr_b32 s41, s2, 5"][E("PQ_ROT", 1)]
    def adv(r): A(f"s_add_u32 s{r}, s{r}, 1\n s_cmp_eq_u32 s{r}, 7\n s_cselect_b32 s{r}, 0, s{r}")
    A(f"""v_lshlrev_b32 v6, 4, v2
    v_and_b32 v3, 15, v0
    v_bfe_u32 v4, v0, 4, 2
    s_and_b32 s33, s2, 7
    s_lshr_b32 s34, s2, 3
    s_lshl_b32 s33, s33, 3
    s_lshr_b32 s35, s34, 2
    s_add_u32 s33, s33, s35
    s_and_b32 s34, s34, 3
    v_and_b32 v5, 31, v0
    v_mul_u32_u24 v7, 896, v5
    v_bfe_u32 v8, v0, 5, 1
    v_lshl_add_u32 v7, v8, 4, v7
    s_mul_i32 s36, s33, {32*896}
    s_mul_i32 s37, s3, 224
    s_add_u32 s36, s36, s37
    v_lshlrev_b32 v9, 2, v4
    v_sub_u32 v9, v3, v9
    v_and_b32 v9, 15, v9
    v_cmp_gt_u32 vcc, 14, v9
    v_lshlrev_b32 v9, 4, v9
    v_mul_u32_u24 v10, 896, v4
    v_add_u32 v9, v9, v10
    v_mov_b32 v13, 0x7fffff00
    v_cndmask_b32 v254, v13, v9, vcc
    s_mul_i32 s37, s3, {112*896}
    s_mul_i32 s38, s34, 224
    s_add_u32 s37, s37, s38
    s_mul_i32 s38, s3, {28*1024}
    s_mul_i32 s39, s3, {7*1024}
    s_add_u32 s39, s39, {PQ_KV}
    s_mul_i32 s35, s3, {112*56}
    {ROTX}
    s_mul_i32 s42, s41, 9363
    s_lshr_b32 s42, s42, 16
    s_mul_i32 s42, s42, 7
    s_sub_u32 s41, s41, s42
    s_mov_b32 s22, {X_BYTES}
    s_mov_b32 s23, 0x20000
    s_mov_b32 s26, {D*D*2}
    s_mov_b32 s27, 0x20000
    s_mov_b32 s30, {D*DH*2}
    s_mov_b32 s31, 0x20000
    v_bfe_u32 v9, v0, 2, 2
    v_bfe_u32 v10, v0, 1, 1
    v_and_b32 v11, 1, v0
    v_bfe_u32 v12, v0, 4, 1
    v_lshlrev_b32 v13, 3, v10
    v_lshl_add_u32 v14, v11, 4, v13
    v_lshl_add_u32 v14, v12, 5, v14
    v_lshl_add_u32 v15, v11, 5, v13
    v_lshl_add_u32 v15, v12, 4, v15
    v_lshl_add_u32 v13, v8, 3, v9
    s_cmp_eq_u32 s34, 0
    s_cselect_b64 vcc, -1, 0
    v_cndmask_b32 v15, v15, v14, vcc
    v_mul_u32_u24 v10, 56, v13
    v_add3_u32 v15, v15, v10, s39
    v_lshl_add_u32 v14, v9, 6, v14
    v_lshlrev_b32 v13, 8, v13
    v_add_u32 v13, s38, v13""")
    for lt in range(4):
        A(f"""s_xor_b32 s42, s3, {lt}
        s_mul_i32 s42, s42, 56
        v_add_u32 v{9+lt}, s42, v14
        v_and_b32 v{9+lt}, 255, v{9+lt}
        v_add_u32 v{9+lt}, v{9+lt}, v13""")
    A(f"""v_mov_b32 v3, v5
    v_mov_b32 v4, v8
    v_lshlrev_b32 v13, 3, v5
    v_add_u32 v13, {PQ_ST}, v13
    s_lshl_b32 s42, s3, 8
    v_add_u32 v14, s42, v13
    v_mov_b32 v5, v254
    s_waitcnt lgkmcnt(0)
    s_barrier
    s_mov_b32 s20, s44
    s_and_b32 s21, s45, 0xffff
    s_mov_b32 s24, s4
    s_and_b32 s25, s5, 0xffff""")
    stq(A, "pq_ka")
    if E("PQ_TOUCH", 1):
        A(f"""s_lshr_b32 s42, s2, 3
        s_cmp_lt_u32 s3, 2
        s_cbranch_scc1 pq_tq
        s_cmp_eq_u32 s3, 3
        s_cbranch_scc1 pq_tx
        s_mov_b32 s28, s6
        s_and_b32 s29, s7, 0xffff
        s_mul_i32 s42, s42, {7*128}
        v_min_u32 v126, 6, v2
        v_lshlrev_b32 v126, 7, v126
        v_add_u32 v126, s42, v126
        buffer_load_dword v127, v126, s[28:31], 0 offen
        s_mov_b32 s28, s8
        s_and_b32 s29, s9, 0xffff
        buffer_load_dword v126, v126, s[28:31], 0 offen
        s_branch pq_td""")
        A.label("pq_tx")
        A(f"""s_lshl_b32 s42, s33, 2
        s_add_u32 s42, s42, s34
        s_mul_i32 s42, s42, {56*128}
        v_min_u32 v126, 55, v2
        v_lshlrev_b32 v126, 7, v126
        buffer_load_dword v126, v126, s[20:23], s42 offen{NTX}
        s_branch pq_td""")
        A.label("pq_tq")
        A(f"""s_lshl_b32 s42, s42, 1
        s_add_u32 s42, s42, s3
        s_mul_i32 s42, s42, {49*128}
        v_min_u32 v126, 48, v2
        v_lshlrev_b32 v126, 7, v126
        buffer_load_dword v126, v126, s[24:27], s42 offen""")
        A.label("pq_td")
        A("s_waitcnt vmcnt(0)")
        stq(A, "pq_t")
    A("s_mov_b32 s43, s41")
    for u in range(7):
        A(f"s_lshl_b32 s42, s43, 5\n s_add_u32 s42, s42, s36\n buffer_load_dwordx4 v[{XR_+4*u}:{XR_+4*u+3}], v7, s[20:23], s42 offen{NTX}")
        if u < 6: adv(43)
    A("s_mov_b32 s43, s41\n s_mov_b32 s36, s37")
    A(f"""s_cmp_eq_u32 s34, 0
    s_cselect_b32 s28, s6, s8
    s_cselect_b32 s29, s7, s9
    s_and_b32 s29, s29, 0xffff
    s_mov_b32 s8, s18
    s_and_b32 s9, s19, 0xffff
    s_mov_b32 s10, {WS_BYTES}
    s_mov_b32 s11, 0x20000
    s_mov_b32 s18, s33
    s_mov_b32 s19, s34
    s_mov_b32 s20, {ABASE[0]}
    s_mov_b32 s32, {LBASE[0]}
    s_cmp_eq_u32 s34, 0
    s_cbranch_scc1 pq_v1
    s_cmp_eq_u32 s34, 1
    s_cbranch_scc1 pq_v2""")
    def wb(ks, lt): return WB + 20 * (ks & 1) + 4 * lt
    def rdw(ks, lt):
        b = wb(ks, lt)
        if lt < 4: A(f"ds_read_b64_tr_b16 v[{b}:{b+1}], v{9+lt} offset:{4096*ks}\n ds_read_b64_tr_b16 v[{b+2}:{b+3}], v{9+lt} offset:{4096*ks+1024}")
        else: A(f"ds_read_b64_tr_b16 v[{b}:{b+1}], v15 offset:{1024*ks}\n ds_read_b64_tr_b16 v[{b+2}:{b+3}], v15 offset:{1024*ks+224}")
    def variant(kind):
        vm = VM2(A); vm.ops = ["x"] * 7
        NTL = 5 if kind else 4
        dm = []
        def dq(n):
            if n & 3 == 0: A(f"s_mul_i32 s37, s43, {16*896}\n s_add_u32 s37, s37, s36")
            A(f"s_add_u32 m0, s38, {1024*n}")
            vm.issue(f"buffer_load_dwordx4 v5, s[24:27], s37 offen{NTW} lds", f"w{n>>2}")
            if n & 3 == 3: adv(43)
            else: A(f"s_add_u32 s37, s37, {4*896}")
        def dkv(n):
            A(f"s_mul_i32 s42, s43, 896\n s_add_u32 s42, s42, s35\n v_add_u32 v8, s42, v6\n s_add_u32 m0, s39, {1024*n}")
            vm.issue(f"buffer_load_dwordx4 v8, s[28:31], 0 offen{NTW} lds", f"w{n}")
        for ks in range(7):
            if kind: dm.append(lambda ks=ks: dkv(ks))
            dm += [lambda n=n: dq(n) for n in range(4*ks, 4*ks+4)]
        stq(A, "pq_xi")
        for i in range(E("PQ_PRE", 2) * NTL):
            dm.pop(0)()
            if i in (2*NTL-1, 4*NTL-1): stq(A, f"pq_d{(i+1)//NTL}")
        stq(A, "pq_iss")
        vm.wait("x")
        stq(A, "pq_x")
        for i in range(28):
            A(f"v_lshlrev_b32 v{UP+2*i}, 16, v{XR_+i}\n v_and_b32 v{UP+2*i+1}, 0xffff0000, v{XR_+i}")
            c = 4 * (i & 1)
            if i < 2: A(f"v_pk_mul_f32 v[{194+c}:{195+c}], v[{UP+2*i}:{UP+2*i+1}], v[{UP+2*i}:{UP+2*i+1}]")
            else: A(f"v_pk_fma_f32 v[{194+c}:{195+c}], v[{UP+2*i}:{UP+2*i+1}], v[{UP+2*i}:{UP+2*i+1}], v[{194+c}:{195+c}]")
            if i in (2, 3): A(f"v_pk_add_f32 v[{192+c}:{193+c}], v[{UP+2*i}:{UP+2*i+1}], v[{UP+2*i-4}:{UP+2*i-3}]")
            if i > 3: A(f"v_pk_add_f32 v[{192+c}:{193+c}], v[{192+c}:{193+c}], v[{UP+2*i}:{UP+2*i+1}]")
            if dm and i % E("PQ_EV", 2) == 1: dm.pop(0)()
        A(f"""v_pk_add_f32 v[192:193], v[192:193], v[196:197]
        v_pk_add_f32 v[194:195], v[194:195], v[198:199]
        v_add_f32 v192, v192, v193
        v_add_f32 v193, v194, v195
        v_mov_b32 v194, v192
        v_mov_b32 v195, v193
        v_permlane32_swap_b32 v192, v194
        v_permlane32_swap_b32 v193, v195
        v_pk_add_f32 v[192:193], v[192:193], v[194:195]
        ds_write_b64 v14, v[192:193]""")
        if not E("PQ_OVL", 1):
            while dm: dm.pop(0)()
        while dm and vm.ops.count("w1") < NTL: dm.pop(0)()
        def rel():
            if E("PR_LATE", 1): A(f"v_mov_b32 v1, 1\n v_mov_b32 v2, {PQ_SYNC + 16}\n s_mov_b64 exec, 1\n ds_add_u32 v2, v1\n s_mov_b64 exec, -1")
        RELAT = E("PR_REL", 0) * NTL
        released = [False]
        def popd():
            if dm: dm.pop(0)()
            if len(dm) <= RELAT and not released[0]: released[0] = True; return True
            return False
        lbar(A, 0)
        if len(dm) <= RELAT: released[0] = True; rel(); A("s_waitcnt lgkmcnt(0)")
        A(f"""ds_read2_b64 v[192:195], v13 offset0:0 offset1:32
        ds_read2_b64 v[196:199], v13 offset0:64 offset1:96""")
        vm.wait("w0")
        for lt in range(NTL): rdw(0, lt)
        A(f"""s_waitcnt lgkmcnt({2*NTL})
        v_pk_add_f32 v[192:193], v[192:193], v[194:195]
        v_pk_add_f32 v[196:197], v[196:197], v[198:199]
        v_pk_add_f32 v[192:193], v[192:193], v[196:197]
        v_mul_f32 v192, {f2u(1.0/448):#x}, v192
        v_mul_f32 v193, {f2u(1.0/448):#x}, v193
        v_fma_f32 v193, -v192, v192, v193
        v_max_f32 v193, 0, v193
        v_add_f32 v193, {f2u(1e-5):#x}, v193
        v_rsq_f32 v194, v193
        v_mul_f32 v196, -v192, v194
        v_mov_b32 v195, v194
        v_mov_b32 v197, v196""")
        def nrm(ks):
            for i in range(4*ks, 4*ks+4): A(f"v_pk_fma_f32 v[{UP+2*i}:{UP+2*i+1}], v[{UP+2*i}:{UP+2*i+1}], v[194:195], v[196:197]")
            for i in range(4*ks, 4*ks+4): A(f"v_cvt_pk_bf16_f32 v{XN+i}, v{UP+2*i}, v{UP+2*i+1}")
        nrm(0)
        stq(A, "pq_ln")
        for ks in range(7):
            x = f"v[{XN+4*ks}:{XN+4*ks+3}]"
            if ks < 6:
                while vm.ops.count(f"w{ks+1}") < NTL: assert not popd() or True
                vm.wait(f"w{ks+1}")
            for n, lt in enumerate(range(NTL)):
                A(f"s_waitcnt lgkmcnt({2*NTL-2 if ks < 6 else 2*NTL - 2 - 2*lt})")
                b = wb(ks, lt); w = f"v[{b}:{b+3}]"
                acc = f"v[{AC+16*lt}:{AC+16*lt+15}]"
                c = "0" if ks == 0 else acc
                if lt == 4 and kind == 2: A(f"v_mfma_f32_32x32x16_bf16 {acc}, {x}, {w}, {c}")
                else: A(f"v_mfma_f32_32x32x16_bf16 {acc}, {w}, {x}, {c}")
                if ks < 6: rdw(ks + 1, lt)
                if ks < 6 and n == 0: nrm(ks + 1)
                for _ in range(E("PQ_MD", 2)): popd()
            if released[0] == True:
                released[0] = 2
                if E("PR_LATE", 1): rel(); A("s_waitcnt lgkmcnt(0)")
    variant(0)
    A(f"""s_cmp_lg_u32 s19, 3
    s_cbranch_scc1 pq_red
    s_mul_i32 s42, s18, {28*1024}
    s_mul_i32 s43, s3, {7*1024}
    s_add_u32 s42, s42, s43
    s_add_u32 s42, s42, {X0}""")
    for u in range(7):
        A(f"s_lshl_b32 s43, s41, 10\n s_add_u32 s43, s43, s42\n buffer_store_dwordx4 v[{XR_+4*u}:{XR_+4*u+3}], v6, s[8:11], s43 offen" + PFS)
        if u < 6: adv(41)
    A("s_branch pq_red")
    A.label("pq_v1"); A.reset_hz(); variant(1); A("s_branch pq_red")
    A.label("pq_v2"); A.reset_hz(); variant(2)
    A.label("pq_red")
    A.fence(2)
    A("s_mov_b32 s38, 0\n s_mov_b32 s39, 2")
    st(A, "qkv_mm")
    lbar(A, 1)
    qkv_epilogue(A, VM2(A), "pq", True, lambda k: lbar(A, k))
    A("s_endpgm")
    KERNELS.append((name, 256, 384, PQ_LDS, 256, 256))

ALL = [k_pq, k_main]
LAUNCHES = ["pq_kernel", "main0_kernel", "main1_kernel"]
```

```python
import sys, os
os.environ.setdefault("INPLACE", "1")
sys.path.insert(0, "gen")
import gen5
from asm import Asm
A = Asm()
launches = sys.argv[2].split(",") if len(sys.argv) > 2 else None
for f in gen5.ALL: f(A)
if launches is None: launches = gen5.LAUNCHES
open(sys.argv[1], "w").write(gen5.finish(A, launches))
print("nops inserted:", A.nops, "lines:", len(A.lines))
open(sys.argv[1][:-2] + ".names", "w").write(",".join(gen5.SNAMES))
```

```python
import struct, sys, os
from asm import Asm
from layout import *
import gen as G
from gen import f2u, kstart, srd, VM, STAMPS, KERNELS, finish, v_swap23
import gen2
from gen2 import st, SNAMES, k_prep, main_flush, uid, SPIN_LIMIT, BOUND_T

E = lambda k, d: int(os.environ.get(k, str(d)))
EL = lambda k, d: [int(x) for x in os.environ.get(k, d).split(",") if x]
ATT_ST, GU_ST, DN_ST = EL("ATT_ST", "16,32,48"), EL("GU_ST", "1"), EL("DN_ST", "")
_st = st
def st(A, n):
    if E("PQ_ST", 0) and not (n.startswith("p") or n in ("start", "qkv_mm")): return
    if n in os.environ.get("ST_SKIP", "").split(","): return
    _st(A, n)
SC1 = " sc1" if E("LD_SC1", 1) else ""
RING_SLOT = 28 * 1024
EXCH = 4 * RING_SLOT
LDS_TOTAL = 160 * 1024
ORS = 240
WQ_LDS = 61440

PARTS = EL("PARTS", "3,2,2")
POFF = [sum(PARTS[:i]) for i in range(len(PARTS))]
QALIAS = PARTS[-1] == 2 and E("QALIAS", 1)
HSTEP = [(p, i, a) for p in range(len(PARTS)) for i in range(4) for a in range(PARTS[p])]
FL2 = FL + 0x14000
ST2N = FL + 0x28000
XFL = FL + 0x68000
OFL = FL + 0x70000
KN1 = FL + 0x78000
QX = 80 * 1024
def hbase(p): return Q_O if (QALIAS and p == len(PARTS) - 1) else H_O + POFF[p] * 64 * 16 * 1024
QR, OR_, SR, PR, KVR, XR, SP = 16, 48, 112, 144, 160, 224, 240
def q(j, s): return f"v[{QR+8*j+4*s}:{QR+8*j+4*s+3}]"
def sb(t): return SR + 16 * (t & 1)

def store2(A, vm, insts, tag, force=""):
    u = uid[0]; uid[0] += 1
    if force:
        for t in insts: A(t + " " + force)
        vm.ops += [tag] * len(insts)
        return
    A(f"s_cmp_eq_u32 s38, 0\n s_cbranch_scc1 st_slow{u}")
    for t in insts: A(t)
    A(f"s_branch st_done{u}")
    A.label(f"st_slow{u}")
    for t in insts: A(t + " sc1")
    A.label(f"st_done{u}")
    vm.ops += [tag] * len(insts)

def signal(A, vm, ph, tag, idx="s17"):
    u = uid[0]; uid[0] += 1
    vm.wait(tag)
    A(f"""s_barrier
    s_cmp_lg_u32 s3, 0
    s_cbranch_scc1 sig_done{u}
    s_add_u32 s40, s22, {ph * 8 * 128}
    s_lshl_b32 s41, {idx}, 2
    s_add_u32 s40, s40, s41
    v_mov_b32 v1, 1
    v_mov_b32 v2, 0
    s_mov_b64 exec, 1
    s_cmp_eq_u32 s38, 0
    s_cbranch_scc1 sig_slow{u}
    buffer_store_dword v1, v2, s[8:11], s40 offen
    s_branch sig_rest{u}""")
    A.label(f"sig_slow{u}")
    A("buffer_store_dword v1, v2, s[8:11], s40 offen sc1")
    A.label(f"sig_rest{u}")
    A("s_mov_b64 exec, -1")
    A.label(f"sig_done{u}")
    A.fence(1)

def waitflags(A, vm, ph, mask_sgpr):
    u = uid[0]; uid[0] += 1
    A(f"""s_add_u32 s40, s22, {ph * 8 * 128}
    v_lshrrev_b32 v2, 2, v6
    s_mov_b32 exec_lo, s{mask_sgpr}
    s_mov_b32 exec_hi, 0
    s_mov_b32 s41, {SPIN_LIMIT}""")
    A.label(f"poll{u}")
    A(f"""buffer_load_dword v1, v2, s[8:11], s40 offen sc1
    s_sub_u32 s41, s41, 1
    s_cmp_eq_u32 s41, 0
    s_cbranch_scc1 poll_out{u}
    s_waitcnt vmcnt(0)
    v_cmp_ne_u32 vcc, 1, v1
    s_cbranch_vccnz poll{u}""")
    A.label(f"poll_out{u}")
    A("s_waitcnt vmcnt(0)\n s_mov_b64 exec, -1")
    vm.ops = ["drained"]

class VM2(VM):
    def wait(self, *tags):
        idx = [i for i, t in enumerate(self.ops) if t in tags]
        if not idx: return
        n = len(self.ops) - 1 - max(idx)
        self.A(f"s_waitcnt vmcnt({min(n, 63)})")

def k_main(A):
    name = "main0_kernel"
    kstart(A, name)
    KERNELS.append((name, 256, 256, LDS_TOTAL, 512, 256))
    A(f"""s_cmp_ge_u32 s2, 256
    s_cbranch_scc1 main_end
    s_load_dwordx2 s[6:7], s[0:1], 88
    s_load_dwordx2 s[4:5], s[0:1], 72""")
    st(A, "start")
    A(f"""s_mov_b32 s39, 0
    s_mov_b32 s20, {ABASE[0]}
    s_mov_b32 s28, {LBASE[0] + KV_O}
    s_mov_b32 s21, {X0}
    s_mov_b32 s40, {LBASE[0] + KN_O}
    v_lshrrev_b32 v1, 6, v0
    v_and_b32 v2, 63, v0
    v_lshlrev_b32 v6, 4, v2
    v_readfirstlane_b32 s3, v1
    s_and_b32 s16, s2, 7
    s_lshr_b32 s17, s2, 3
    s_lshl_b32 s18, s16, 3
    s_lshr_b32 s42, s17, 2
    s_add_u32 s18, s18, s42
    s_and_b32 s19, s17, 3
    s_mov_b32 s38, 0
    s_mov_b32 s10, {WS_BYTES}
    s_mov_b32 s11, 0x20000
    s_mov_b32 s14, {X_BYTES}
    s_mov_b32 s15, 0x20000
    s_mul_i32 s26, s3, {7*1024}""")
    vm = VM2(A)
    wd = WdPrefetch(A, vm)
    phase_att(A, vm, wd)
    phase_ffn(A, vm, wd)
    WD_.append(wd)
    phase_qkv(A)
    A.label("main_end")
    A("s_endpgm")
    for f in COLD: f()
    att_fallback(A)

def wflag(A, vm, tag, addr, vone, vzero):
    u = uid[0]; uid[0] += 1
    vm.wait(tag)
    A(f"""s_mov_b64 exec, 1
    s_cmp_eq_u32 s38, 0
    s_cbranch_scc1 wf_slow{u}
    buffer_store_dword {vone}, {vzero}, s[8:11], {addr} offen""")
    A.label(f"wf_done{u}")
    A("s_mov_b64 exec, -1")
    vm.ops.append("flag")
    def cold():
        A.label(f"wf_slow{u}")
        A(f"buffer_store_dword {vone}, {vzero}, s[8:11], {addr} offen sc1\n s_branch wf_done{u}")
    COLD.append(cold)

def pollw(A, vm, addr, mask):
    u = uid[0]; uid[0] += 1
    A(f"""v_lshrrev_b32 v2, 2, v6
    s_mov_b64 exec, {mask:#x}
    s_mov_b32 s45, {SPIN_LIMIT}""")
    A.label(f"poll{u}")
    A(f"""buffer_load_dword v1, v2, s[8:11], {addr} offen sc1
    s_sub_u32 s45, s45, 1
    s_cmp_eq_u32 s45, 0
    s_cbranch_scc1 poll_out{u}
    s_waitcnt vmcnt(0)
    v_cmp_ne_u32 vcc, 1, v1
    s_cbranch_vccnz poll{u}""")
    A.label(f"poll_out{u}")
    A("s_waitcnt vmcnt(0)\n s_mov_b64 exec, -1")
    vm.ops = ["drained"]

COLD = []
WD_ = []
FFN_STATE = {}
def srd_fin(A):
    A("""s_waitcnt lgkmcnt(0)
    s_mov_b32 s8, s6
    s_and_b32 s9, s7, 0xffff
    s_mov_b32 s12, s4
    s_and_b32 s13, s5, 0xffff
    s_mov_b32 s4, s8
    s_mov_b32 s5, s9
    s_mov_b32 s6, s10
    s_mov_b32 s7, 0x20000""")

class WdPrefetch:
    def __init__(self, A, vm): self.A, self.vm, self.i, self.ar = A, vm, 0, 238
    def setup(self):
        self.A(f"""s_lshr_b32 s42, s17, 2
        s_min_u32 s42, s42, 6
        s_mul_i32 s35, s42, {112*2*1024}
        s_mul_i32 s43, s3, {28*2*1024}
        s_add_u32 s35, s35, s43
        s_add_u32 s35, s35, {WD}
        s_and_b32 s43, s3, 1
        s_lshl_b32 s43, s43, 10
        v_add_u32 v238, s43, v6
        v_xor_b32 v239, 1024, v238""")
    def dst(self, i): return f"a[{64+4*i}:{67+4*i}]" if i < 48 else f"v[{208+4*(i-48)}:{211+4*(i-48)}]"
    def one(self):
        i = self.i; self.i += 1
        n, a = i >> 1, i & 1
        p, fi, ta = HSTEP[n]
        self.A(f"s_add_u32 s33, s35, {2048 * (fi * 7 + POFF[p] + ta)}")
        self.vm.issue(f"buffer_load_dwordx4 {self.dst(i)}, v{self.ar+a}, s[8:11], s33 offen", "wd")

def dma_piece(A, vm, p, i, always=False):
    sl = (p % 5) * RING_SLOT
    if i == 0 or (always and i < 4): A(f"s_add_u32 m0, s26, {sl}")
    if i == 4: A(f"s_add_u32 s25, s25, 4096")
    if i == 4 or (always and i > 4): A(f"s_add_u32 m0, s26, {sl + 4096}")
    vm.issue(f"buffer_load_dwordx4 v6, s[8:11], s25 offen offset:{1024*(i&3)} lds", f"w{p}")
    if i == 6: A(f"s_add_u32 s25, s25, {RING_SLOT - 4096}")

PLK, PLV, QM, PT = 232, 233, 234, 235
NEXT1 = """s_add_u32 s23, s29, 8
    s_and_b32 s23, s23, 63
    s_lshl_b32 s23, s23, 12
    s_add_u32 s23, s23, s28"""
def kv(kt, i): b = KVR + 16 * (kt & 3) + 4 * i; return f"v[{b}:{b+3}]"
def kvload(A, vm, kt, i):
    vm.issue(f"buffer_load_dwordx4 {kv(kt, i)}, v6, s[8:11], s23 offen offset:{1024*i}", f"kv{kt}" if i < 2 else f"vv{kt}")
    if i == 3: A("s_add_u32 s23, s23, 4096")
def poll_n(A, vm, n):
    A(f"""s_add_u32 s30, s29, {8*n}
    s_and_b32 s30, s30, 63
    s_lshl_b32 s31, s30, 7
    s_add_u32 s31, s31, s40
    s_lshl_b32 s30, s30, 12
    s_add_u32 s30, s30, s28""")
    vm.issue(f"buffer_load_dword v{PLK}, v8, s[8:11], s31 offen sc1", "poll")
def spin(A, tag, addr):
    u = uid[0]; uid[0] += 1
    def cold():
        A.label(f"{tag}_slow{u}")
        A.reset_hz()
        A(f"s_mov_b32 s33, {SPIN_LIMIT}")
        A.label(f"{tag}_loop{u}")
        A(f"""buffer_load_dword v{PLK}, {addr} offen sc1
        s_sub_u32 s33, s33, 1
        s_cmp_eq_u32 s33, 0
        s_cbranch_scc1 {tag}_back{u}
        s_waitcnt vmcnt(0)
        v_cmp_eq_u32 vcc, 0, v{PLK}
        s_cbranch_vccnz {tag}_loop{u}
        s_branch {tag}_back{u}""")
    COLD.append(cold)
    return f"v_cmp_eq_u32 vcc, 0, v{PLK}\n s_cbranch_vccnz {tag}_slow{u}\n {tag}_back{u}:"
def pick_ops(A): return [spin(A, "pk", "v8, s[8:11], s31"), "s_mov_b32 s23, s30"]
def att_setup1(A):
    A(f"""s_lshl_b32 s29, s16, 3
    s_lshl_b32 s42, s3, 1
    s_add_u32 s29, s29, s42
    v_bfe_u32 v8, v0, 1, 1
    v_and_b32 v13, 1, v0
    v_lshlrev_b32 v8, 7, v8
    v_lshl_add_u32 v8, v13, 2, v8
    v_lshlrev_b32 v7, 3, v6""")
def att_setup2(A, wd):
    A(f"""s_getreg_b32 s37, hwreg(HW_REG_XCC_ID)
    s_and_b32 s37, s37, 15
    s_add_u32 s37, s37, 1
    s_lshl_b32 s36, s16, 12
    s_add_u32 s36, s36, {XT_BASE}
    s_lshl_b32 s32, s19, 2
    s_add_u32 s32, s32, s3
    s_min_u32 s42, s32, 13
    s_lshl_b32 s24, s42, 15
    s_add_u32 s24, s24, {WO}
    s_mul_i32 s34, s18, {28*1024}
    s_lshl_b32 s42, s42, 11
    s_add_u32 s34, s34, s42
    v_and_b32 v3, 31, v0
    v_bfe_u32 v4, v0, 5, 1""")
    wd.setup()
KMAX = f"""v_max_u32_dpp v{PLK}, v{PLK}, v{PLK} row_shr:1 row_mask:0xf bank_mask:0xf
    v_max_u32_dpp v{PLK}, v{PLK}, v{PLK} row_shr:2 row_mask:0xf bank_mask:0xf
    v_max_u32_dpp v{PLK}, v{PLK}, v{PLK} row_shr:4 row_mask:0xf bank_mask:0xf
    v_max_u32_dpp v{PLK}, v{PLK}, v{PLK} row_shr:8 row_mask:0xf bank_mask:0xf
    v_readlane_b32 s42, v{PLK}, 15
    v_readlane_b32 s43, v{PLK}, 31
    v_readlane_b32 s44, v{PLK}, 47
    v_readlane_b32 s45, v{PLK}, 63
    s_max_u32 s42, s42, s43
    s_max_u32 s44, s44, s45"""

def phase_att(A, vm, wd):
    def o(j): return f"v[{OR_+16*j}:{OR_+16*j+15}]"
    def pb(t): return PR + 8 * (t & 1)
    def cvt(dst, src): A(f"v_cvt_pk_bf16_f32 v{dst}, v{src}, v{src+1}")
    att_setup1(A)
    A(f"""s_lshl_b32 s23, s29, 12
    s_add_u32 s23, s23, s28
    s_lshl_b32 s33, s18, 15
    s_lshl_b32 s42, s19, 13
    s_add_u32 s33, s33, s42
    s_add_u32 s33, s33, s20
    v_lshrrev_b32 v9, 2, v6
    v_add_u32 v9, 0x2000, v9""")
    for j in range(4):
        A(f"s_xor_b32 s{42+j}, s3, {3-j}\n s_lshl_b32 s{42+j}, s{42+j}, 11\n s_add_u32 s{42+j}, s33, s{42+j}")
    srd_fin(A)
    kvload(A, vm, 0, 0); kvload(A, vm, 0, 1)
    vm.issue(f"buffer_load_dword v{PLK}, v9, s[8:11], s40 offen", "kn")
    for s_ in (1, 0):
        for j in range(4): vm.issue(f"buffer_load_dwordx4 {q(j, s_)}, v6, s[8:11], s{42+j} offen offset:{1024*s_}", "q")
    kvload(A, vm, 0, 2); kvload(A, vm, 0, 3)
    for i in range(4): kvload(A, vm, 1, i)
    att_setup2(A, wd)
    A(f"""s_lshl_b32 s42, s17, 7
    s_add_u32 s42, s42, s36
    v_mov_b32 v1, s37
    v_mov_b32 v2, 0
    s_cmp_eq_u32 s3, 0
    s_cselect_b32 exec_lo, 1, 0
    s_mov_b32 exec_hi, 0""")
    vm.issue("buffer_store_dword v1, v2, s[8:11], s42 offen sc1", "xcc")
    A("s_mov_b64 exec, -1")
    st(A, "pro")
    vm.wait("kn")
    A(KMAX)
    A(f"s_max_u32 s22, s42, s44\n {NEXT1}")
    vm.wait("q")
    A.label("att_go")
    A.reset_hz()
    vm.ops = ["kv0", "kv0", "vv0", "vv0", "kv1", "kv1", "vv1", "vv1"]
    A(f"v_mov_b32 v{QM}, 0\n s_mov_b32 exec_lo, 0")
    for j in range(4): A(f"v_lshlrev_b32 v{12+j}, 16, v{QR+8*j+6}")
    A(f"v_max3_f32 v{QM}, v12, v13, v14\n v_max_f32 v{QM}, v{QM}, v15")
    for j in range(4): A(f"v_mul_f32 v{12+j}, s22, v{12+j}")
    for j in range(4): A(f"v_cvt_pk_bf16_f32 v{QR+8*j+6}, -v{12+j}, 0")
    A("s_mov_b32 exec_lo, -1")
    A.label("attn_main")
    A.reset_hz()
    st(A, "bnd")
    for i in range(4): kvload(A, vm, 2, i)
    poll_n(A, vm, 2)
    A(f"""s_and_b32 s42, s17, 15
    s_mul_i32 s25, s42, {28*7*1024}
    s_add_u32 s25, s25, s26
    s_add_u32 s25, s25, {WGU}""")
    vm.wait("kv0")
    A(f"v_mfma_f32_32x32x16_bf16 v[{sb(0)}:{sb(0)+15}], {kv(0,0)}, {q(0,0)}, 0")
    A(f"v_mfma_f32_32x32x16_bf16 v[{sb(0)}:{sb(0)+15}], {kv(0,1)}, {q(0,1)}, v[{sb(0)}:{sb(0)+15}]")
    vm.wait("vv0")
    wo_dst = {}; wo_next = [0]
    def woload(dst):
        idx = wo_next[0]; wo_next[0] += 1
        wo_dst[idx] = dst
        if idx & 7 == 0: A(f"s_xor_b32 s27, s19, {idx >> 3}\n s_lshl_b32 s27, s27, 13\n s_add_u32 s27, s27, s24")
        if idx & 7 == 4: A("s_add_u32 s27, s27, 4096")
        vm.issue(f"buffer_load_dwordx4 {dst}, v6, s[8:11], s27 offen offset:{1024*(idx & 3)}", f"wo{idx}")
    def xres():
        A("s_add_u32 s33, s34, s21")
        for c in range(2): vm.issue(f"buffer_load_dwordx4 v[{XR+4*c}:{XR+4*c+3}], v6, s[8:11], s33 offen offset:{1024*c} sc1", "x")
    def stouch():
        A(f"""s_min_u32 s33, s32, 13
        s_lshr_b32 s33, s33, 1
        s_lshl_b32 s33, s33, 9
        v_and_b32 v12, 3, v0
        v_lshlrev_b32 v12, 7, v12
        v_add_u32 v12, s33, v12
        s_lshl_b32 s33, s18, 12
        s_add_u32 s33, s33, {ST2N}""")
        vm.issue("buffer_load_dword v13, v12, s[8:11], s33 offen", "touch")
    wol = [lambda d=d: woload(d) for d in [f"a[{4*i}:{4*i+3}]" for i in range(16)] + [f"v[{SP+4*i}:{SP+4*i+3}]" for i in range(4)]]
    NDMA = E("ATT_DMA", 4)
    dm = [lambda p=p, i=i: dma_piece(A, vm, p, i) for p in range(NDMA) for i in range(7)]
    wdl = [wd.one] * E("ATT_WD", 16)
    misc = [xres] + ([stouch] if E("ST_TOUCH", 1) else [])
    order = os.environ.get("ATT_ORD", "mix")
    if order == "mix":
        lists = [l for l in (dm, wol, wdl) if l]
        keyed = sorted([((i + 0.5) / len(l), k, f) for k, l in enumerate(lists) for i, f in enumerate(l)], key=lambda x: x[:2])
        extra = [f for _, _, f in keyed]
        extra = extra[:len(extra)//2] + misc + extra[len(extra)//2:]
    else:
        extra = sum([{"d": dm, "o": wol, "w": wdl, "m": misc}[c] for c in order], [])
    NT = 64
    START, STOP = E("ATT_XSTART", 4), E("ATT_XSTOP", 62)
    slots = {}
    for i, f in enumerate(extra): slots.setdefault(START + (i * (STOP - START)) // len(extra), []).append(f)
    def exps(base):
        for r in range(4): A(f"v_exp_f32 v{base+r}, v{base+r}")
    side = []
    def sd(n):
        for _ in range(n):
            if side:
                t_ = side.pop(0)
                t_() if callable(t_) else A(t_)
    FC = E("ATT_FC", 52)
    def owr(j, rq):
        r = OR_ + 16*j + 4*rq
        A(f"ds_write_b128 v{12+j}, v[{r}:{r+3}] offset:{j*4096 + rq*1024}")
    for t in range(NT):
        kt, j = t >> 2, t & 3
        t1 = t + 1; kt1, j1 = t1 >> 2, t1 & 3
        tm = t - 1; ktm, jm = (tm >> 2), tm & 3
        S, Sn, Sp, P, Pp = sb(t), sb(t1), sb(tm), pb(t), pb(tm)
        if j == 3 and kt < 15: vm.wait(f"kv{kt+1}", f"vv{kt+1}")
        if t in ATT_ST: st(A, f"att{t}")
        if t: cvt(Pp+6, Sp+12); cvt(Pp+7, Sp+14)
        if t1 < NT: A(f"v_mfma_f32_32x32x16_bf16 v[{Sn}:{Sn+15}], {kv(kt1,0)}, {q(j1,0)}, 0")
        assert not (side and j == 0 and kt < 13)
        if kt + 3 < 16: kvload(A, vm, kt + 3, j)
        else: woload(kv(kt + 3, j))
        if j == 3 and kt % 2 == 0 and kt < 12: side += [lambda: vm.wait("poll")] + pick_ops(A)
        if j == 0 and kt % 2 == 1 and kt < 11: poll_n(A, vm, (kt + 5) // 2)
        if t == 44: vm.issue(f"buffer_load_dword v{PLK}, v7, s[8:11], s40 offen sc1", "poll")
        if t == FC:
            side += [lambda: vm.wait("poll"), spin(A, "fc", "v7, s[8:11], s40")] + KMAX.split("\n")
            side += ["s_max_u32 s42, s42, s44", "s_max_u32 s42, s42, s22", f"v_mul_legacy_f32 v{PT}, s42, v{QM}",
                     f"v_cmp_nge_f32 vcc, {f2u(BOUND_T):#x}, v{PT}\n s_cbranch_vccnz attn_fallback"]
        if t == 60:
            for j_ in range(3): side.append(f"s_xor_b32 s42, s3, {3-j_}\n s_mul_i32 s42, s42, 12288\n s_add_u32 s42, s42, {EXCH}\n v_add_u32 v{12+j_}, s42, v6")
        SG = 3 if t < FC else 1
        exps(S)
        sd(SG)
        cvt(P+0, S+0); cvt(P+1, S+2)
        if t1 < NT: A(f"v_mfma_f32_32x32x16_bf16 v[{Sn}:{Sn+15}], {kv(kt1,1)}, {q(j1,1)}, v[{Sn}:{Sn+15}]")
        if t >= 62: owr(t - 62, 0)
        exps(S+4)
        sd(SG)
        cvt(P+2, S+4); cvt(P+3, S+6)
        if t: A(f"v_mfma_f32_32x32x16_bf16 {o(jm)}, {kv(ktm,3)}, v[{Pp+4}:{Pp+7}], {o(jm)}")
        if t >= 62: owr(t - 62, 1)
        for f in slots.pop(t, []): f()
        exps(S+8)
        sd(SG)
        cvt(P+4, S+8); cvt(P+5, S+10)
        A(f"v_mfma_f32_32x32x16_bf16 {o(j)}, {kv(kt,2)}, v[{P}:{P+3}], {'0' if t < 4 else o(j)}")
        if t >= 62: owr(t - 62, 2)
        exps(S+12)
        sd(SG)
        if t >= 62: owr(t - 62, 3)
    assert not slots and not side and wo_next[0] == 32
    t = NT - 1
    cvt(pb(t)+6, sb(t)+12); cvt(pb(t)+7, sb(t)+14)
    A(f"v_mfma_f32_32x32x16_bf16 {o(3)}, {kv(15,3)}, v[{pb(t)+4}:{pb(t)+7}], {o(3)}")
    st(A, "loop")
    for rq in range(4): owr(2, rq)
    A("v_lshlrev_b32 v9, 7, v3")
    vm.issue("buffer_load_dword v9, v9, s[8:11], s36 offen sc1", "tab")
    for p_ in range(NDMA, 4):
        for i in range(7): dma_piece(A, vm, p_, i)
    OWN, OP, X1, ACC, BR = OR_ + 48, OR_, OR_ + 8, PR, SR
    A(f"""s_mul_i32 s27, s3, 12288
    s_add_u32 s27, s27, {EXCH}
    v_add_u32 v12, s27, v6
    v_add_u32 v14, {EXCH}, v6
    s_lshl_b32 s23, s18, 15
    s_lshl_b32 s42, s3, 11
    s_add_u32 s23, s23, s42
    s_add_u32 s23, s23, s20
    s_lshl_b32 s42, s19, 13
    s_add_u32 s28, s23, s42
    s_lshl_b32 s29, s39, 6
    s_add_u32 s29, s29, s18
    s_lshl_b32 s29, s29, 7
    s_lshl_b32 s42, s3, 4
    s_add_u32 s29, s29, s42
    s_add_u32 s29, s29, {OFL}
    s_lshl_b32 s42, s19, 2
    s_add_u32 s30, s29, s42
    v_mov_b32 v10, 1
    v_mov_b32 v11, 0
    s_waitcnt lgkmcnt(0)
    s_barrier""")
    for i in range(3):
        for rq in range(4):
            r = OR_ + 16*i + 4*rq
            A(f"ds_read_b128 v[{r}:{r+3}], v12 offset:{i*4096 + rq*1024}")
    vm.wait("tab")
    A(f"""s_mov_b32 exec_hi, 0
    v_cmp_ne_u32 vcc, s37, v9
    s_mov_b32 exec_hi, -1
    s_cmp_eq_u32 vcc_lo, 0
    s_cselect_b32 s38, 1, 0""")
    for i in range(3):
        A(f"s_waitcnt lgkmcnt({8 - 4*i})")
        for r in range(0, 16, 2): A(f"v_pk_add_f32 v[{OWN+r}:{OWN+r+1}], v[{OWN+r}:{OWN+r+1}], v[{OR_+16*i+r}:{OR_+16*i+r+1}]")
    A(f"""v_mov_b32 v{SR}, v{OWN+12}
    v_mov_b32 v{SR+1}, v{OWN+12}
    v_permlane32_swap_b32 v{SR}, v{SR+1}
    v_rcp_f32 v{SR+1}, v{SR+1}""")
    for r in range(0, 16, 2): A(f"v_pk_mul_f32 v[{OWN+r}:{OWN+r+1}], v[{OWN+r}:{OWN+r+1}], v[{SR}:{SR+1}] op_sel:[0,1] op_sel_hi:[1,1]")
    for p in range(8): cvt(OP+p, OWN+2*p)
    store2(A, vm, [f"buffer_store_dwordx4 v[{OP+4*c}:{OP+4*c+3}], v6, s[8:11], s28 offen offset:{1024*c}" for c in range(2)], "o")
    A(f"""ds_write_b128 v12, v[{OP}:{OP+3}]
    ds_write_b128 v12, v[{OP+4}:{OP+7}] offset:1024
    s_waitcnt lgkmcnt(0)
    s_barrier""")
    st(A, "exch")
    def br(i): b = BR + 4 * (i & 7); return f"v[{b}:{b+3}]"
    def brd(i):
        x, w_, c = i >> 3, (i >> 1) & 3, i & 1
        A(f"ds_read_b128 {br(i)}, v14 offset:{w_*12288 + (2*x+c)*1024}")
    acc = f"v[{ACC}:{ACC+15}]"
    def omm(i): A(f"v_mfma_f32_32x32x16_bf16 {acc}, {wo_dst[i]}, {br(i)}, {'0' if i == 0 else acc}")
    for i in range(8): brd(i)
    for p in range(8): A(f"v_lshlrev_b32 v{X1+2*p}, 16, v{XR+p}\n v_and_b32 v{X1+2*p+1}, 0xffff0000, v{XR+p}")
    OF = E("OP_FLAG", 3)
    for i in range(8):
        A(f"s_waitcnt lgkmcnt({7-i})")
        omm(i)
        if i == OF: wflag(A, vm, "o", "s30", "v10", "v11")
    for x in range(1, 4): A(f"s_xor_b32 s{41+x}, s19, {x}\n s_lshl_b32 s{41+x}, s{41+x}, 13\n s_add_u32 s{41+x}, s{41+x}, s23")
    st(A, "op_w")
    A("s_mov_b32 s31, s44")
    pollw(A, vm, "s29", 0xf)
    st(A, "op_go")
    for x in range(1, 4):
        A(f"s_add_u32 m0, s27, {2048*x}")
        for c in range(2): vm.issue(f"buffer_load_dwordx4 v6, s[8:11], s{(42, 43, 31)[x-1]} offen offset:{1024*c} sc1 lds", f"of{x}")
    A(f"""s_lshl_b32 s29, s39, 7
    s_add_u32 s29, s29, s18
    s_lshl_b32 s29, s29, 7
    s_lshl_b32 s42, s32, 2
    s_add_u32 s29, s29, s42
    s_add_u32 s29, s29, {XFL}
    s_add_u32 s28, s34, s20
    s_add_u32 s28, s28, {X1_O}
    s_lshl_b32 s30, s18, 12
    s_lshr_b32 s42, s32, 1
    s_lshl_b32 s42, s42, 9
    s_add_u32 s30, s30, s42
    s_and_b32 s42, s32, 1
    s_lshl_b32 s42, s42, 3
    s_add_u32 s30, s30, s42
    s_add_u32 s30, s30, {ST2N}
    v_lshlrev_b32 v13, 4, v3""")
    BL = E("OP_LEAD", 6)
    nr = 8
    def more(upto):
        nonlocal nr
        while nr < min(upto, 32):
            if nr & 7 == 0: vm.wait(f"of{nr >> 3}"); A("s_barrier")
            brd(nr); nr += 1
    more(8 + BL)
    P4M = E("P4_MODE", 1)
    for i in range(8, 32):
        A(f"s_waitcnt lgkmcnt({nr - 1 - i})")
        omm(i)
        more(i + 1 + BL + 1 if i + 1 + BL + 1 <= i + 8 else i + 8)
        if wd.i < E("OPROJ_WD", 0): wd.one()
    st(A, "oproj")
    A("s_barrier\n v_mov_b32 v248, v238\n v_mov_b32 v249, v239\n s_cmp_ge_u32 s32, 14\n s_cbranch_scc1 op_skip")
    wd.ar = 248
    for r in range(0, 16, 2): A(f"v_pk_add_f32 v[{X1+r}:{X1+r+1}], v[{X1+r}:{X1+r+1}], v[{ACC+r}:{ACC+r+1}]")
    for p in range(8): cvt(OP+p, X1+2*p)
    store2(A, vm, [f"buffer_store_dwordx4 v[{OP+4*c}:{OP+4*c+3}], v6, s[8:11], s28 offen offset:{1024*c}" for c in range(2)], "st")
    rowstats(A, X1, SR)
    A("s_mov_b32 exec_hi, 0")
    store2(A, vm, [f"buffer_store_dwordx2 v[{SR}:{SR+1}], v13, s[8:11], s30 offen"], "st")
    A("s_mov_b32 exec_hi, -1")
    if P4M == 2:
        for i in range(7): dma_piece(A, vm, 4, i)
    wflag(A, vm, "st", "s29", "v10", "v11")
    if P4M == 2:
        def cold():
            A.label("op_skip")
            for i in range(7): dma_piece(A, VM2(A), 4, i)
            A("s_branch op_done")
        COLD.append(cold)
        A.label("op_done")
    else: A.label("op_skip")
    A.reset_hz()
    A.fence(2)
    if P4M == 0:
        for i in range(7): dma_piece(A, vm, 4, i)

def rowstats(A, X, T):
    A(f"""v_pk_add_f32 v[{T}:{T+1}], v[{X}:{X+1}], v[{X+2}:{X+3}]
    v_pk_mul_f32 v[{T+2}:{T+3}], v[{X}:{X+1}], v[{X}:{X+1}]
    v_pk_add_f32 v[{T+4}:{T+5}], v[{X+4}:{X+5}], v[{X+6}:{X+7}]
    v_pk_mul_f32 v[{T+6}:{T+7}], v[{X+2}:{X+3}], v[{X+2}:{X+3}]""")
    for p in range(2, 8):
        c = 4 * (p & 1)
        if p >= 4: A(f"v_pk_add_f32 v[{T+c}:{T+c+1}], v[{T+c}:{T+c+1}], v[{X+2*p}:{X+2*p+1}]")
        A(f"v_pk_fma_f32 v[{T+2+c}:{T+3+c}], v[{X+2*p}:{X+2*p+1}], v[{X+2*p}:{X+2*p+1}], v[{T+2+c}:{T+3+c}]")
    A(f"""v_pk_add_f32 v[{T}:{T+1}], v[{T}:{T+1}], v[{T+4}:{T+5}]
    v_pk_add_f32 v[{T+2}:{T+3}], v[{T+2}:{T+3}], v[{T+6}:{T+7}]
    v_add_f32 v{T}, v{T}, v{T+1}
    v_add_f32 v{T+1}, v{T+2}, v{T+3}
    v_mov_b32 v{T+2}, v{T}
    v_mov_b32 v{T+3}, v{T+1}
    v_permlane32_swap_b32 v{T}, v{T+2}
    v_permlane32_swap_b32 v{T+1}, v{T+3}
    v_pk_add_f32 v[{T}:{T+1}], v[{T}:{T+1}], v[{T+2}:{T+3}]""")

def att_fallback(A):
    LDS_MX = EXCH
    A.label("attn_fallback")
    A.reset_hz()
    A("s_waitcnt vmcnt(0) lgkmcnt(0)")
    A.fence(16); A.fence(8)
    FK = SP + 4
    A("s_mov_b32 exec_lo, 0")
    for j in range(4): A(f"v_mov_b32 v{QR+8*j+6}, 0\n v_mov_b32 v{QR+8*j+7}, 0")
    A("s_mov_b32 exec_lo, -1")
    for j in range(4): A(f"v_mov_b32 v{12+j}, 0xff800000")
    A("s_lshl_b32 s33, s3, 13\n s_add_u32 s33, s33, s28\n s_mov_b32 s44, 16")
    A.label("attn_fb_loop")
    A(f"""buffer_load_dwordx4 v[{FK}:{FK+3}], v6, s[8:11], s33 offen
    buffer_load_dwordx4 v[{FK+4}:{FK+7}], v6, s[8:11], s33 offen offset:1024
    s_bitcmp1_b32 s44, 0
    s_cselect_b32 s42, {6*4096}, 0
    s_add_u32 s33, s33, s42
    s_add_u32 s33, s33, 4096
    s_waitcnt vmcnt(0)""")
    for j in range(4):
        S = sb(0)
        A(f"v_mfma_f32_32x32x16_bf16 v[{S}:{S+15}], v[{FK}:{FK+3}], {q(j,0)}, 0")
        A(f"v_mfma_f32_32x32x16_bf16 v[{S}:{S+15}], v[{FK+4}:{FK+7}], {q(j,1)}, v[{S}:{S+15}]")
        for r in range(0, 16, 2): A(f"v_max3_f32 v{12+j}, v{S+r}, v{S+r+1}, v{12+j}")
    A("""s_sub_u32 s44, s44, 1
    s_cmp_lg_u32 s44, 0
    s_cbranch_scc1 attn_fb_loop""")
    A.fence(8)
    for j in range(4): A(f"v_mov_b32 v{SP+j}, v{12+j}")
    for j in range(4): A(f"v_permlane32_swap_b32 v{12+j}, v{SP+j}")
    for j in range(4): A(f"v_max_f32 v{12+j}, v{12+j}, v{SP+j}")
    A(f"v_and_b32 v{SP}, 31, v0\n v_lshlrev_b32 v{SP}, 2, v{SP}\n v_add_u32 v{SP}, {LDS_MX}, v{SP}")
    for jl in range(4):
        A(f"""s_xor_b32 s42, s3, {3-jl}
        s_lshl_b32 s42, s42, 7
        v_add_u32 v{SP+4+jl}, s42, v{SP}
        s_lshl_b32 s42, s3, 9
        v_add_u32 v{SP+1}, s42, v{SP+4+jl}
        ds_write_b32 v{SP+1}, v{12+jl}""")
    A("s_waitcnt lgkmcnt(0)\n s_barrier")
    for jl in range(4):
        for w in range(4): A(f"ds_read_b32 v{SP+8+w}, v{SP+4+jl} offset:{512*w}")
        A(f"""s_waitcnt lgkmcnt(0)
        v_max3_f32 v{12+jl}, v{SP+8}, v{SP+9}, v{SP+10}
        v_max_f32 v{12+jl}, v{12+jl}, v{SP+11}""")
    A("s_barrier\n s_mov_b32 exec_lo, 0")
    for j in range(4):
        m = 12 + j
        A(f"""v_sub_f32 v{m}, 0, v{m}
        v_and_b32 v{SP}, 0xffff0000, v{m}
        v_sub_f32 v{m}, v{m}, v{SP}
        v_and_b32 v{SP+1}, 0xffff0000, v{m}
        v_sub_f32 v{m}, v{m}, v{SP+1}
        v_lshrrev_b32 v{SP}, 16, v{SP}
        v_or_b32 v{QR+8*j+6}, v{SP}, v{SP+1}
        v_lshrrev_b32 v{QR+8*j+7}, 16, v{m}""")
    A(f"""s_mov_b32 exec_lo, -1
    v_mov_b32 v{QM}, 0
    s_mov_b32 s22, 0
    s_lshl_b32 s23, s29, 12
    s_add_u32 s23, s23, s28""")
    for kt in range(2):
        for i in range(4): kvload(A, VM2(A), kt, i)
    A(NEXT1 + "\n s_branch attn_main")
    A.label("code_end")

def wq_src(A, i):
    lt, ks = divmod(i, 7)
    if i == 0: A(f"s_add_u32 s45, s26, {WQKV}")
    if ks == 0:
        if lt < 4: A(f"s_xor_b32 s42, s3, {lt}\n s_lshl_b32 s43, s19, 2\n s_add_u32 s42, s42, s43")
        else: A("s_and_b32 s42, s19, 1\n s_add_u32 s42, s42, 16")
        A(f"s_mul_i32 s42, s42, {28*1024}\n s_add_u32 s30, s42, s45\n s_add_u32 s31, s30, 4096")
    return f"s{30 + ks//4} offen offset:{1024*(ks%4)}", 1024*(ks%4)
def wq_load(A, vm, i):
    src, io = wq_src(A, i)
    vm.issue(f"buffer_load_dwordx4 a[{64+4*i}:{67+4*i}], v6, s[4:7], {src}", "wq")

def phase_ffn(A, vm, wd):
    XF, HF, NP_ = 16, 16, len(PARTS)
    assert NP_ == 3
    ACB = [128, 128 + 16 * PARTS[0], 128]
    assert max(ACB[p] + 16 * PARTS[p] for p in range(NP_)) <= 208 and PARTS[2] <= PARTS[0]
    A(f"""s_lshr_b32 s42, s17, 4
    s_lshl_b32 s42, s42, 2
    s_add_u32 s42, s42, s3
    s_lshl_b32 s28, s16, 3
    s_add_u32 s28, s28, s42
    s_lshl_b32 s44, s39, 7
    s_add_u32 s44, s44, s28
    s_lshl_b32 s44, s44, 7
    s_add_u32 s44, s44, {XFL}
    s_mul_i32 s23, s28, {28*1024}
    s_add_u32 s23, s23, s20
    s_add_u32 s23, s23, {X1_O}
    s_lshl_b32 s24, s28, 12
    s_add_u32 s24, s24, {ST2N}
    v_add_u32 v7, 0x10000, v6
    v_add_u32 v8, 0x20000, v6
    v_and_b32 v3, 31, v0
    v_bfe_u32 v4, v0, 5, 1""")
    FR = [(p, ks, a) for p in range(NP_) for ks in range(28) for a in range(PARTS[p])]
    def wf(f): b = 4 * (f & 7); return f"a[{b}:{b+3}]"
    def rd(f):
        off = ((f // 28) % 5) * RING_SLOT + (f % 28) * 1024
        base = "v6" if off < 65536 else ("v7" if off < 131072 else "v8")
        A(f"ds_read_b128 {wf(f)}, {base} offset:{off & 65535}")
    for f in range(7): rd(f)
    A(f"""s_and_b32 s37, s17, 3
    s_lshr_b32 s29, s17, 2
    s_lshl_b32 s32, s16, 3
    s_lshl_b32 s42, s37, 1
    s_add_u32 s32, s32, s42
    s_lshr_b32 s42, s3, 1
    s_add_u32 s32, s32, s42
    s_mul_i32 s34, s32, {28*1024}
    s_min_u32 s42, s29, 6
    s_lshl_b32 s42, s42, 12
    s_add_u32 s34, s34, s42
    s_and_b32 s42, s3, 1
    s_lshl_b32 s42, s42, 11
    s_add_u32 s34, s34, s42
    s_mul_i32 s36, s39, {24*512}
    s_lshl_b32 s42, s16, 9
    s_add_u32 s36, s36, s42
    s_add_u32 s36, s36, {FL2}
    v_bfe_u32 v250, v0, 1, 2
    v_and_b32 v251, 1, v0
    v_lshlrev_b32 v250, 4, v250
    v_lshl_add_u32 v250, v251, 2, v250
    s_lshr_b32 s42, s37, 1
    s_lshl_b32 s42, s42, 2
    s_add_u32 s42, s42, s3
    s_lshl_b32 s42, s42, 6
    s_and_b32 s43, s37, 1
    s_lshl_b32 s43, s43, 3
    s_add_u32 s42, s42, s43
    v_add_u32 v250, s42, v250
    s_lshl_b32 s42, s17, 4
    s_lshl_b32 s43, s3, 2
    s_add_u32 s42, s42, s43
    v_mov_b32 v251, s42
    v_mov_b32 v252, 1""")
    st(A, "gu_w")
    pollw(A, vm, "s44", 0x3fff)
    st(A, "gu_go")
    def xload(ks):
        vm.issue(f"buffer_load_dwordx4 v[{XF+4*ks}:{XF+4*ks+3}], v6, s[8:11], s23 offen offset:{1024*(ks&3)} sc1", f"x{ks}")
        if ks & 3 == 3: A("s_add_u32 s23, s23, 4096")
    def resid():
        A(f"s_add_u32 s42, s34, s20\n s_add_u32 s42, s42, {X1_O}")
        vm.issue("buffer_load_dwordx4 v[240:243], v6, s[8:11], s42 offen sc1", "res")
        vm.issue("buffer_load_dwordx4 v[244:247], v6, s[8:11], s42 offen offset:1024 sc1", "res")
    XPRE = E("GU_XPRE", 8)
    for ks in range(XPRE): xload(ks)
    mem = [lambda ks=ks: xload(ks) for ks in range(XPRE, 28)]
    SS = ACB[1]
    mem += [lambda i=i: vm.issue(f"buffer_load_dwordx4 v[{SS+4*i}:{SS+4*i+3}], v6, s[8:11], s24 offen offset:{1024*i} sc1", "stat") for i in range(4)]
    mem.append(resid)
    wdq = [wd.one] * (56 - wd.i)
    valu = []
    at = {}
    def put(f, fn): at.setdefault(f, []).append(fn)
    def stats():
        assert vm.ops.count("stat") == 4
        vm.wait("stat")
        for i in range(8): A(f"v_add_f32 v{SS+i}, v{SS+i}, v{SS+8+i}")
    def stats1():
        for i in range(4): A(f"v_add_f32 v{SS+i}, v{SS+i}, v{SS+4+i}")
        A(f"""v_add_f32 v12, v{SS}, v{SS+2}
        v_add_f32 v13, v{SS+1}, v{SS+3}
        v_mov_b32 v14, v12
        v_mov_b32 v15, v13
        v_permlane32_swap_b32 v12, v14
        v_permlane32_swap_b32 v13, v15
        v_pk_add_f32 v[12:13], v[12:13], v[14:15]
        v_mul_f32 v12, {f2u(1.0/448):#x}, v12
        v_mul_f32 v13, {f2u(1.0/448):#x}, v13
        v_fma_f32 v13, -v12, v12, v13
        v_max_f32 v13, 0, v13
        v_add_f32 v13, {f2u(1e-5):#x}, v13
        v_rcp_f32 v10, v13
        v_mov_b32 v11, v10""")
    def hdst(p):
        A(f"""s_mul_i32 s24, s28, {16*PARTS[p]*1024}
        s_and_b32 s43, s17, 15
        s_mul_i32 s43, s43, {PARTS[p]*1024}
        s_add_u32 s24, s24, s43
        s_add_u32 s24, s24, s20
        s_add_u32 s24, s24, {hbase(p)}""")
    def hstore(p, a):
        b = ACB[p] + 16 * a
        ins = f"buffer_store_dwordx4 v[{b+8}:{b+11}], v6, s[8:11], s24 offen offset:{1024*a}"
        store2(A, vm, [ins], f"hs{p}", "" if (QALIAS and p == NP_ - 1) else "sc1")
    def epi(p, a, pk):
        b = ACB[p] + 16 * a
        L = []
        if pk:
            L += [f"v_pk_mul_f32 v[{b+r}:{b+r+1}], v[{b+r}:{b+r+1}], v[{b+8+r}:{b+9+r}]" for r in range(0, 8, 2)]
            L += [f"v_pk_mul_f32 v[{b+r}:{b+r+1}], v[{b+r}:{b+r+1}], v[10:11]" for r in range(0, 8, 2)]
        else:
            L += [f"v_mul_f32 v{b+r}, v{b+r}, v{b+8+r}" for r in range(8)]
            L += [f"v_mul_f32 v{b+r}, v{b+r}, v10" for r in range(8)]
        L += [f"v_cvt_pk_bf16_f32 v{b+8+q_}, v{b+2*q_}, v{b+2*q_+1}" for q_ in range(4)]
        return [lambda t=t: A(t) for t in L]
    def flag(p):
        u = uid[0]; uid[0] += 1
        vm.wait(f"hs{p}")
        A(f"""s_add_u32 s42, s36, {p*4096}
        s_mov_b64 exec, 1
        s_cmp_eq_u32 s38, 0
        s_cbranch_scc1 fl_slow{u}
        buffer_store_dword v252, v251, s[8:11], s42 offen""")
        A.label(f"fl_done{u}")
        A("s_mov_b64 exec, -1")
        vm.ops.append("flag")
        def cold():
            A.label(f"fl_slow{u}")
            A(f"buffer_store_dword v252, v251, s[8:11], s42 offen sc1\n s_branch fl_done{u}")
        COLD.append(cold)
    def poll(p):
        A(f"s_add_u32 s42, s36, {p*4096}")
        vm.issue("buffer_load_dword v9, v250, s[8:11], s42 offen sc1", f"poll{p}")
    def check(p):
        u = uid[0]; uid[0] += 1
        vm.wait(f"poll{p}")
        A(f"v_cmp_ne_u32 vcc, 1, v9\n s_cbranch_vccnz ck_slow{u}")
        A.label(f"ck_done{u}")
        def cold():
            A.label(f"ck_slow{u}")
            A(f"s_add_u32 s42, s36, {p*4096}\n s_mov_b32 s41, {SPIN_LIMIT}")
            A.label(f"ck_loop{u}")
            A(f"""buffer_load_dword v9, v250, s[8:11], s42 offen sc1
            s_sub_u32 s41, s41, 1
            s_cmp_eq_u32 s41, 0
            s_cbranch_scc1 ck_done{u}
            s_waitcnt vmcnt(0)
            v_cmp_ne_u32 vcc, 1, v9
            s_cbranch_vccnz ck_loop{u}
            s_branch ck_done{u}""")
        COLD.append(cold)
        if STAMPS: st(A, f"ck{p}")
    def hf(n, t): b = HF + 8 * (n % 24) + 4 * t; return f"v[{b}:{b+3}]"
    def hload(n):
        p = HSTEP[n][0]; j = n - 4 * POFF[p]
        if j == 0:
            A(f"""s_mul_i32 s23, s32, {16*PARTS[p]*1024}
            s_xor_b32 s42, s32, 1
            s_mul_i32 s25, s42, {16*PARTS[p]*1024}
            s_mul_i32 s42, s3, {4*PARTS[p]*1024}
            s_add_u32 s42, s42, s20
            s_add_u32 s42, s42, {hbase(p)}
            s_add_u32 s23, s23, s42
            s_add_u32 s25, s25, s42""")
        vm.issue(f"buffer_load_dwordx4 {hf(n,0)}, v6, s[8:11], s23 offen offset:{1024*(j&3)}{SC1}", f"k{n}")
        vm.issue(f"buffer_load_dwordx4 {hf(n,1)}, v6, s[8:11], s25 offen offset:{1024*(j&3)}{SC1}", f"k{n}")
        if j & 3 == 3: A("s_add_u32 s23, s23, 4096\n s_add_u32 s25, s25, 4096")
    PE = [28 * (POFF[p] + PARTS[p]) for p in range(NP_)]
    put(PE[0] - 12, stats); put(PE[0] - 10, stats1)
    SD = EL("FF_SD", "1,1")
    FD = EL("FF_FD", "40,36,18")
    PD = EL("FF_PD", "12,12,14")
    CD = EL("FF_CD", "38,14,14")
    chk = {}; late_flags = []
    EPG = E("FF_EPG", 4)
    def plan(p, last_store):
        fs_ = last_store + FD[p]
        put(fs_, lambda: flag(p)); put(fs_ + PD[p], lambda: poll(p))
        if fs_ >= 196: late_flags.append(p)
        c = fs_ + PD[p] + CD[p]
        c = min(c, 196 + 16 * POFF[p] - 1) if p else min(c, 195)
        assert c > fs_ + PD[p], (p, c)
        put(c, lambda: check(p)); chk[p] = c
    for p in range(NP_ - 1):
        f = PE[p] + SD[p]
        put(f, lambda p=p: hdst(p))
        for a in range(PARTS[p]):
            ops = epi(p, a, False)
            while ops:
                for o in ops[:EPG]: put(f, o)
                ops = ops[EPG:]; f += 1
            put(f, lambda p=p, a=a: hstore(p, a))
        plan(p, f)
    plan(NP_ - 1, 195)
    nl = [0]
    def try_h(f, mx):
        for _ in range(mx):
            n = nl[0]
            if n >= 28 or f < chk[HSTEP[n][0]]: return
            if f < 196:
                if 2 * n + 1 >= FR[f][1] or FR[f][0] != NP_ - 1: return
            elif n >= 24 and n - 24 >= (f - 196) // 4: return
            if n > max(0, (f - 196) // 4) + E("H_AHEAD", 5): return
            hload(n); nl[0] += 1
    PER, PERX, PERD = E("GU_PER", 3), E("GU_PERX", 2), E("GU_PERD", 4)
    dq = []; last_d = [E("P4_GU", 3) - PERD]
    if E("P4_MODE", 1) == 1: dq += [lambda i=i: dma_piece(A, vm, 4, i, True) for i in range(7)]
    WD0 = E("GU_WD0", 60)
    for f, (p, ks, a) in enumerate(FR):
        nf = f + 7
        if nf < 196 and nf % 28 == 0 and nf // 28 >= 4:
            assert nf // 28 == 4 or vm.ops.count(f"w{nf//28}") == 7
            vm.wait(f"w{nf//28}"); A("s_barrier")
        if f in (28, 56):
            A("s_barrier")
            dq += [lambda i=i, pc=f//28+4: dma_piece(A, vm, pc, i, True) for i in range(7)]
        if p == 0 and a == 0: vm.wait(f"x{ks}")
        if f in GU_ST: st(A, f"gu{f}")
        A(f"s_waitcnt lgkmcnt({min(6, 195 - f)})")
        acc = f"v[{ACB[p]+16*a}:{ACB[p]+16*a+15}]"
        A(f"v_mfma_f32_32x32x16_bf16 {acc}, {wf(f)}, v[{XF+4*ks}:{XF+4*ks+3}], {'0' if ks == 0 else acc}")
        if nf < 196: rd(nf)
        if dq and f - last_d[0] >= PERD: dq.pop(0)(); last_d[0] = f
        elif mem and f % PERX == 0: mem.pop(0)()
        elif not mem and wdq and f >= WD0 and f % PER == 0: wdq.pop(0)()
        for fn in at.pop(f, []): fn()
        try_h(f, 1)
    assert not mem and not dq and not wdq, (len(mem), len(dq), len(wdq))
    st(A, "gu_mm")
    hdst(NP_ - 1)
    for a in range(PARTS[-1]):
        for o in epi(NP_ - 1, a, True): o()
        hstore(NP_ - 1, a)
    A("s_cmp_ge_u32 s17, 28\n s_cbranch_scc1 down_skip")
    st(A, "dn_go")
    vm.wait("wd")
    def wdf(n, a): return wd.dst(2 * n + a)
    wq = [lambda i=i: wq_load(A, vm, i) for i in range(35)]
    for n in range(28):
        try_h(196 + 4 * n - 1, 3 if n == 0 else 0)
        assert nl[0] > n, f"h step {n} not loaded"
        vm.wait(f"k{n}")
        if n in DN_ST: st(A, f"dn{n}")
        if n == E("DN_BAR", 10): A("s_barrier")
        for t in range(2):
            for a in range(2):
                f = 196 + 4 * n + 2 * t + a
                lp = a + 2*t
                acc = f"a[{16*lp}:{16*lp+15}]"
                A(f"v_mfma_f32_32x32x16_bf16 {acc}, {wdf(n,a)}, {hf(n,t)}, {'0' if n == 0 else acc}")
                for fn in at.pop(f, []): fn()
                try_h(f, 1)
                if nl[0] >= 28 and wq and f % E('WQ_PER', 2) == 0 and (35 - len(wq)) // 2 < n: wq.pop(0)()
    assert not at, at.keys()
    st(A, "dn_mm")
    for lp in range(1, 4):
        A(f"s_xor_b32 s42, s3, {lp}\n s_mul_i32 s42, s42, 12288\n v_add_u32 v{8+lp}, s42, v6")
    for p in range(8):
        A(f"v_lshlrev_b32 v{80+2*p}, 16, v{240+p}\n v_and_b32 v{81+2*p}, 0xffff0000, v{240+p}")
    for lp in range(1, 4):
        for rq in range(4):
            r = 16*lp + 4*rq
            A(f"ds_write_b128 v{8+lp}, a[{r}:{r+3}] offset:{(lp-1)*4096 + rq*1024}")
            for _ in range(E("WQ_EX", 1)):
                if wq: wq.pop(0)()
    A(f"""s_mul_i32 s42, s3, 12288
    v_add_u32 v12, s42, v6""")
    for r in range(16): A(f"v_accvgpr_read_b32 v{16+r}, a{r}")
    for r in range(0, 16, 2): A(f"v_pk_add_f32 v[{16+r}:{17+r}], v[{16+r}:{17+r}], v[{80+r}:{81+r}]")
    A("s_waitcnt lgkmcnt(0)\n s_barrier")
    for i in range(3):
        for rq in range(4):
            r = 32 + 16*i + 4*rq
            A(f"ds_read_b128 v[{r}:{r+3}], v12 offset:{i*4096 + rq*1024}")
    for _ in range(E("WQ_EX2", 0)):
        if wq: wq.pop(0)()
    for i in range(3):
        A(f"s_waitcnt lgkmcnt({8-4*i})")
        for r in range(0, 16, 2): A(f"v_pk_add_f32 v[{16+r}:{17+r}], v[{16+r}:{17+r}], v[{32+16*i+r}:{33+16*i+r}]")
    for p in range(8): A(f"v_cvt_pk_bf16_f32 v{96+p}, v{16+2*p}, v{17+2*p}")
    A(f"""s_cmp_eq_u32 s39, 1
    s_cbranch_scc0 down_x2
    v_mul_u32_u24 v5, 896, v3
    v_lshl_add_u32 v5, v4, 4, v5
    s_mul_i32 s42, s32, {32*896}
    s_lshl_b32 s43, s29, 7
    s_add_u32 s42, s42, s43
    s_and_b32 s43, s3, 1
    s_lshl_b32 s43, s43, 6
    s_add_u32 s42, s42, s43
    buffer_store_dwordx4 v[96:99], v5, s[12:15], s42 offen
    buffer_store_dwordx4 v[100:103], v5, s[12:15], s42 offen offset:32""")
    if STAMPS:
        A("s_waitcnt vmcnt(0)")
        main_flush(A, 3)
    A("s_endpgm")
    A.label("down_x2")
    A.fence(2)
    A(f"s_add_u32 s42, s34, s20\n s_add_u32 s42, s42, {X2_O}")
    store2(A, vm, ["buffer_store_dwordx4 v[96:99], v6, s[8:11], s42 offen", "buffer_store_dwordx4 v[100:103], v6, s[8:11], s42 offen offset:1024"], "st")
    A(f"""v_lshlrev_b32 v40, 4, v3
    s_lshl_b32 s42, s32, 12
    s_lshl_b32 s43, s29, 9
    s_add_u32 s42, s42, s43
    s_and_b32 s43, s3, 1
    s_lshl_b32 s24, s43, 2
    s_lshl_b32 s43, s43, 3
    s_add_u32 s42, s42, s43
    s_add_u32 s42, s42, {ST2N}""")
    rowstats(A, 16, 32)
    A("s_mov_b32 exec_hi, 0")
    store2(A, vm, ["buffer_store_dwordx2 v[32:33], v40, s[8:11], s42 offen"], "st")
    A(f"""s_mov_b32 exec_hi, -1
    s_lshl_b32 s42, s32, 7
    s_add_u32 s24, s24, s42
    s_lshl_b32 s42, s29, 3
    s_add_u32 s24, s24, s42
    s_add_u32 s24, s24, {XFL + 64*128}
    v_mov_b32 v41, 0""")
    while wq: wq.pop(0)()
    wflag(A, vm, "st", "s24", "v252", "v41")
    A("s_branch qkv_wait")
    A.label("down_skip")
    A.fence(4)
    A("s_waitcnt vmcnt(0)")
    vm.ops = ["drained"]
    for p in late_flags: flag(p)
    A("s_cmp_eq_u32 s39, 1\n s_cbranch_scc1 main_end")
    for i in range(35): wq_load(A, VM2(A), i)
    A.label("qkv_wait")
    A.fence(4)
    A(f"""s_lshl_b32 s44, s18, 7
    s_add_u32 s44, s44, {XFL + 64*128}
    s_add_u32 s21, s20, {X2_O}
    s_mov_b32 s20, {ABASE[1]}
    s_lshl_b32 s24, s18, 12
    s_add_u32 s24, s24, {ST2N}
    s_mul_i32 s28, s18, {28*1024}
    s_add_u32 s28, s28, s26
    s_add_u32 s28, s28, s21
    s_add_u32 s29, s28, 4096""")
    st(A, "qkv_w")
    pollw(A, vm, "s44", 0x3fff)

def qkv_epilogue(A, vm, P, raw, bar=None):
    AC = 16
    FS = os.environ.get("QKV_FS", "")
    if FS: FS = " " + FS
    XT = 49152
    for lp in range(1, 4):
        A(f"s_xor_b32 s42, s3, {lp}\n s_mul_i32 s42, s42, 12288\n v_add_u32 v{124+lp}, s42, v6")
    A.fence(4)
    for lp in range(1, 4):
        for rq in range(4):
            r = AC + 16*lp + 4*rq
            A(f"ds_write_b128 v{124+lp}, v[{r}:{r+3}] offset:{(lp-1)*4096 + rq*1024}")
    A(f"""s_cmp_ge_u32 s19, 2
    s_cbranch_scc1 {P}_nox
    s_cmp_eq_u32 s3, 0
    s_cbranch_scc1 {P}_nox
    s_lshl_b32 s42, s3, 12
    s_add_u32 s42, s42, {XT - 4096}
    v_add_u32 v124, s42, v6""")
    for rq in range(4):
        r = AC + 64 + 4*rq
        A(f"ds_write_b128 v124, v[{r}:{r+3}] offset:{rq*1024}")
    A.label(P + "_nox")
    A(f"""s_mul_i32 s42, s3, 12288
    v_add_u32 v12, s42, v6""")
    if not raw:
        vm.wait("stat")
        for sz in (8, 4, 2):
            for i in range(0, sz, 2):
                A(f"v_pk_add_f32 v[{128+i}:{129+i}], v[{128+i}:{129+i}], v[{128+sz+i}:{129+sz+i}]")
        A(f"""v_mov_b32 v130, v128
        v_mov_b32 v131, v129
        s_lshl_b32 s42, s18, 15
        s_lshl_b32 s43, s19, 13
        v_permlane32_swap_b32 v128, v130
        v_permlane32_swap_b32 v129, v131
        v_pk_add_f32 v[128:129], v[128:129], v[130:131]
        v_mul_f32 v128, {f2u(1.0/448):#x}, v128
        v_mul_f32 v129, {f2u(1.0/448):#x}, v129
        v_fma_f32 v129, -v128, v128, v129
        v_max_f32 v129, 0, v129
        v_add_f32 v129, {f2u(1e-5):#x}, v129
        v_rsq_f32 v10, v129
        s_add_u32 s42, s42, s43
        s_lshl_b32 s43, s3, 11
        s_add_u32 s42, s42, s43
        s_add_u32 s42, s42, s20
        v_mov_b32 v11, v10
        s_waitcnt lgkmcnt(0)
        s_barrier""")
    else:
        A(f"""s_lshl_b32 s42, s18, 15
        s_lshl_b32 s43, s19, 13
        s_add_u32 s42, s42, s43
        s_lshl_b32 s43, s3, 11
        s_add_u32 s42, s42, s43
        s_add_u32 s42, s42, s20
        v_mov_b32 v10, {f2u(QSCALE):#x}
        v_mov_b32 v11, {f2u(QSCALE):#x}
        s_waitcnt lgkmcnt(0)""")
        bar(2)
    for i in range(3):
        for rq in range(4):
            r = AC + 16*(i+1) + 4*rq
            A(f"ds_read_b128 v[{r}:{r+3}], v12 offset:{i*4096 + rq*1024}")
    for i in range(3):
        A(f"s_waitcnt lgkmcnt({8-4*i})")
        for r in range(0, 16, 2): A(f"v_pk_add_f32 v[{AC+r}:{AC+r+1}], v[{AC+r}:{AC+r+1}], v[{AC+16*(i+1)+r}:{AC+16*(i+1)+r+1}]")
    for r in range(0, 16, 2): A(f"v_pk_mul_f32 v[{AC+r}:{AC+r+1}], v[{AC+r}:{AC+r+1}], v[10:11]")
    for p in range(8): A(f"v_cvt_pk_bf16_f32 v{144+p}, v{AC+2*p}, v{AC+2*p+1}")
    def norm(base, d):
        A(f"v_mov_b32 v{d}, 0\n v_mov_b32 v{d+1}, 0")
        for p in range(8): A(f"v_dot2_f32_bf16 v{d+(p&1)}, v{base+p}, v{base+p}, v{d+(p&1)}")
        A(f"""v_add_f32 v{d}, v{d}, v{d+1}
        v_mov_b32 v{d+1}, v{d}
        v_permlane32_swap_b32 v{d}, v{d+1}
        v_add_f32 v{d}, v{d}, v{d+1}
        v_sqrt_f32 v{d}, v{d}
        v_mul_f32 v{d}, {f2u(1.01):#x}, v{d}""")
    A("buffer_store_dwordx4 v[144:147], v6, s[8:11], s42 offen" + FS)
    if raw: A("s_mov_b32 exec_lo, 0\n v_mov_b32 v150, 0\n v_mov_b32 v151, 0\n s_mov_b32 exec_lo, -1")
    norm(144, 132)
    A(f"""s_mov_b32 exec_lo, 0
    v_cvt_pk_bf16_f32 v150, v132, 0
    s_mov_b32 exec_lo, -1
    buffer_store_dwordx4 v[148:151], v6, s[8:11], s42 offen offset:1024{FS}
    s_cmp_ge_u32 s19, 2
    s_cbranch_scc1 {P}_fin
    s_cmp_lg_u32 s3, 0
    s_cbranch_scc1 {P}_fin
    v_add_u32 v12, {XT}, v6""")
    EE = AC + 64
    for i in range(3):
        for rq in range(4):
            r = AC + 16*i + 4*rq
            A(f"ds_read_b128 v[{r}:{r+3}], v12 offset:{i*4096 + rq*1024}")
    A(f"""s_lshl_b32 s42, s18, 12
    s_add_u32 s42, s42, s32
    s_add_u32 s42, s42, {KV_O}""")
    for i in range(3):
        A(f"s_waitcnt lgkmcnt({8-4*i})")
        for r in range(0, 16, 2): A(f"v_pk_add_f32 v[{EE+r}:{EE+r+1}], v[{EE+r}:{EE+r+1}], v[{AC+16*i+r}:{AC+16*i+r+1}]")
    A(f"s_cmp_eq_u32 s19, 1\n s_cbranch_scc1 {P}_epi_v")
    if not raw:
        for r in range(0, 16, 2): A(f"v_pk_mul_f32 v[{EE+r}:{EE+r+1}], v[{EE+r}:{EE+r+1}], v[10:11]")
    for p in range(8): A(f"v_cvt_pk_bf16_f32 v{152+p}, v{EE+2*p}, v{EE+2*p+1}")
    A("buffer_store_dwordx4 v[152:155], v6, s[8:11], s42 offen" + FS)
    if raw: A("s_mov_b32 exec_lo, 0\n v_mov_b32 v158, 0\n v_mov_b32 v159, 0\n s_mov_b32 exec_lo, -1")
    norm(152, 20)
    A(f"""s_mov_b32 exec_lo, 0
    v_mov_b32 v158, 0x3f803f80
    v_mov_b32 v159, 0x00003f80
    s_mov_b32 exec_lo, -1
    buffer_store_dwordx4 v[156:159], v6, s[8:11], s42 offen offset:1024{FS}
    v_max_f32_dpp v20, v20, v20 row_shr:1 row_mask:0xf bank_mask:0xf
    v_max_f32_dpp v20, v20, v20 row_shr:2 row_mask:0xf bank_mask:0xf
    v_max_f32_dpp v20, v20, v20 row_shr:4 row_mask:0xf bank_mask:0xf
    v_max_f32_dpp v20, v20, v20 row_shr:8 row_mask:0xf bank_mask:0xf
    v_readlane_b32 s30, v20, 15
    v_readlane_b32 s31, v20, 31
    v_mov_b32 v21, s30
    v_max_f32 v21, s31, v21
    v_or_b32 v21, 1, v21
    v_mov_b32 v20, v21
    s_lshl_b32 s42, s18, 7
    s_add_u32 s42, s42, s32
    s_add_u32 s42, s42, {KN_O}
    v_mov_b32 v22, 0
    s_mov_b64 exec, 1
    buffer_store_dwordx2 v[20:21], v22, s[8:11], s42 offen{FS}
    s_lshl_b32 s42, s18, 2
    s_add_u32 s42, s42, s32
    s_add_u32 s42, s42, {KN_O + 0x2000}
    buffer_store_dword v21, v22, s[8:11], s42 offen{FS}
    s_branch {P}_fin""")
    A.label(P + "_epi_v")
    A.fence(4)
    if not raw:
        A(f"""v_lshlrev_b32 v20, 2, v3
        ds_write_b32 v20, v10
        v_lshlrev_b32 v21, 4, v4
        v_cmp_eq_u32 vcc, 28, v3
        v_mov_b32 v23, 0
        v_mov_b32 v24, 1.0
        v_cndmask_b32 v23, v23, v24, vcc
        s_waitcnt lgkmcnt(0)""")
        for qq in range(4): A(f"ds_read_b128 v[{40+4*qq}:{43+4*qq}], v21 offset:{32*qq}")
        A("s_waitcnt lgkmcnt(0)")
        for r in range(16): A(f"v_fma_f32 v{EE+r}, v{EE+r}, v{40+r}, v23")
    else:
        A("""v_cmp_eq_u32 vcc, 28, v3
        v_mov_b32 v23, 0
        v_mov_b32 v24, 1.0
        v_cndmask_b32 v23, v23, v24, vcc
        v_cmp_le_u32 vcc, 28, v3""")
        for r in range(16): A(f"v_cndmask_b32 v{EE+r}, v{EE+r}, v23, vcc")
    for p in range(8): A(f"v_cvt_pk_bf16_f32 v{152+p}, v{EE+2*p}, v{EE+2*p+1}")
    A(f"""buffer_store_dwordx4 v[152:155], v6, s[8:11], s42 offen offset:2048{FS}
    buffer_store_dwordx4 v[156:159], v6, s[8:11], s42 offen offset:3072{FS}""")
    A.label(P + "_fin")
    if STAMPS:
        A.fence(4)
        A("s_waitcnt vmcnt(0)")
        main_flush(A, 3)

def phase_qkv(A):
    vm = VM2(A)
    XF, AC, EE, TP, XT = 96, 16, 80, 160, 49152
    st(A, "qkv_go")
    for ks in range(7):
        vm.issue(f"buffer_load_dwordx4 v[{XF+4*ks}:{XF+4*ks+3}], v6, s[8:11], s{28 + ks//4} offen offset:{1024*(ks%4)} sc1", f"x{ks}")
    for i in range(4): vm.issue(f"buffer_load_dwordx4 v[{128+4*i}:{131+4*i}], v6, s[8:11], s24 offen offset:{1024*i} sc1", "stat")
    for lp in range(1, 4):
        A(f"""s_xor_b32 s42, s3, {lp}
        s_mul_i32 s43, s42, 12288
        s_add_u32 s43, s43, {QX}
        v_add_u32 v{124+lp}, s43, v6
        s_lshl_b32 s43, s42, 12
        s_add_u32 s43, s43, {XT}
        v_add_u32 v{208+lp}, s43, v6""")
    A(f"""s_lshl_b32 s43, s3, 12
    s_add_u32 s43, s43, {XT}
    v_add_u32 v208, s43, v6
    s_mul_i32 s42, s3, 12288
    s_add_u32 s42, s42, {QX}
    v_add_u32 v12, s42, v6
    s_lshl_b32 s42, s3, 7
    s_add_u32 s42, s42, {XT + 16384}
    v_lshl_add_u32 v212, v3, 2, s42
    v_lshl_add_u32 v213, v4, 4, s42
    v_cmp_eq_u32 vcc, 28, v3
    v_cndmask_b32 v214, 0, 1.0, vcc
    s_lshl_b32 s29, s18, 12
    s_add_u32 s29, s29, {LBASE[1] + KV_O}""")
    def w(i): return f"a[{64+4*i}:{67+4*i}]"
    def norm(base, d):
        L = [f"v_mov_b32 v{d}, 0", f"v_mov_b32 v{d+1}, 0"]
        L += [f"v_dot2_f32_bf16 v{d+(p&1)}, v{base+p}, v{base+p}, v{d+(p&1)}" for p in range(8)]
        L += [f"v_add_f32 v{d}, v{d}, v{d+1}", f"v_mov_b32 v{d+1}, v{d}", f"v_permlane32_swap_b32 v{d}, v{d+1}",
              f"v_add_f32 v{d}, v{d}, v{d+1}", f"v_sqrt_f32 v{d}, v{d}", f"v_mul_f32 v{d}, {f2u(1.01):#x}, v{d}"]
        return L
    def stats():
        L = [lambda: vm.wait("stat")]
        for sz in (8, 4, 2):
            for i in range(sz): L.append(f"v_add_f32 v{128+i}, v{128+i}, v{128+sz+i}")
        L += f"""v_mov_b32 v130, v128
        v_mov_b32 v131, v129
        v_permlane32_swap_b32 v128, v130
        v_permlane32_swap_b32 v129, v131
        v_add_f32 v128, v128, v130
        v_add_f32 v129, v129, v131
        v_mul_f32 v128, {f2u(1.0/448):#x}, v128
        v_mul_f32 v129, {f2u(1.0/448):#x}, v129
        v_fma_f32 v129, -v128, v128, v129
        v_max_f32 v129, 0, v129
        v_add_f32 v129, {f2u(1e-5):#x}, v129
        v_rsq_f32 v10, v129
        v_mov_b32 v11, v10""".split("\n")
        return L
    def mm(kind):
        fill = []
        if kind:
            vm.wait("x0")
            for ks in range(7):
                vm.wait(f"x{ks}")
                x = f"v[{XF+4*ks}:{XF+4*ks+3}]"; acc = f"v[{EE}:{EE+15}]"; c = "0" if ks == 0 else acc
                A(f"v_mfma_f32_32x32x16_bf16 {acc}, {x}, {w(28+ks)}, {c}" if kind == 2 else f"v_mfma_f32_32x32x16_bf16 {acc}, {w(28+ks)}, {x}, {c}")
            fill += [None, None] + [f"ds_write_b128 v208, v[{EE+4*rq}:{EE+4*rq+3}] offset:{1024*rq}" for rq in range(4)]
        fill += stats()
        if kind:
            if kind == 2: fill.append("ds_write_b32 v212, v10")
            fill += ["s_waitcnt lgkmcnt(0)\n s_barrier"]
            for i in range(3):
                for rq in range(4): fill.append(f"ds_read_b128 v[{TP+16*i+4*rq}:{TP+16*i+4*rq+3}], v{209+i} offset:{1024*rq}")
            if kind == 2: fill += [f"ds_read_b128 v[{216+4*q_}:{219+4*q_}], v213 offset:{32*q_}" for q_ in range(4)]
            fill += [None] * 4
            for i in range(3):
                fill.append(f"s_waitcnt lgkmcnt({8 - 4*i + (4 if kind == 2 else 0)})")
                fill += [f"v_add_f32 v{EE+r}, v{EE+r}, v{TP+16*i+r}" for r in range(16)]
            if kind == 1: fill += [f"v_mul_f32 v{EE+r}, v{EE+r}, v10" for r in range(16)]
            else: fill += ["s_waitcnt lgkmcnt(0)"] + [f"v_fma_f32 v{EE+r}, v{EE+r}, v{216+r}, v214" for r in range(16)]
            fill += [f"v_cvt_pk_bf16_f32 v{152+p}, v{EE+2*p}, v{EE+2*p+1}" for p in range(8)]
        def pop(n):
            for _ in range(n):
                if not fill: return
                t = fill.pop(0)
                if t is None: return
                t() if callable(t) else A(t)
        for ks in range(7):
            if not kind: vm.wait(f"x{ks}")
            x = f"v[{XF+4*ks}:{XF+4*ks+3}]"
            for lt in range(4):
                acc = f"v[{AC+16*lt}:{AC+16*lt+15}]"
                A(f"v_mfma_f32_32x32x16_bf16 {acc}, {w(lt*7+ks)}, {x}, {'0' if ks == 0 else acc}")
                pop(E("QKV_PG", 4))
        while fill: pop(1)
        u = uid[0]; uid[0] += 1
        if kind == 1:
            A(f"s_cmp_lg_u32 s3, 0\n s_cbranch_scc1 qk_ns{u}\n buffer_store_dwordx4 v[152:155], v6, s[8:11], s29 offen sc1")
            for t in norm(152, 216): A(t)
            A(f"""s_mov_b32 exec_lo, 0
            v_mov_b32 v158, 0x3f803f80
            v_mov_b32 v159, 0x00003f80
            s_mov_b32 exec_lo, -1
            buffer_store_dwordx4 v[156:159], v6, s[8:11], s29 offen offset:1024 sc1""")
            A.label(f"qk_ns{u}")
        if kind == 2:
            A(f"""s_cmp_lg_u32 s3, 0
            s_cbranch_scc1 qk_ns{u}
            buffer_store_dwordx4 v[152:155], v6, s[8:11], s29 offen offset:2048 sc1
            buffer_store_dwordx4 v[156:159], v6, s[8:11], s29 offen offset:3072 sc1
            v_mov_b32 v216, 1.0""")
            A.label(f"qk_ns{u}")
    A("s_cmp_eq_u32 s19, 0\n s_cbranch_scc1 qkv_mmk\n s_cmp_eq_u32 s19, 1\n s_cbranch_scc1 qkv_mmv")
    mm(0)
    A("s_branch qkv_red")
    A.label("qkv_mmk"); A.reset_hz(); mm(1); A("s_branch qkv_red")
    A.label("qkv_mmv"); A.reset_hz(); mm(2)
    A.label("qkv_red")
    A.fence(8)
    st(A, "qkv_mm")
    for lp in range(1, 4):
        for rq in range(4):
            r = AC + 16*lp + 4*rq
            A(f"ds_write_b128 v{124+lp}, v[{r}:{r+3}] offset:{(lp-1)*4096 + rq*1024}")
    A(f"""v_max_f32_dpp v216, v216, v216 row_shr:1 row_mask:0xf bank_mask:0xf
    v_max_f32_dpp v216, v216, v216 row_shr:2 row_mask:0xf bank_mask:0xf
    v_max_f32_dpp v216, v216, v216 row_shr:4 row_mask:0xf bank_mask:0xf
    v_max_f32_dpp v216, v216, v216 row_shr:8 row_mask:0xf bank_mask:0xf
    s_lshl_b32 s29, s18, 7
    s_lshl_b32 s42, s19, 2
    v_readlane_b32 s30, v216, 15
    v_readlane_b32 s31, v216, 31
    s_add_u32 s29, s29, s42
    s_add_u32 s24, s29, {KN1}
    v_mov_b32 v217, s30
    v_max_f32 v217, s31, v217
    v_or_b32 v217, 1, v217
    v_mov_b32 v218, 0
    v_mov_b32 v219, 1
    s_waitcnt lgkmcnt(0)
    s_barrier""")
    for i in range(3):
        for rq in range(4):
            r = AC + 16*(i+1) + 4*rq
            A(f"ds_read_b128 v[{r}:{r+3}], v12 offset:{i*4096 + rq*1024}")
    for i in range(3):
        A(f"s_waitcnt lgkmcnt({8-4*i})")
        for r in range(0, 16, 2): A(f"v_pk_add_f32 v[{AC+r}:{AC+r+1}], v[{AC+r}:{AC+r+1}], v[{AC+16*(i+1)+r}:{AC+16*(i+1)+r+1}]")
    for r in range(0, 16, 2): A(f"v_pk_mul_f32 v[{AC+r}:{AC+r+1}], v[{AC+r}:{AC+r+1}], v[10:11]")
    for p in range(8): A(f"v_cvt_pk_bf16_f32 v{144+p}, v{AC+2*p}, v{AC+2*p+1}")
    A("ds_write_b128 v12, v[144:147]")
    kvflag = """s_cmp_ge_u32 s19, 2
    s_cbranch_scc1 qkv_nf
    s_cmp_lg_u32 s3, 0
    s_cbranch_scc1 qkv_nf
    s_mov_b64 exec, 1
    s_waitcnt vmcnt(0)
    buffer_store_dword v217, v218, s[8:11], s24 offen sc1
    s_mov_b64 exec, -1
    qkv_nf:"""
    if E("KVF_AT", 1) == 0: A(kvflag)
    for t in norm(144, 132): A(t)
    A(f"""s_mov_b32 exec_lo, 0
    v_cvt_pk_bf16_f32 v150, v132, 0
    s_mov_b32 exec_lo, -1
    ds_write_b128 v12, v[148:151] offset:1024""")
    if E("KVF_AT", 1) == 1: A(kvflag)
    if STAMPS:
        A.fence(4)
        main_flush(A, 3)
        A("s_mov_b64 exec, -1")
        st(A, "start")
    A(f"""s_mov_b32 s39, 1
    s_mov_b32 s28, {LBASE[1] + KV_O}
    s_mov_b32 s40, {KN1}
    s_mov_b32 s6, 0""")
    att_setup1(A)
    poll_n(A, vm, 0)
    A("s_waitcnt lgkmcnt(0)\n s_barrier")
    for j in range(4):
        for s_ in range(2): A(f"ds_read_b128 {q(j, s_)}, v{(127, 126, 125, 12)[j]} offset:{1024*s_}")
    att_setup2(A, WD_[0])
    WD_[0].ar = 238
    A("s_waitcnt lgkmcnt(0)\n s_barrier")
    st(A, "l1_q")
    A("s_waitcnt vmcnt(0)")
    for t_ in pick_ops(A): A(t_)
    st(A, "l1_k")
    poll_n(A, vm, 1)
    for kt in range(2):
        for i in range(4): kvload(A, vm, kt, i)
    vm.wait("poll")
    for t_ in pick_ops(A): A(t_)
    st(A, "l1_k1")
    A("s_branch att_go")

PQ_KV = 4 * 28 * 1024
PQ_ST = PQ_KV + 4 * 7 * 1024
PQ_PREP = PQ_ST + 1024
PQ_SYNC = PQ_PREP + 1024
PQ_LDS = PQ_SYNC + 64
NTP = " nt" if E("NT_P", 1) else ""
NTX = " nt" if E("NT_X", 1) else ""
NTW = " nt" if E("NT_W", 0) else ""
PFS = os.environ.get("PREP_FS", "")
if PFS: PFS = " " + PFS
def stq(A, n):
    if E('PQ_ST', 0): st(A, n)
def lbar(A, k, n=4):
    u = uid[0]; uid[0] += 1
    A(f"""v_mov_b32 v1, 1
    v_mov_b32 v2, {PQ_SYNC + 4*k}
    s_mov_b64 exec, 1
    ds_add_u32 v2, v1""")
    A.label(f"lbar{u}")
    A(f"""ds_read_b32 v1, v2
    s_waitcnt lgkmcnt(0)
    v_readfirstlane_b32 s40, v1
    s_cmp_lt_u32 s40, {n}
    s_cbranch_scc1 lbar{u}
    s_mov_b64 exec, -1""")
def pflush(A):
    if not STAMPS: return
    A("""s_mov_b32 s8, s28
    s_mov_b32 s9, s29
    s_mov_b32 s10, s30
    s_mov_b32 s11, 0x20000
    s_mov_b32 s39, 2
    s_waitcnt vmcnt(0)""")
    main_flush(A, 3)

def prep_roles(A):
    LD, BB, AC, SM = 16, 72, 80, 192
    PS = E("PR_ST", 0)
    if not E("PR_TOUCH", 0): A("s_branch pr_notouch")
    A(f"""s_and_b32 s32, s2, 7
    s_lshr_b32 s33, s2, 3
    s_cmp_eq_u32 s3, 0
    s_cselect_b32 s24, s12, s14
    s_cselect_b32 s25, s13, s15
    s_cselect_b32 s20, s16, s10
    s_cselect_b32 s21, s17, s11
    s_mov_b32 s22, {F*D*2}
    s_cselect_b32 s36, 3, 0
    s_and_b32 s25, s25, 0xffff
    s_mov_b32 s26, {F*D*2}
    s_mov_b32 s27, 0x20000
    s_mul_i32 s34, s33, {14*3584}
    s_mul_i32 s35, s32, 448
    s_and_b32 s35, s35, 0xff80
    s_add_u32 s34, s34, s35
    v_lshrrev_b32 v9, 2, v2
    v_min_u32 v9, 13, v9
    v_mul_u32_u24 v11, 3584, v9
    v_and_b32 v10, 3, v2
    v_lshl_add_u32 v11, v10, 7, v11
    buffer_load_dword v250, v11, s[24:27], s34 offen{NTP}
    s_and_b32 s21, s21, 0xffff
    s_mov_b32 s23, 0x20000
    s_lshr_b32 s34, s32, 1
    s_mul_i32 s34, s34, {448*896}
    s_and_b32 s35, s32, 1
    s_mul_i32 s35, s35, 384
    s_add_u32 s34, s34, s35
    s_lshl_b32 s35, s32, 7
    s_min_u32 s35, s35, 768
    s_cmp_eq_u32 s3, 0
    s_cselect_b32 s34, s34, s35
    s_cselect_b32 s22, s22, {D*D*2}
    s_mul_i32 s35, s33, {14*896}
    s_add_u32 s34, s34, s35
    v_and_b32 v10, s36, v10
    v_mul_u32_u24 v11, 896, v9
    v_lshl_add_u32 v11, v10, 7, v11
    buffer_load_dword v251, v11, s[20:23], s34 offen{NTP}
    pr_notouch:
    v_and_b32 v3, 15, v0
    v_bfe_u32 v4, v0, 4, 2
    v_lshlrev_b32 v6, 4, v2
    v_and_b32 v8, 3, v3
    v_and_b32 v7, 12, v3
    v_lshl_add_u32 v5, v7, 1, v8
    v_and_b32 v7, 4, v3
    v_lshl_or_b32 v8, v7, 1, v8
    v_and_b32 v7, 8, v3
    v_lshrrev_b32 v7, 1, v7
    v_or_b32 v8, v8, v7
    v_add_u32 v9, 16, v8
    v_and_b32 v7, 1, v4
    v_lshlrev_b32 v7, 9, v7
    v_lshl_add_u32 v7, v3, 4, v7
    v_lshrrev_b32 v10, 1, v4
    s_mov_b32 s28, s18
    s_and_b32 s29, s19, 0xffff
    s_mov_b32 s30, {WS_BYTES}
    s_mov_b32 s31, 0x20000
    s_mov_b32 s27, 0x20000
    s_and_b32 s32, s2, 7
    s_lshr_b32 s33, s2, 5
    s_lshl_b32 s33, s33, 1
    s_bfe_u32 s34, s2, 0x10003
    s_add_u32 s38, s33, s34
    s_mov_b32 s41, 1.0
    s_mov_b32 s43, 1
    s_mov_b32 s22, 64
    s_bitcmp1_b32 s2, 4
    s_cbranch_scc1 pr_wgu
    s_lshl_b32 s33, s38, 3
    s_add_u32 s39, s32, s33
    s_mov_b32 s33, 896
    s_mov_b32 s26, {D*D*2}
    s_cmp_lt_u32 s39, 18
    s_cbranch_scc1 pr_qkv
    s_mov_b32 s43, 0
    s_cmp_lt_u32 s38, 3
    s_cbranch_scc1 pq_end
    s_cmp_lt_u32 s38, 5
    s_cbranch_scc1 pr_wo
    s_cmp_ge_u32 s38, 12
    s_cbranch_scc1 pr_flags""")
    A(f"""s_mul_i32 s32, s32, 7
    s_add_u32 s32, s32, s38
    s_sub_u32 s32, s32, 5
    s_mul_i32 s38, s32, 4682
    s_lshr_b32 s38, s38, 16
    s_mul_i32 s39, s38, 14
    s_sub_u32 s39, s32, s39
    s_lshl_b32 s38, s38, 1
    s_add_u32 s38, s38, s3
    s_mov_b32 s24, s16
    s_and_b32 s25, s17, 0xffff
    s_mov_b32 s26, {F*D*2}
    s_mul_i32 s34, s38, {224*896}
    s_lshl_b32 s35, s39, 6
    s_add_u32 s34, s34, s35
    s_lshr_b32 s35, s39, 1
    s_mul_i32 s35, s35, {112*2*1024}
    s_and_b32 s39, s39, 1
    s_lshl_b32 s39, s39, 10
    s_add_u32 s35, s35, s39
    s_mul_i32 s38, s38, {14*2048}
    s_add_u32 s35, s35, s38
    s_add_u32 s35, s35, {WD}
    s_mov_b32 s20, 2048
    s_branch pr_std""")
    A.label("pr_wo")
    A(f"""s_sub_u32 s38, s38, 3
    s_lshl_b32 s38, s38, 3
    s_add_u32 s32, s32, s38
    s_lshl_b32 s32, s32, 1
    s_add_u32 s32, s32, s3
    s_mul_i32 s32, s32, 7
    s_and_b32 s22, s32, 15
    s_mul_i32 s34, s22, {28*896}
    s_lshr_b32 s35, s32, 4
    s_lshl_b32 s35, s35, 6
    s_add_u32 s34, s34, s35
    s_mov_b32 s24, s10
    s_and_b32 s25, s11, 0xffff
    s_lshl_b32 s35, s32, 11
    s_add_u32 s35, s35, {WO}
    s_add_u32 s37, s35, 256
    v_and_b32 v11, 1, v4
    v_lshlrev_b32 v11, 10, v11
    v_lshl_add_u32 v11, v10, 9, v11
    v_lshl_add_u32 v11, v3, 4, v11
    v_mov_b32 v12, v11
    s_mov_b32 s36, 2048
    s_mov_b32 s42, 2048
    s_branch pr_go""")
    A.label("pr_qkv")
    A(f"""s_mul_i32 s35, s39, {28*1024}
    s_mul_i32 s38, s3, {14*1024}
    s_add_u32 s35, s35, s38
    s_add_u32 s35, s35, {WQKV}
    s_mov_b32 s20, 1024
    s_mov_b32 s24, s4
    s_and_b32 s25, s5, 0xffff
    s_mul_i32 s34, s39, 56
    s_mov_b32 s41, {f2u(QSCALE):#x}
    s_cmp_lt_u32 s39, 16
    s_cbranch_scc1 pr_q
    s_mov_b32 s41, 1.0
    s_mov_b32 s33, 56
    s_mov_b32 s34, 0
    s_mov_b32 s26, {D*DH*2}
    s_mov_b32 s24, s6
    s_and_b32 s25, s7, 0xffff
    s_cmp_eq_u32 s39, 16
    s_cbranch_scc1 pr_q
    s_mov_b32 s24, s8
    s_and_b32 s25, s9, 0xffff
    v_and_b32 v8, 3, v3
    v_lshrrev_b32 v9, 3, v3
    v_lshl_add_u32 v8, v9, 2, v8
    v_bfe_u32 v9, v3, 2, 1
    v_lshl_add_u32 v8, v9, 4, v8
    v_add_u32 v9, 8, v8""")
    A.label("pr_q")
    A(f"""s_mul_i32 s38, s33, 224
    s_mul_i32 s38, s38, s3
    s_add_u32 s34, s34, s38
    v_cmp_gt_u32 vcc, 28, v9
    v_mov_b32 v11, 64
    v_cndmask_b32 v9, v11, v9, vcc""")
    A.label("pr_std")
    A(f"""s_add_u32 s37, s35, 256
    s_mov_b32 s21, s20
    s_branch pr_fin""")
    A.label("pr_wgu")
    A(f"""s_cmp_ge_u32 s38, 14
    s_cbranch_scc1 pr_code
    s_and_b32 s39, s38, 1
    s_cselect_b32 s24, s14, s12
    s_cselect_b32 s25, s15, s13
    s_and_b32 s25, s25, 0xffff
    s_mov_b32 s26, {F*D*2}
    s_mov_b32 s33, 3584
    s_mul_i32 s32, s32, 14
    s_and_b32 s38, s38, 14
    s_add_u32 s32, s32, s38
    s_mul_i32 s34, s3, {224*3584}
    s_lshl_b32 s38, s32, 5
    s_add_u32 s34, s34, s38
    s_lshl_b32 s39, s39, 8
    s_add_u32 s39, s39, {WGU}""")
    for c, r, k in ((0, 35, 20), (1, 37, 21)):
        A(f"""s_add_u32 s40, s32, {c}
        s_mul_i32 s38, s40, 9363
        s_lshr_b32 s38, s38, 16
        s_mul_i32 s{r}, s38, {28*7*1024}
        s_mul_i32 s38, s38, 7
        s_sub_u32 s38, s40, s38
        s_mov_b32 s{k}, {PARTS[0]*1024}
        s_mov_b32 s40, 0""")
        for q_ in range(1, len(PARTS)):
            A(f"""s_cmp_ge_u32 s38, {POFF[q_]}
            s_cselect_b32 s{k}, {PARTS[q_]*1024}, s{k}
            s_cselect_b32 s40, {POFF[q_]*27*1024}, s40""")
        A(f"""s_add_u32 s{r}, s{r}, s40
        s_lshl_b32 s38, s38, 10
        s_add_u32 s{r}, s{r}, s38
        s_mul_i32 s38, s{k}, 14
        s_mul_i32 s38, s38, s3
        s_add_u32 s{r}, s{r}, s38
        s_add_u32 s{r}, s{r}, s39""")
    A.label("pr_fin")
    A(f"""v_mad_u32_u24 v11, v10, s20, v7
    v_mad_u32_u24 v12, v10, s21, v7
    s_lshl_b32 s36, s20, 1
    s_lshl_b32 s42, s21, 1""")
    A.label("pr_go")
    A.fence(2)
    if PS: st(A, "pr_go")
    A(f"""v_mul_lo_u32 v5, v5, s33
    v_lshl_add_u32 v5, v4, 4, v5
    s_lshl_b32 s38, s33, 2
    v_add_u32 v7, s38, v5
    s_lshl_b32 s33, s33, 5
    s_cmp_lt_u32 s22, 16
    s_cselect_b32 s33, {28*896}, s33
    s_cselect_b32 s38, 12, 16
    v_cmp_le_u32 vcc, s38, v3
    v_mov_b32 v13, 0x7fffff00
    v_cndmask_b32 v7, v7, v13, vcc
    s_waitcnt vmcnt(0)""")
    if E("PR_LATE", 1):
        A(f"v_mov_b32 v13, {PQ_SYNC + 16}")
        A.label("pr_hold")
        A("""ds_read_b32 v14, v13
        s_waitcnt lgkmcnt(0)
        v_readfirstlane_b32 s40, v14
        s_cmp_lt_u32 s40, 4
        s_cbranch_scc1 pr_hold""")
    if PS: st(A, "pr_t")
    for u in range(7):
        A(f"""buffer_load_dwordx4 v[{LD+8*u}:{LD+8*u+3}], v5, s[24:27], s34 offen{NTP}
        buffer_load_dwordx4 v[{LD+8*u+4}:{LD+8*u+7}], v7, s[24:27], s34 offen{NTP}""")
        if u < 6: A(f"s_add_u32 s34, s34, s33\n s_add_u32 s22, s22, 1\n s_cmp_eq_u32 s22, 16\n s_cselect_b32 s23, {(64 - 16*28*896) & 0xffffffff:#x}, 0\n s_add_u32 s34, s34, s23")
    if PS: st(A, "pr_iss")
    A("v_mov_b32 v15, 0x3f80\n v_lshlrev_b32 v14, 2, v4")
    for c in range(2):
        A(f"""v_and_b32 v13, 1, v{8+c}
        v_lshlrev_b32 v13, 4, v13
        v_lshlrev_b32 v13, v13, v15
        v_lshrrev_b32 v10, 1, v{8+c}
        v_sub_u32 v10, v10, v14""")
        for q_ in range(4): A(f"v_cmp_eq_u32 vcc, {q_}, v10\n v_cndmask_b32 v{BB+4*c+q_}, 0, v13, vcc")
    def mf(dst, u, y, c, cc):
        A(f"v_mfma_f32_16x16x32_bf16 v[{dst}:{dst+3}], v[{LD+8*u+4*y}:{LD+8*u+4*y+3}], v[{BB+4*c}:{BB+4*c+3}], {cc}")
    def tr(u):
        for c in range(2):
            for y in range(2): mf(AC + 16*u + 8*c + 4*y, u, y, c, "0")
    def out(u, fma):
        o = LD + 8 * u
        for c in range(2):
            b = AC + 16 * u + 8 * c
            if fma:
                for r in range(0, 8, 2): A(f"v_pk_fma_f32 v[{b+r}:{b+r+1}], v[{b+r}:{b+r+1}], v[8:9], v[{SM+8+2*c}:{SM+9+2*c}]")
            for q_ in range(4): A(f"v_cvt_pk_bf16_f32 v{o+4*c+q_}, v{b+2*q_}, v{b+2*q_+1}")
            A(f"buffer_store_dwordx4 v[{o+4*c}:{o+4*c+3}], v{11+c}, s[28:31], s{35+2*c} offen{PFS}")
        if u < 6: A("s_add_u32 s35, s35, s36\n s_add_u32 s37, s37, s42")
    A("s_cmp_eq_u32 s43, 1\n s_cbranch_scc1 pr_center")
    for u in range(8):
        if u < 7:
            A(f"s_waitcnt vmcnt({12 - 2*u + 2*max(0, u-1)})")
            if PS and u in (0, 6): st(A, f"pr_l{u}")
            tr(u)
        if u: out(u - 1, False)
    if PS: st(A, "pr_st")
    pflush(A)
    A("s_endpgm")
    A.label("pr_center")
    A.reset_hz()
    for u in range(7):
        A(f"s_waitcnt vmcnt({12 - 2*u})")
        if PS and u in (0, 6): st(A, f"pr_l{u}")
        for y in range(2):
            for c in range(2): mf(SM + 4*c, u, y, c, "0" if u + y == 0 else f"v[{SM+4*c}:{SM+4*c+3}]")
        if u < 6: tr(u)
    tr(6)
    A(f"""v_lshlrev_b32 v14, 3, v3
    v_add_u32 v14, {PQ_PREP}, v14
    v_lshl_add_u32 v15, v4, 7, v14
    s_lshl_b32 s38, s3, 9
    v_add_u32 v15, s38, v15
    v_pk_add_f32 v[{SM}:{SM+1}], v[{SM}:{SM+1}], v[{SM+2}:{SM+3}]
    v_pk_add_f32 v[{SM+4}:{SM+5}], v[{SM+4}:{SM+5}], v[{SM+6}:{SM+7}]
    v_add_f32 v{SM}, v{SM}, v{SM+1}
    v_add_f32 v{SM+1}, v{SM+4}, v{SM+5}
    ds_write_b64 v15, v[{SM}:{SM+1}]""")
    lbar(A, 3, 2)
    for i in range(4): A(f"ds_read2_b64 v[{SM+16+4*i}:{SM+19+4*i}], v14 offset0:{32*i} offset1:{32*i+16}")
    A(f"""v_mov_b32 v8, s41
    v_mov_b32 v9, s41
    v_mul_f32 v10, {f2u(-1.0/448):#x}, v8
    s_waitcnt lgkmcnt(0)""")
    for sz in (8, 4, 2):
        for i in range(0, sz, 2): A(f"v_pk_add_f32 v[{SM+16+i}:{SM+17+i}], v[{SM+16+i}:{SM+17+i}], v[{SM+16+sz+i}:{SM+17+sz+i}]")
    A(f"""v_mul_f32 v{SM+8}, v10, v{SM+16}
    v_mul_f32 v{SM+9}, v10, v{SM+16}
    v_mul_f32 v{SM+10}, v10, v{SM+17}
    v_mul_f32 v{SM+11}, v10, v{SM+17}""")
    for u in range(7): out(u, True)
    if PS: st(A, "pr_st")
    pflush(A)
    A("s_endpgm")
    A.label("pr_flags")
    A(f"""s_sub_u32 s32, s39, 96
    s_lshl_b32 s32, s32, 1
    s_add_u32 s32, s32, s3
    s_lshl_b32 s32, s32, 13
    s_add_u32 s32, s32, {FL}
    s_add_u32 s33, s32, 4096
    v_mov_b32 v16, 0
    v_mov_b32 v17, 0
    v_mov_b32 v18, 0
    v_mov_b32 v19, 0
    buffer_store_dwordx4 v[16:19], v6, s[28:31], s32 offen
    buffer_store_dwordx4 v[16:19], v6, s[28:31], s32 offen offset:1024
    buffer_store_dwordx4 v[16:19], v6, s[28:31], s32 offen offset:2048
    buffer_store_dwordx4 v[16:19], v6, s[28:31], s32 offen offset:3072
    buffer_store_dwordx4 v[16:19], v6, s[28:31], s33 offen
    buffer_store_dwordx4 v[16:19], v6, s[28:31], s33 offen offset:1024
    buffer_store_dwordx4 v[16:19], v6, s[28:31], s33 offen offset:2048
    buffer_store_dwordx4 v[16:19], v6, s[28:31], s33 offen offset:3072
    s_endpgm""")
    A.label("pr_code")
    A.raw("""    s_getpc_b64 s[46:47]
cpf_pc:
    s_add_u32 s46, s46, main0_kernel - cpf_pc
    s_addc_u32 s47, s47, 0""")
    A(f"""s_sub_u32 s33, s38, 14
    s_lshl_b32 s33, s33, 1
    s_add_u32 s33, s33, s3
    s_lshl_b32 s33, s33, 13
    v_lshlrev_b32 v10, 7, v2
    v_add_u32 v10, s33, v10
    v_add_u32 v11, 0x8000, v10""")
    A.raw("""    v_min_u32 v10, code_end - main0_kernel - 4, v10
    v_min_u32 v11, code_end - main0_kernel - 4, v11""")
    A(f"""global_load_dword v16, v10, s[46:47]
    global_load_dword v17, v11, s[46:47]""")
    A.label("pq_end")
    A("s_endpgm")

def k_pq(A):
    name = "pq_kernel"
    kstart(A, name)
    A("s_cmp_ge_u32 s2, 256\n s_cbranch_scc1 pq_end")
    st(A, "start")
    A(f"""s_load_dwordx8 s[4:11], s[0:1], 8
    s_load_dwordx2 s[44:45], s[0:1], 0
    s_load_dwordx2 s[18:19], s[0:1], 88
    s_load_dwordx4 s[12:15], s[0:1], 48
    s_load_dwordx2 s[16:17], s[0:1], 64
    v_lshrrev_b32 v1, 6, v0
    v_and_b32 v2, 63, v0""")
    if E("PQ_CT", 1):
        A.raw("""    s_getpc_b64 s[40:41]
pq_pc:
    v_lshlrev_b32 v11, 7, v0
    v_min_u32 v11, main0_kernel - pq_pc - 4, v11
    global_load_dword v255, v11, s[40:41]""")
    A(f"""v_readfirstlane_b32 s3, v1
    v_mov_b32 v12, 0
    v_mov_b32 v13, 0
    v_mov_b32 v14, 0
    v_mov_b32 v15, 0
    v_mov_b32 v11, {PQ_SYNC}
    ds_write_b128 v11, v[12:15]
    ds_write_b128 v11, v[12:15] offset:16
    s_cmp_lt_u32 s3, 4
    s_cbranch_scc1 pq_qkv
    s_sub_u32 s3, s3, 4
    s_waitcnt lgkmcnt(0)
    s_barrier""")
    if E("PQ_NOPREP", 0): A("s_endpgm")
    prep_roles(A)
    A.label("pq_qkv")
    A.reset_hz()
    XR_, XN, WB, UP, AC = 96, 124, 152, 200, 16
    ROTX = ["s_mov_b32 s41, 0", "s_mov_b32 s41, s2", "s_and_b32 s41, s2, 7", "s_lshr_b32 s41, s2, 3", "s_lshr_b32 s41, s2, 5"][E("PQ_ROT", 1)]
    def adv(r): A(f"s_add_u32 s{r}, s{r}, 1\n s_cmp_eq_u32 s{r}, 7\n s_cselect_b32 s{r}, 0, s{r}")
    A(f"""v_lshlrev_b32 v6, 4, v2
    v_and_b32 v3, 15, v0
    v_bfe_u32 v4, v0, 4, 2
    s_and_b32 s33, s2, 7
    s_lshr_b32 s34, s2, 3
    s_lshl_b32 s33, s33, 3
    s_lshr_b32 s35, s34, 2
    s_add_u32 s33, s33, s35
    s_and_b32 s34, s34, 3
    v_and_b32 v5, 31, v0
    v_mul_u32_u24 v7, 896, v5
    v_bfe_u32 v8, v0, 5, 1
    v_lshl_add_u32 v7, v8, 4, v7
    s_mul_i32 s36, s33, {32*896}
    s_mul_i32 s37, s3, 224
    s_add_u32 s36, s36, s37
    v_lshlrev_b32 v9, 2, v4
    v_sub_u32 v9, v3, v9
    v_and_b32 v9, 15, v9
    v_cmp_gt_u32 vcc, 14, v9
    v_lshlrev_b32 v9, 4, v9
    v_mul_u32_u24 v10, 896, v4
    v_add_u32 v9, v9, v10
    v_mov_b32 v13, 0x7fffff00
    v_cndmask_b32 v254, v13, v9, vcc
    s_mul_i32 s37, s3, {112*896}
    s_mul_i32 s38, s34, 224
    s_add_u32 s37, s37, s38
    s_mul_i32 s38, s3, {28*1024}
    s_mul_i32 s39, s3, {7*1024}
    s_add_u32 s39, s39, {PQ_KV}
    s_mul_i32 s35, s3, {112*56}
    {ROTX}
    s_mul_i32 s42, s41, 9363
    s_lshr_b32 s42, s42, 16
    s_mul_i32 s42, s42, 7
    s_sub_u32 s41, s41, s42
    s_mov_b32 s22, {X_BYTES}
    s_mov_b32 s23, 0x20000
    s_mov_b32 s26, {D*D*2}
    s_mov_b32 s27, 0x20000
    s_mov_b32 s30, {D*DH*2}
    s_mov_b32 s31, 0x20000
    v_bfe_u32 v9, v0, 2, 2
    v_bfe_u32 v10, v0, 1, 1
    v_and_b32 v11, 1, v0
    v_bfe_u32 v12, v0, 4, 1
    v_lshlrev_b32 v13, 3, v10
    v_lshl_add_u32 v14, v11, 4, v13
    v_lshl_add_u32 v14, v12, 5, v14
    v_lshl_add_u32 v15, v11, 5, v13
    v_lshl_add_u32 v15, v12, 4, v15
    v_lshl_add_u32 v13, v8, 3, v9
    s_cmp_eq_u32 s34, 0
    s_cselect_b64 vcc, -1, 0
    v_cndmask_b32 v15, v15, v14, vcc
    v_mul_u32_u24 v10, 56, v13
    v_add3_u32 v15, v15, v10, s39
    v_lshl_add_u32 v14, v9, 6, v14
    v_lshlrev_b32 v13, 8, v13
    v_add_u32 v13, s38, v13""")
    for lt in range(4):
        A(f"""s_xor_b32 s42, s3, {lt}
        s_mul_i32 s42, s42, 56
        v_add_u32 v{9+lt}, s42, v14
        v_and_b32 v{9+lt}, 255, v{9+lt}
        v_add_u32 v{9+lt}, v{9+lt}, v13""")
    A(f"""v_mov_b32 v3, v5
    v_mov_b32 v4, v8
    v_lshlrev_b32 v13, 3, v5
    v_add_u32 v13, {PQ_ST}, v13
    s_lshl_b32 s42, s3, 8
    v_add_u32 v14, s42, v13
    v_mov_b32 v5, v254
    s_waitcnt lgkmcnt(0)
    s_barrier
    s_mov_b32 s20, s44
    s_and_b32 s21, s45, 0xffff
    s_mov_b32 s24, s4
    s_and_b32 s25, s5, 0xffff""")
    stq(A, "pq_ka")
    if E("PQ_TOUCH", 1):
        A(f"""s_lshr_b32 s42, s2, 3
        s_cmp_lt_u32 s3, 2
        s_cbranch_scc1 pq_tq
        s_cmp_eq_u32 s3, 3
        s_cbranch_scc1 pq_tx
        s_mov_b32 s28, s6
        s_and_b32 s29, s7, 0xffff
        s_mul_i32 s42, s42, {7*128}
        v_min_u32 v126, 6, v2
        v_lshlrev_b32 v126, 7, v126
        v_add_u32 v126, s42, v126
        buffer_load_dword v127, v126, s[28:31], 0 offen
        s_mov_b32 s28, s8
        s_and_b32 s29, s9, 0xffff
        buffer_load_dword v126, v126, s[28:31], 0 offen
        s_branch pq_td""")
        A.label("pq_tx")
        A(f"""s_lshl_b32 s42, s33, 2
        s_add_u32 s42, s42, s34
        s_mul_i32 s42, s42, {56*128}
        v_min_u32 v126, 55, v2
        v_lshlrev_b32 v126, 7, v126
        buffer_load_dword v126, v126, s[20:23], s42 offen{NTX}
        s_branch pq_td""")
        A.label("pq_tq")
        A(f"""s_lshl_b32 s42, s42, 1
        s_add_u32 s42, s42, s3
        s_mul_i32 s42, s42, {49*128}
        v_min_u32 v126, 48, v2
        v_lshlrev_b32 v126, 7, v126
        buffer_load_dword v126, v126, s[24:27], s42 offen""")
        A.label("pq_td")
        A("s_waitcnt vmcnt(0)")
        stq(A, "pq_t")
    A("s_mov_b32 s43, s41")
    for u in range(7):
        A(f"s_lshl_b32 s42, s43, 5\n s_add_u32 s42, s42, s36\n buffer_load_dwordx4 v[{XR_+4*u}:{XR_+4*u+3}], v7, s[20:23], s42 offen{NTX}")
        if u < 6: adv(43)
    A("s_mov_b32 s43, s41\n s_mov_b32 s36, s37")
    A(f"""s_cmp_eq_u32 s34, 0
    s_cselect_b32 s28, s6, s8
    s_cselect_b32 s29, s7, s9
    s_and_b32 s29, s29, 0xffff
    s_mov_b32 s8, s18
    s_and_b32 s9, s19, 0xffff
    s_mov_b32 s10, {WS_BYTES}
    s_mov_b32 s11, 0x20000
    s_mov_b32 s18, s33
    s_mov_b32 s19, s34
    s_mov_b32 s20, {ABASE[0]}
    s_mov_b32 s32, {LBASE[0]}
    s_cmp_eq_u32 s34, 0
    s_cbranch_scc1 pq_v1
    s_cmp_eq_u32 s34, 1
    s_cbranch_scc1 pq_v2""")
    def wb(ks, lt): return WB + 20 * (ks & 1) + 4 * lt
    def rdw(ks, lt):
        b = wb(ks, lt)
        if lt < 4: A(f"ds_read_b64_tr_b16 v[{b}:{b+1}], v{9+lt} offset:{4096*ks}\n ds_read_b64_tr_b16 v[{b+2}:{b+3}], v{9+lt} offset:{4096*ks+1024}")
        else: A(f"ds_read_b64_tr_b16 v[{b}:{b+1}], v15 offset:{1024*ks}\n ds_read_b64_tr_b16 v[{b+2}:{b+3}], v15 offset:{1024*ks+224}")
    def variant(kind):
        vm = VM2(A); vm.ops = ["x"] * 7
        NTL = 5 if kind else 4
        dm = []
        def dq(n):
            if n & 3 == 0: A(f"s_mul_i32 s37, s43, {16*896}\n s_add_u32 s37, s37, s36")
            A(f"s_add_u32 m0, s38, {1024*n}")
            vm.issue(f"buffer_load_dwordx4 v5, s[24:27], s37 offen{NTW} lds", f"w{n>>2}")
            if n & 3 == 3: adv(43)
            else: A(f"s_add_u32 s37, s37, {4*896}")
        def dkv(n):
            A(f"s_mul_i32 s42, s43, 896\n s_add_u32 s42, s42, s35\n v_add_u32 v8, s42, v6\n s_add_u32 m0, s39, {1024*n}")
            vm.issue(f"buffer_load_dwordx4 v8, s[28:31], 0 offen{NTW} lds", f"w{n}")
        for ks in range(7):
            if kind: dm.append(lambda ks=ks: dkv(ks))
            dm += [lambda n=n: dq(n) for n in range(4*ks, 4*ks+4)]
        stq(A, "pq_xi")
        for i in range(E("PQ_PRE", 2) * NTL):
            dm.pop(0)()
            if i in (2*NTL-1, 4*NTL-1): stq(A, f"pq_d{(i+1)//NTL}")
        stq(A, "pq_iss")
        vm.wait("x")
        stq(A, "pq_x")
        for i in range(28):
            A(f"v_lshlrev_b32 v{UP+2*i}, 16, v{XR_+i}\n v_and_b32 v{UP+2*i+1}, 0xffff0000, v{XR_+i}")
            c = 4 * (i & 1)
            if i < 2: A(f"v_pk_mul_f32 v[{194+c}:{195+c}], v[{UP+2*i}:{UP+2*i+1}], v[{UP+2*i}:{UP+2*i+1}]")
            else: A(f"v_pk_fma_f32 v[{194+c}:{195+c}], v[{UP+2*i}:{UP+2*i+1}], v[{UP+2*i}:{UP+2*i+1}], v[{194+c}:{195+c}]")
            if i in (2, 3): A(f"v_pk_add_f32 v[{192+c}:{193+c}], v[{UP+2*i}:{UP+2*i+1}], v[{UP+2*i-4}:{UP+2*i-3}]")
            if i > 3: A(f"v_pk_add_f32 v[{192+c}:{193+c}], v[{192+c}:{193+c}], v[{UP+2*i}:{UP+2*i+1}]")
            if dm and i % E("PQ_EV", 2) == 1: dm.pop(0)()
        A(f"""v_pk_add_f32 v[192:193], v[192:193], v[196:197]
        v_pk_add_f32 v[194:195], v[194:195], v[198:199]
        v_add_f32 v192, v192, v193
        v_add_f32 v193, v194, v195
        v_mov_b32 v194, v192
        v_mov_b32 v195, v193
        v_permlane32_swap_b32 v192, v194
        v_permlane32_swap_b32 v193, v195
        v_pk_add_f32 v[192:193], v[192:193], v[194:195]
        ds_write_b64 v14, v[192:193]""")
        if not E("PQ_OVL", 1):
            while dm: dm.pop(0)()
        while dm and vm.ops.count("w1") < NTL: dm.pop(0)()
        def rel():
            if E("PR_LATE", 1): A(f"v_mov_b32 v1, 1\n v_mov_b32 v2, {PQ_SYNC + 16}\n s_mov_b64 exec, 1\n ds_add_u32 v2, v1\n s_mov_b64 exec, -1")
        RELAT = E("PR_REL", 0) * NTL
        released = [False]
        def popd():
            if dm: dm.pop(0)()
            if len(dm) <= RELAT and not released[0]: released[0] = True; return True
            return False
        lbar(A, 0)
        if len(dm) <= RELAT: released[0] = True; rel(); A("s_waitcnt lgkmcnt(0)")
        A(f"""ds_read2_b64 v[192:195], v13 offset0:0 offset1:32
        ds_read2_b64 v[196:199], v13 offset0:64 offset1:96""")
        vm.wait("w0")
        for lt in range(NTL): rdw(0, lt)
        A(f"""s_waitcnt lgkmcnt({2*NTL})
        v_pk_add_f32 v[192:193], v[192:193], v[194:195]
        v_pk_add_f32 v[196:197], v[196:197], v[198:199]
        v_pk_add_f32 v[192:193], v[192:193], v[196:197]
        v_mul_f32 v192, {f2u(1.0/448):#x}, v192
        v_mul_f32 v193, {f2u(1.0/448):#x}, v193
        v_fma_f32 v193, -v192, v192, v193
        v_max_f32 v193, 0, v193
        v_add_f32 v193, {f2u(1e-5):#x}, v193
        v_rsq_f32 v194, v193
        v_mul_f32 v196, -v192, v194
        v_mov_b32 v195, v194
        v_mov_b32 v197, v196""")
        def nrm(ks):
            for i in range(4*ks, 4*ks+4): A(f"v_pk_fma_f32 v[{UP+2*i}:{UP+2*i+1}], v[{UP+2*i}:{UP+2*i+1}], v[194:195], v[196:197]")
            for i in range(4*ks, 4*ks+4): A(f"v_cvt_pk_bf16_f32 v{XN+i}, v{UP+2*i}, v{UP+2*i+1}")
        nrm(0)
        stq(A, "pq_ln")
        for ks in range(7):
            x = f"v[{XN+4*ks}:{XN+4*ks+3}]"
            if ks < 6:
                while vm.ops.count(f"w{ks+1}") < NTL: assert not popd() or True
                vm.wait(f"w{ks+1}")
            for n, lt in enumerate(range(NTL)):
                A(f"s_waitcnt lgkmcnt({2*NTL-2 if ks < 6 else 2*NTL - 2 - 2*lt})")
                b = wb(ks, lt); w = f"v[{b}:{b+3}]"
                acc = f"v[{AC+16*lt}:{AC+16*lt+15}]"
                c = "0" if ks == 0 else acc
                if lt == 4 and kind == 2: A(f"v_mfma_f32_32x32x16_bf16 {acc}, {x}, {w}, {c}")
                else: A(f"v_mfma_f32_32x32x16_bf16 {acc}, {w}, {x}, {c}")
                if ks < 6: rdw(ks + 1, lt)
                if ks < 6 and n == 0: nrm(ks + 1)
                for _ in range(E("PQ_MD", 2)): popd()
            if released[0] == True:
                released[0] = 2
                if E("PR_LATE", 1): rel(); A("s_waitcnt lgkmcnt(0)")
    variant(0)
    A(f"""s_cmp_lg_u32 s19, 3
    s_cbranch_scc1 pq_red
    s_mul_i32 s42, s18, {28*1024}
    s_mul_i32 s43, s3, {7*1024}
    s_add_u32 s42, s42, s43
    s_add_u32 s42, s42, {X0}""")
    for u in range(7):
        A(f"s_lshl_b32 s43, s41, 10\n s_add_u32 s43, s43, s42\n buffer_store_dwordx4 v[{XR_+4*u}:{XR_+4*u+3}], v6, s[8:11], s43 offen" + PFS)
        if u < 6: adv(41)
    A("s_branch pq_red")
    A.label("pq_v1"); A.reset_hz(); variant(1); A("s_branch pq_red")
    A.label("pq_v2"); A.reset_hz(); variant(2)
    A.label("pq_red")
    A.fence(2)
    A("s_mov_b32 s38, 0\n s_mov_b32 s39, 2")
    st(A, "qkv_mm")
    lbar(A, 1)
    qkv_epilogue(A, VM2(A), "pq", True, lambda k: lbar(A, k))
    A("s_endpgm")
    KERNELS.append((name, 256, 384, PQ_LDS, 256, 256))

ALL = [k_pq, k_main]
LAUNCHES = ["pq_kernel", "main0_kernel"]
```

```python
import sys, os
os.environ.setdefault("INPLACE", "1")
sys.path.insert(0, "gen")
import gen7
from asm import Asm
A = Asm()
launches = sys.argv[2].split(",") if len(sys.argv) > 2 else None
for f in gen7.ALL: f(A)
if launches is None: launches = gen7.LAUNCHES
open(sys.argv[1], "w").write(gen7.finish(A, launches))
print("nops inserted:", A.nops, "lines:", len(A.lines))
open(sys.argv[1][:-2] + ".names", "w").write(",".join(gen7.SNAMES))
```
